```python
import torch

def _softmax(x, axis=-1):
    return torch.softmax(x, dim=axis)
def _gelu(x):
    return torch.nn.functional.gelu(x, approximate="tanh")
def _silu(x):
    return torch.nn.functional.silu(x)
def _sigmoid(x):
    return torch.sigmoid(x)
def _layernorm(x, axis=-1, eps=1e-5):
    m = x.mean(dim=axis, keepdim=True)
    v = x.var(dim=axis, keepdim=True, unbiased=False)
    return (x - m) / torch.sqrt(v + eps)
def _scatter_add(tgt, idx, src, axis=0):
    return tgt.clone().index_add_(axis, idx, src)
def _segment_sum(src, seg, n):
    out = torch.zeros((n,) + src.shape[1:], dtype=src.dtype)
    return out.index_add_(0, seg, src)
def _pad(x, pw):
    flat = tuple(v for pair in reversed(pw) for v in pair)
    return torch.nn.functional.pad(x, flat)

kernel_name = 'concat_heads__compressed_kv_cla__linear_kernel_hedgehog__prompt'

def setup_inputs():

    _w = (lambda a: (lambda t: t.to(torch.bfloat16) if t.is_floating_point() else t)(torch.as_tensor(a)))
    def _A_setup():
        B, H, Sq, Sk, D, M = 1, 16, 2048, 2048, 256, 448
        Dc = 4 * D
        return {
            "x": _w((lambda *s: torch.randn(*s, dtype=torch.bfloat16) * 0.8)(B, Sq, M)),
            "c_kv": _w((lambda *s: torch.randn(*s, dtype=torch.bfloat16) * 0.4)(B, Sk, Dc)),
            "w_q": _w((lambda *s: torch.randn(*s, dtype=torch.bfloat16) * 6.4)(M, H, D) * (M ** -0.5)),
            "w_uk": _w((lambda *s: torch.randn(*s, dtype=torch.bfloat16) * 6.4)(Dc, H, D) * (Dc ** -0.5)),
            "w_uv": _w((lambda *s: torch.randn(*s, dtype=torch.bfloat16) * 0.4)(Dc, H, D) * (Dc ** -0.5)),
            "w_o": _w((lambda *s: torch.randn(*s, dtype=torch.bfloat16) * 0.4)(H, D, M) * ((H * D) ** -0.5)),
        }
    _A_in = _A_setup()

    def _B_setup():
        B, S, D, H = 1, 2048, 448, 16
        Dh = D // H
        return {
            "x": _w((lambda *s: torch.randn(*s, dtype=torch.bfloat16) * 0.4)(B, S, D)),
            "wqkv": _w((lambda *s: torch.randn(*s, dtype=torch.bfloat16) * 0.4)(D, 3 * D)),
            "w_phi": _w((lambda *s: torch.randn(*s, dtype=torch.bfloat16) * 0.4)(H, Dh, Dh) * (Dh ** -0.5)),
            "wo": _w((lambda *s: torch.randn(*s, dtype=torch.bfloat16) * 0.05)(D, D)),
        }
    _B_in = _B_setup()

    return {
        "A_x": _A_in["x"],
        "A_c_kv": _A_in["c_kv"],
        "A_w_q": _A_in["w_q"],
        "A_w_uk": _A_in["w_uk"],
        "A_w_uv": _A_in["w_uv"],
        "A_w_o": _A_in["w_o"],
        "B_x": _B_in["x"],
        "B_wqkv": _B_in["wqkv"],
        "B_w_phi": _B_in["w_phi"],
        "B_wo": _B_in["wo"],
    }

def reference(A_x, A_c_kv, A_w_q, A_w_uk, A_w_uv, A_w_o, B_x, B_wqkv, B_w_phi, B_wo):
    def _A_ref(x, c_kv, w_q, w_uk, w_uv, w_o):
        B, Sq, M = x.shape[0], x.shape[1], x.shape[2]
        Sk = c_kv.shape[1]
        H, D = w_q.shape[1], w_q.shape[2]
        q = torch.einsum("bqm,mhd->bhqd", x, w_q)
        k = torch.einsum("bkc,chd->bhkd", c_kv, w_uk)
        v = torch.einsum("bkc,chd->bhkd", c_kv, w_uv)
        scores = torch.einsum("bhqd,bhkd->bhqk", q, k) * (D ** -0.5)
        off = Sk - Sq
        qi = torch.arange(Sq)[:, None]
        kj = torch.arange(Sk)[None, :]
        cmask = kj <= (qi + off)
        scores = torch.where(cmask[None, None], scores, -1e9)
        p = _softmax(scores, axis=-1)
        ctx = torch.einsum("bhqk,bhkd->bhqd", p, v)
        return torch.einsum("bhqd,hdm->bqm", ctx, w_o)

    def _B_ref(x, wqkv, w_phi, wo):
        B, S, D = x.shape
        H = 16; Dh = D // H
        qkv = (lambda x, *d: x.permute(*d))((x @ wqkv).reshape(B, S, 3, H, Dh), 2, 0, 3, 1, 4)
        q, k, v = qkv[0], qkv[1], qkv[2]
        pq = torch.einsum("bhsd,hdf->bhsf", q, w_phi)
        pk = torch.einsum("bhsd,hdf->bhsf", k, w_phi)
        phi_q = torch.concatenate([_softmax(pq, axis=-1), _softmax(-pq, axis=-1)], axis=-1)
        phi_k = torch.concatenate([_softmax(pk, axis=-1), _softmax(-pk, axis=-1)], axis=-1)
        kv = torch.einsum("bhsf,bhsd->bhfd", phi_k, v)
        z  = torch.einsum("bhsf->bhf", phi_k)
        num = torch.einsum("bhqf,bhfd->bhqd", phi_q, kv)
        den = torch.einsum("bhqf,bhf->bhq", phi_q, z)[..., None] + 1e-6
        o = num / den
        return (lambda x, *d: x.permute(*d))(o, 0, 2, 1, 3).reshape(B, S, D) @ wo

    a = _A_ref(A_x, A_c_kv, A_w_q, A_w_uk, A_w_uv, A_w_o)
    b = _B_ref(B_x, B_wqkv, B_w_phi, B_wo)
    return torch.concatenate([a, b], axis=-1)
```

```python
NAME = 'concat_heads__compressed_kv_cla__linear_kernel_hedgehog__prompt'

class K:
    def __init__(self):
        self.lines = []
    def __call__(self, s):
        for l in s.split('\n'):
            l = l.strip()
            if l:
                self.lines.append(l if l.endswith(':') else '    ' + l)
    def text(self):
        return '\n'.join(self.lines) + '\n'

def kernel_wrap(label, body, vgpr, accum, sgpr=102):
    head = f'.text\n.globl {label}\n.p2align 8\n.type {label},@function\n{label}:\n'
    desc = f'''.section .rodata,"a"
.p2align 6
.amdhsa_kernel {label}
  .amdhsa_next_free_vgpr {vgpr}
  .amdhsa_next_free_sgpr {sgpr}
  .amdhsa_accum_offset {accum}
  .amdhsa_group_segment_fixed_size 0
  .amdhsa_kernarg_size 104
  .amdhsa_user_sgpr_count 2
  .amdhsa_user_sgpr_kernarg_segment_ptr 1
  .amdhsa_system_sgpr_workgroup_id_x 1
.end_amdhsa_kernel
'''
    return head + body, desc

def file_wrap(launches, kernels):
    s = ''
    for (label, g, b, lds) in launches:
        s += f'; @launch kernel={label} grid=({g},1,1) block=({b},1,1) lds={lds}\n'
    s += '.amdgcn_target "amdgcn-amd-amdhsa--gfx950"\n'
    for code, _ in kernels:
        s += code
    for _, desc in kernels:
        s += desc
    return s

def srd(k, d, base, nbytes):
    k(f's_mov_b32 s{d}, s{base}')
    k(f's_and_b32 s{d+1}, s{base+1}, 0xffff')
    k(f's_mov_b32 s{d+2}, {nbytes}')
    k(f's_mov_b32 s{d+3}, 0x20000')

def vcost(t):
    op = t.split()[0]
    if op.startswith('s_'): return 0
    if op in ('v_exp_f32', 'v_log_f32', 'v_rcp_f32', 'v_rsq_f32'): return 2
    return 1

def sched(k, mfmas, streams, req=None, vmax=2, tmax=3, flush=True):
    req = req or {}
    pos = [0] * len(streams)
    for m, mf in enumerate(mfmas):
        for (s, c) in req.get(m, []):
            while pos[s] < c:
                k(streams[s][pos[s]][0]); pos[s] += 1
        k(mf)
        v = 0; t = 0
        progress = True
        while progress:
            progress = False
            for s, st in enumerate(streams):
                if pos[s] < len(st):
                    text, eg = st[pos[s]]
                    c = vcost(text)
                    if eg <= m and v + c <= vmax and t + 1 <= tmax:
                        k(text); pos[s] += 1; v += c; t += 1; progress = True
    left = [st[pos[s]:] for s, st in enumerate(streams)]
    if flush:
        for st in left:
            for text, _ in st: k(text)
        return None
    return left

def R(cls, base, n):
    return f'{cls}[{base}:{base+n-1}]'

def mfma(d, a, b, c):
    cs = c if isinstance(c, str) else R(c[0], c[1], 4)
    return f'v_mfma_f32_16x16x32_bf16 {R(d[0], d[1], 4)}, {R(a[0], a[1], 4)}, {R(b[0], b[1], 4)}, {cs}'

class VM:
    def __init__(self): self.n = 0; self.marks = {}
    def count(self, lines):
        return sum(1 for l in lines if l.split()[0].startswith(('buffer_', 'global_')))


def stamp(k, on, idx):
    if not on: return
    if idx == 0:
        k('s_memrealtime s[84:85]'); k('s_memtime s[86:87]'); return
    k('s_memrealtime s[80:81]'); k('s_memtime s[82:83]'); k('s_waitcnt lgkmcnt(0)')
    if idx == 1:
        k('v_mov_b32 v0, 0'); k('s_nop 0'); k('v_writelane_b32 v0, s84, 0'); k('v_writelane_b32 v0, s86, 16')
    k(f'v_writelane_b32 v0, s80, {idx}'); k(f'v_writelane_b32 v0, s82, {16 + idx}')

def stamp_out(k, on, idx, srd_, swv, st, vt, base):
    if not on: return
    k('s_waitcnt vmcnt(0)')
    stamp(k, on, idx)
    k(f's_lshl_b32 s{st}, s2, 2'); k(f's_add_u32 s{st}, s{st}, s{swv}'); k(f's_lshl_b32 s{st}, s{st}, 8'); k(f's_add_u32 s{st}, s{st}, {base}')
    k(f'v_mbcnt_lo_u32_b32 v{vt}, -1, 0'); k(f'v_mbcnt_hi_u32_b32 v{vt}, -1, v{vt}'); k(f'v_lshlrev_b32 v{vt}, 2, v{vt}')
    k(f'buffer_store_dword v0, v{vt}, s[{srd_}:{srd_+3}], s{st} offen')
```

```python
from fz_regs import *

vXo, vWo, vXb, vXr, vWr, vSt = 1, 5, 9, 11, 13, vL16
vTmp = 16
vXo2, vWo2 = 24, 28
vL = 30
FR = 32
XB = 65536
KV0 = 131072
VBO = 147456

def FX(b, i): return ('a', FR + 64 * b + 4 * i)
def FW(b, j): return ('a', FR + 64 * b + 32 + 4 * j)
def QX(t, i): return ('a', 96 + 16 * (t & 1) + 4 * i)
def QW(t, j):
    n = (16 * (t - 32) + j) % 20
    return ('a', 32 + 4 * n if n < 16 else 128 + 4 * (n - 16))

def acc1(p): return ('v', 32 + 8 * p) if p < 28 else ('a', 8 * (p - 28))
def acc2(p):
    if p < 12: return ('a', 160 + 8 * p)
    if p < 16: return ('v', 32 + 8 * (p - 12))
    return acc1(p)
def qidx(i, jp):
    if i < 2: return 12 + 2 * jp + i
    return 2 * jp + i - 2 if jp < 6 else 28 + 2 * (jp - 6) + i - 2

def pair_pos(kind, n):
    if kind == 'V':
        a = n >> 3; return a, (n & 7) if a % 2 == 0 else 7 - (n & 7)
    i = n >> 2; return i, (n & 3) if i % 2 == 0 else 3 - (n & 3)

def order(kind):
    o = []
    for n in range(32):
        x, y = pair_pos(kind, n)
        if kind == 'V':
            for hf in ((0, 1) if n % 2 == 0 else (1, 0)): o.append((n, hf, 2 * x + hf, y))
        else:
            for hf in ((0, 1) if x % 2 == 0 else (1, 0)): o.append((n, hf, x, 2 * y + hf))
    return o

AQ = lambda i: 160 + 8 * i
AK = lambda i: 192 + 8 * i
AV = lambda ip, j: 224 + 16 * ip + 8 * j

class P1:
    def vmwait(self): return nvm(self.k.lines[self.ends[-3]:])

    def mark(self):
        self.ends.append(max(i for i, l in enumerate(self.k.lines) if l.rstrip().endswith(' lds')) + 1)

    def last_store(self):
        return max(i for i, l in enumerate(self.k.lines) if 'buffer_store_dwordx4' in l)

    def xdma(self, par, srd_, voff, soff, delta, g0=3, dg=8):
        it = []
        if par == 0:
            it.append((f's_add_u32 s{sT}, s{soff}, {delta}', g0 - 2))
            it.append((f's_add_u32 m0, s{sC}, 16384', g0 - 1)); so = sT
        else:
            it.append((f's_mov_b32 m0, s{sA}', g0 - 1)); so = soff
        for i in range(4):
            it.append((f'buffer_load_dwordx4 v{voff + i}, s[{srd_}:{srd_+3}], s{so} offen offset:{1024*i} lds', g0 + dg * i))
        if par == 0: it.append((f's_add_u32 s{soff}, s{soff}, 128', g0 + dg * 3 + 1))
        return it

    def wdma(self, par, srd_, voff, soff, stride, n=4, g0=35, dg=8):
        it = [(f's_mov_b32 m0, s{sWd}' if par == 0 else f's_add_u32 m0, s{sWd}, 16384', g0 - 1)]
        fl = self.opt.get('wflag', '') if srd_ == SW else ''
        for i in range(n):
            it.append((f'buffer_load_dwordx4 v{voff + i}, s[{srd_}:{srd_+3}], s{soff} offen offset:{1024*i} {fl} lds', g0 + dg * i))
        it.append((f's_add_u32 s{soff}, s{soff}, {32 * stride}', g0 + dg * (n - 1) + 1))
        return it

    def reads(self, t, kind, dg=2):
        par = t & 1; nb = 1 - par
        xr = vXr + (1 if par == 0 else 0)
        wo = 16384 if par == 0 else 0
        tr = lambda reg, rho, j, off: f'ds_read_b64_tr_b16 {R(reg[0], reg[1] + 2*rho, 2)}, v{vWr + (j & 1)} offset:{wo + off}'
        if kind == 'q':
            xs = [f'ds_read_b128 {R(*QX(t + 1, i), 4)}, v{xr} offset:{(i & 1)*2048 + (i >> 1)*16384}' for i in range(4)]
            ws = [[tr(QW(t + 1, j), rho, j, (j >> 3)*8192 + rho*1024 + ((j >> 1) & 3)*256) for rho in range(2)] for j in range(16)]
            it = []
            if t == 31:
                for j in range(16): it += [(ws[j][0], 2 * j), (ws[j][1], 2 * j + 1)]
                it += [(x, 33 + 2 * n) for n, x in enumerate(xs)]
                return it, 42
            g = 0
            for j in range(16):
                g = max(g, 4 * (j - 4) + 4)
                it += [(ws[j][0], g), (ws[j][1], g + 1)]; g += 2
                if 4 <= j < 8: it.append((xs[j - 4], g)); g += 1
            return it, g
        xs = [f'ds_read_b128 {R(*FX(nb, i), 4)}, v{xr} offset:{2048*i}' for i in range(8 if kind == 'main' else 4)]
        if kind == 'main': ws = [tr(FW(nb, j), rho, j, rho*1024 + (j >> 1)*256) for j in range(8) for rho in range(2)]
        else: ws = [tr(FW(nb, j), rho, j, (j >> 1)*4096 + rho*256) for j in range(6) for rho in range(2)]
        seq = []
        while xs or ws:
            if xs: seq.append(xs.pop(0))
            seq += ws[:2]; ws = ws[2:]
        return [(x, int(n * dg)) for n, x in enumerate(seq)], int(len(seq) * dg)

    def book(self, par, g):
        if par == 0:
            return [(f'v_xor_b32 v{vWr}, 0x8000, v{vWr}', g), (f'v_xor_b32 v{vWr+1}, 0x8000, v{vWr+1}', g),
                    (f'v_add_u32 v{vXr}, s{sB}, v{vXb}', g)]
        return [(f'v_add_u32 v{vXr+1}, s{sB}, v{vXb+1}', g)]

    def rot(self, t, g):
        if t % 2 == 0 or t >= 43: return []
        return [(f's_xor_b32 s{sWd}, s{sWd}, 0x8000', g), (f's_mov_b32 s{sT2}, s{sA}', g), (f's_mov_b32 s{sA}, s{sB}', g),
                (f's_mov_b32 s{sB}, s{sC}', g), (f's_mov_b32 s{sC}, s{sT2}', g)]

    def mfmas(self, t, kind, first):
        par = t & 1; mf = []
        if kind in 'KV':
            for (p, hf, i, j) in order(kind):
                c, b = acc1(p); d = (c, b + 4 * hf)
                a_, b_ = (FX(par, i), FW(par, j)) if kind == 'V' else (FW(par, j), FX(par, i))
                mf.append(mfma(d, a_, b_, '0' if first else d))
        elif kind == 'Q':
            groups = [(0, 1, 2, 3)] if t < 45 else [(0, 1), (2, 3)]
            for grp in groups:
                for j in range(16):
                    for i in (grp if j % 2 == 0 else grp[::-1]):
                        c, b = acc2(qidx(i, j >> 1)); d = (c, b + 4 * (j & 1))
                        mf.append(mfma(d, QW(t, j), QX(t, i), '0' if first else d))
        else:
            for i in range(4):
                for j in (range(6) if i % 2 == 0 else range(5, -1, -1)):
                    if j < 4:
                        d = ('v', (AQ(i) if j < 2 else AK(i)) + 4 * (j & 1))
                        mf.append(mfma(d, FW(par, j), FX(par, i), '0' if first else d))
                    else:
                        d = ('v', AV(i >> 1, j & 1) + 4 * (i & 1))
                        mf.append(mfma(d, FX(par, i), FW(par, j), '0' if first else d))
        return mf

    def step(self, t, kind, xd=None, wd=None, rd='main', extra=None, extra2=None, req=None, pre=None, tail=None, flush=True, vm=None):
        k = self.k; par = t & 1; start = len(k.lines)
        n = self.vmwait() if vm is None else vm
        assert n <= 63
        k(f's_waitcnt vmcnt({n}) lgkmcnt(0)')
        k('s_barrier')
        for x in (pre or []): k(x)
        mf = self.mfmas(t, kind, t in (0, 32))
        small = kind == 'B'
        rs, g = self.reads(t, rd, dg=1 if small else 2) if rd else ([], 0)
        rs = rs + (self.book(par, g) if rd else [])
        if small: dm = (self.xdma(par, *xd, g0=2, dg=3) if xd else []) + (self.wdma(par, *wd, g0=14, dg=3) if wd else []) + self.rot(t, 21)
        else: dm = (self.xdma(par, *xd) if xd else []) + (self.wdma(par, *wd) if wd else []) + self.rot(t, 61)
        left = sched(k, mf, [rs, dm + (tail or []), extra or [], extra2 or []], req=req, flush=False)
        for st in (left[0], left[1], left[3]): self.emit(st)
        if flush: self.emit(left[2])
        if self.rot(t, 0) and rd:
            body = [l.strip() for l in k.lines[start:]]
            assert body.index(f'v_add_u32 v{vXr+1}, s{sB}, v{vXb+1}') < body.index(f's_mov_b32 s{sB}, s{sC}')
        if xd or wd: self.mark()
        else: self.ends.append(self.ends[-1])
        return n, left[2]

    def pack(self, src, dst, scale=None, g=0):
        it = []; c, b = src
        if c == 'a':
            for e in range(8): it.append((f'v_accvgpr_read_b32 v{vTmp + e}, a{b + e}', g))
            b = vTmp
        if scale is not None:
            for e in range(8): it.append((f'v_mul_f32 v{b + e}, s{scale}, v{b + e}', g))
        for e in range(4): it.append((f'v_cvt_pk_bf16_f32 v{dst + e}, v{b + 2*e}, v{b + 2*e + 1}', g))
        return it

    def store(self, reg, off, g=0, base=sSt):
        it = []
        if off // 4096 != self.grp:
            self.grp = off // 4096
            it.append((f's_add_u32 s{sSt2}, s{base}, {self.grp * 4096}', g))
        it.append((f'buffer_store_dwordx4 v[{reg}:{reg+3}], v{vSt}, s[{SWS}:{SWS+3}], s{sSt2} offen offset:{off % 4096} sc1', g))
        return it

    def kvprep(self):
        return [f's_lshl_b32 s{sXo}, s{sH}, 8', f's_add_u32 s{sPF}, s{sXo}, {WS_FLAG + FL_KV}', f's_lshl_b32 s{sXo}, s{sROLE}, 3', f's_add_u32 s{sXo}, s{sXo}, s{sP}',
                f's_lshl_b32 s{sXo}, s{sXo}, 2', f's_add_u32 s{sXo}, s{sXo}, s{sWV}', f's_lshl_b32 s{sXo}, s{sXo}, 2', f's_add_u32 s{sXo}, s{sXo}, s{sPF}',
                f'v_mov_b32 v{vXo+1}, 1', f'v_mov_b32 v{vXo+2}, 0', f'v_cmp_lt_u32 vcc, 31, v{vL}', f'v_and_b32 v{vXo+3}, 0x13, v{vL}', 's_nop 0',
                f'v_cndmask_b32 v{vXo+3}, v{vXo+3}, v{vL}, vcc', f'v_lshlrev_b32 v{vXo+3}, 2, v{vXo+3}']

    def flagstore(self, so):
        return f'buffer_store_dword v{vXo+1}, v{vXo+2}, s[{SWS}:{SWS+3}], s{so} offen sc1'

    def setup(self):
        k = self.k
        k('s_cmp_ge_u32 s2, 256')
        k('s_cbranch_scc1 F_end')
        self.stamp(0)
        k('s_load_dwordx16 s[4:19], s[0:1], 0')
        k('s_load_dwordx4 s[20:23], s[0:1], 64')
        k('s_load_dwordx2 s[24:25], s[0:1], 96')
        k(f's_load_dwordx2 s[{SDBG}:{SDBG+1}], s[0:1], 88')
        k('s_getpc_b64 s[30:31]')
        k(f'v_lshrrev_b32 v{vTmp+3}, 6, v0')
        k(f'v_and_b32 v{vL}, 63, v0')
        k(f'v_readfirstlane_b32 s{sWV}, v{vTmp+3}')
        k(f'v_lshlrev_b32 v{vSt}, 4, v{vL}')
        self.emit(self.code_pf(vTmp, vTmp + 1))
        k(f's_and_b32 s{sH}, s2, 7')
        k(f's_lshl_b32 s{sH}, s{sH}, 1')
        k(f's_lshr_b32 s{sT}, s2, 7')
        k(f's_add_u32 s{sH}, s{sH}, s{sT}')
        k(f's_lshr_b32 s{sP}, s2, 3')
        k(f's_and_b32 s{sP}, s{sP}, 7')
        k(f's_lshr_b32 s{sROLE}, s2, 6')
        k(f's_and_b32 s{sROLE}, s{sROLE}, 1')
        t0, t1, t2, t3 = vTmp + 4, vTmp + 5, vTmp + 6, vTmp + 7
        k(f'v_lshrrev_b32 v{t0}, 3, v{vL}')
        k(f's_lshl_b32 s{sT}, s{sWV}, 5')
        k(f'v_add_u32 v{t0}, s{sT}, v{t0}')
        k(f'v_lshrrev_b32 v{t1}, 4, v{vL}')
        k(f'v_and_b32 v{t2}, 7, v{vL}')
        k(f'v_xor_b32 v{t1}, v{t1}, v{t2}')
        k(f'v_lshlrev_b32 v{t1}, 4, v{t1}')
        k(f'v_xor_b32 v{t2}, 64, v{t1}')
        for base, stride in ((vXo, 2048), (vXo2, 896)):
            k(f'v_mul_u32_u24 v{t3}, {stride}, v{t0}')
            for i in range(4):
                k(f'v_add_u32 v{base + i}, v{t3}, v{t1 if i % 2 == 0 else t2}')
                if i: k(f'v_add_u32 v{base + i}, {i * (8 * stride - 1024)}, v{base + i}')
        k(f'v_lshrrev_b32 v{t0}, 2, v{vL}')
        k(f'v_and_b32 v{t0}, 3, v{t0}')
        k(f's_and_b32 s{sT}, s{sWV}, 1')
        k(f's_lshl_b32 s{sT}, s{sT}, 17')
        k(f's_lshr_b32 s{sT2}, s{sWV}, 1')
        k(f's_lshl_b32 s{sT2}, s{sT2}, 8')
        k(f's_add_u32 s{sT}, s{sT}, s{sT2}')
        k(f'v_lshlrev_b32 v{t1}, 13, v{t0}')
        k(f'v_add_u32 v{t1}, s{sT}, v{t1}')
        k(f'v_lshrrev_b32 v{t2}, 4, v{vL}')
        k(f'v_lshl_add_u32 v{t1}, v{t2}, 6, v{t1}')
        k(f'v_and_b32 v{t3}, 3, v{vL}')
        k(f'v_lshl_add_u32 v{vWo}, v{t3}, 4, v{t1}')
        k(f'v_add_u32 v{vWo+1}, {4*8192 - 1024}, v{vWo}')
        k(f'v_xor_b32 v{vWo+2}, 32, v{vWo}')
        k(f'v_add_u32 v{vWo+2}, {8*8192 - 2048}, v{vWo+2}')
        k(f'v_add_u32 v{vWo+3}, {4*8192 - 1024}, v{vWo+2}')
        k(f's_add_u32 s{sPF}, s{sP}, 3')
        k(f's_lshl_b32 s{sWd}, s{sWV}, 12')
        k(f's_add_u32 s{sA}, s{sWd}, {XB}')
        k(f's_add_u32 s{sB}, s{sWd}, {XB + 32768}')
        k(f's_add_u32 s{sC}, s{sWd}, {XB + 65536}')
        k(f'v_and_b32 v{t0}, 15, v{vL}')
        k(f'v_lshlrev_b32 v{t0}, 2, v{t0}')
        k(f'v_mov_b32 v{t1}, 0')
        k(f's_lshl_b32 s{sT2}, s2, 6')
        k(f's_add_u32 s{sT2}, s{sT2}, {WS_FLAG}')
        k(f's_cmp_eq_u32 s{sWV}, 0')
        k(f's_cselect_b32 s{sT2}, s{sT2}, {OOB}')
        k('s_waitcnt lgkmcnt(0)')
        srd(k, SX, 6, 2048 * 2048)
        k(f's_cmp_eq_u32 s{sROLE}, 0')
        k(f's_cselect_b32 s10, s12, s10')
        k(f's_cselect_b32 s11, s13, s11')
        srd(k, SW, 10, 1024 * 8192)
        srd(k, SWS, 24, WS_BYTES)
        k(f's_lshl_b32 s{sXo}, s{sP}, 19')
        k(f's_lshl_b32 s{sWo}, s{sH}, 9')
        k(f'buffer_store_dword v{t1}, v{t0}, s[{SWS}:{SWS+3}], s{sT2} offen sc1')
        def xd(slot, hf):
            k(f's_add_u32 s{sT}, s{sXo}, {hf * 128 * 2048}')
            k(f's_add_u32 m0, s{slot}, {hf * 16384}')
            k('s_nop 0')
            for i in range(4): k(f'buffer_load_dwordx4 v{vXo + i}, s[{SX}:{SX+3}], s{sT} offen offset:{1024*i} lds')
            if hf: k(f's_add_u32 s{sXo}, s{sXo}, 128')
        def wd(slot):
            k(f's_add_u32 m0, s{sWd}, {slot * 16384}')
            k('s_nop 0')
            for i in range(4): k(f'buffer_load_dwordx4 v{vWo + i}, s[{SW}:{SW+3}], s{sWo} offen offset:{1024*i} {self.opt.get("wflag", "")} lds')
            k(f's_add_u32 s{sWo}, s{sWo}, {32 * 8192}')
        wd(0); xd(sA, 0); xd(sA, 1); self.mark()
        k(f's_cmp_eq_u32 s{sROLE}, 0')
        k(f's_cselect_b32 s4, s4, s16')
        k(f's_cselect_b32 s5, s5, s17')
        k(f's_cselect_b32 s8, s8, s18')
        k(f's_cselect_b32 s9, s9, s19')
        k(f's_mov_b32 s{sT}, {448 * 2688}')
        k(f's_cselect_b32 s{sT}, {448 * 8192}, s{sT}')
        srd(k, SX2, 4, 2048 * 896)
        srd(k, SW2, 8, 0)
        k(f's_mov_b32 s{SW2+2}, s{sT}')
        k(f'v_and_b32 v{t0}, 15, v{vL}')
        k(f'v_lshrrev_b32 v{t1}, 4, v{vL}')
        k(f'v_lshrrev_b32 v{t2}, 1, v{t0}')
        k(f'v_xor_b32 v{t2}, v{t2}, v{t1}')
        k(f'v_lshlrev_b32 v{t2}, 4, v{t2}')
        k(f'v_lshl_add_u32 v{t2}, v{t0}, 7, v{t2}')
        k(f's_lshr_b32 s{sT}, s{sWV}, 1')
        k(f's_lshl_b32 s{sT}, s{sT}, 14')
        k(f's_sub_u32 s{sT}, s{sT}, s{sWd}')
        k(f'v_add_u32 v{vXb}, s{sT}, v{t2}')
        k(f'v_xor_b32 v{t2}, 64, v{t2}')
        k(f'v_add_u32 v{vXb+1}, s{sT}, v{t2}')
        k(f'v_lshrrev_b32 v{t2}, 2, v{t0}')
        k(f'v_lshlrev_b32 v{t2}, 6, v{t2}')
        k(f'v_and_b32 v{t3}, 3, v{t0}')
        k(f'v_lshl_add_u32 v{t2}, v{t3}, 3, v{t2}')
        k(f'v_and_b32 v{t3}, 1, v{t1}')
        k(f'v_lshl_add_u32 v{t2}, v{t3}, 5, v{t2}')
        k(f'v_mov_b32 v{vL+1}, v{t2}')
        k(f'v_lshl_add_u32 v{t2}, v{t1}, 11, v{t2}')
        k(f's_and_b32 s{sT}, s{sWV}, 1')
        k(f's_lshl_b32 s{sT}, s{sT}, 13')
        k(f'v_add_u32 v{vWr}, s{sT}, v{t2}')
        k(f'v_xor_b32 v{vWr+1}, 32, v{vWr}')
        k(f'v_add_u32 v{vXr}, s{sA}, v{vXb}')
        k(f'v_add_u32 v{vXr+1}, s{sA}, v{vXb+1}')
        wd(1); xd(sB, 0); self.mark()
        wd(2); xd(sB, 1); self.mark()
        wd(3); xd(sC, 0); self.mark()
        srd(k, SP, SDBG, 256)
        k(f'v_lshlrev_b32 v{t0}, 8, v0')
        k(f'v_mov_b32 v{t1}, 1')
        k(f's_waitcnt vmcnt({nvm(k.lines[self.ends[-4]:])})')
        k('s_barrier')
        k(f'buffer_atomic_add v{t1}, v{t0}, s[{SP}:{SP+3}], 0 offen sc1')
        self.stamp(1)
        self.emit(self.reads(-1, 'main')[0])

    def gemm1(self, kind, lbl, X2, W2):
        k = self.k
        X1 = (SX, vXo, sXo, 128 * 2048); W1 = (SW, vWo, sWo, 8192)
        for t in range(3): self.step(t, kind, xd=X1, wd=W1)
        k(f's_mov_b32 s{sCnt}, 12')
        k('.p2align 5'); k('s_nop 0'); k('s_nop 0'); k('s_nop 0'); k('s_nop 0')
        k(f'{lbl}:')
        hook = [f's_cmp_eq_u32 s{sCnt}, s{sPF}', f's_cbranch_scc1 {lbl}_pf', f'{lbl}_pfret:']
        n1, _ = self.step(3, kind, xd=X1, wd=W1, pre=hook)
        n0, _ = self.step(4, kind, xd=X1, wd=W1, tail=[(f's_sub_u32 s{sCnt}, s{sCnt}, 1', 61), (f's_cmp_lg_u32 s{sCnt}, 0', 62)])
        assert n0 == 16 and n1 == 16
        k(f's_cbranch_scc1 {lbl}')
        pl = (vTmp + 1, vTmp, SP, '0')
        sp = K(); srd(sp, SP, SDBG, 256)
        self.step(27, kind, xd=X2, wd=W1, extra=[(x.strip(), 0) for x in sp.lines] + [(f'v_mov_b32 v{vTmp}, 0', 0), (self.poll_load(*pl), 6)])
        self.step(28, kind, xd=X2, wd=W2, extra=[(x, 0) for x in self.kvprep()])
        self.step(29, kind, xd=X2, wd=W2)
        self.step(30, kind, xd=X2, wd=W2, pre=self.poll_check(*pl, 256))

    def prefetch(self, lbl, arrays):
        k = self.k
        k(f'{lbl}_pf:')
        k(f's_cmp_eq_u32 s{sPF}, 2')
        k(f's_cbranch_scc1 {lbl}_pf2')
        k(f's_lshr_b32 s{sT}, s2, 7'); k(f's_lshl_b32 s{sT}, s{sT}, 6'); k(f's_and_b32 s{sT2}, s2, 63'); k(f's_add_u32 s{sT}, s{sT}, s{sT2}')
        k(f's_lshl_b32 s{sT}, s{sT}, 2'); k(f's_add_u32 s{sT}, s{sT}, s{sWV}')
        for n, (ptr, nbytes) in enumerate(arrays):
            per = -(-nbytes // (128 * 512))
            srd(k, SP, ptr, nbytes)
            k(f's_mul_i32 s{sT2}, s{sT}, {per * 128}')
            k(f'v_min_u32 v{vTmp}, {per - 1}, v{vL}')
            k(f'v_lshlrev_b32 v{vTmp}, 7, v{vTmp}')
            k(f'buffer_load_dword v{vTmp + 1 + n}, v{vTmp}, s[{SP}:{SP+3}], s{sT2} offen')
        k(f's_mov_b32 s{sPF}, 2')
        k(f's_branch {lbl}_pfret')
        k(f'{lbl}_pf2:')
        self.emit(self.code_pf(vTmp, vTmp + 6))
        k(f's_branch {lbl}_pfret')

    def kv_base(self, wcshift, add):
        k = self.k
        k(f's_lshl_b32 s{sSt}, s{sH}, 21')
        k(f's_lshl_b32 s{sT}, s{sP}, 18')
        k(f's_add_u32 s{sSt}, s{sSt}, s{sT}')
        k(f's_lshr_b32 s{sT}, s{sWV}, 1')
        k(f's_lshl_b32 s{sT}, s{sT}, 17')
        k(f's_add_u32 s{sSt}, s{sSt}, s{sT}')
        k(f's_and_b32 s{sT}, s{sWV}, 1')
        k(f's_lshl_b32 s{sT}, s{sT}, {wcshift}')
        k(f's_add_u32 s{sSt}, s{sSt}, s{sT}')
        if add: k(f's_add_u32 s{sSt}, s{sSt}, {add}')

    def role_vq(self):
        k = self.k
        X2 = (SX2, vXo2, sX2o, f's{sXd}'); W2 = (SW2, vWo, sW2o, 8192)
        k(f's_lshl_b32 s{sW2o}, s{sH}, 9')
        k(f's_sub_u32 s{sT}, 15, s{sP}')
        k(f's_mul_i32 s{sX2o}, s{sT}, {128 * 896}')
        k(f's_mul_i32 s{sXd}, s{sP}, {128 * 896}')
        k(f's_sub_u32 s{sXd}, s{sXd}, s{sX2o}')
        self.kv_base(13, WS_KV + 16384)
        self.gemm1('V', 'F_vloop', X2, W2)
        voff = lambda p: pair_pos('V', p)[0] * 32768 + pair_pos('V', p)[1] * 1024
        self.grp = None
        pre = [f's_lshr_b32 s{sT}, s{sWV}, 1', f's_lshl_b32 s{sT}, s{sT}, 14', f's_lshl_b32 s{sSt2}, s{sWV}, 12', f's_sub_u32 s{sT}, s{sSt2}, s{sT}',
               f'v_add_u32 v{vXb}, s{sT}, v{vXb}', f'v_add_u32 v{vXb+1}, s{sT}, v{vXb+1}', f'v_add_u32 v{vXr}, s{sT}, v{vXr}',
               f'v_and_b32 v{vWr}, 0x1fff, v{vWr}', f'v_and_b32 v{vWr+1}, 0x1fff, v{vWr+1}']
        ex = []; cnt = []
        for p in range(32):
            ex += self.pack(acc1(p), 32 + 4 * p, g=2 * p + 6)
            if p < 8: ex += self.store(32 + 4 * p, voff(p), g=2 * p + 6)
            cnt.append(len(ex))
        _, left = self.step(31, 'V', xd=X2, wd=W2, rd='q', extra=ex, pre=pre, flush=False)
        done = len(ex) - len(left)
        self.stamp(2)
        req = {}
        for jp in range(8):
            top = max(qidx(i, jp) for i in range(4))
            need_ = cnt[7] if top < 16 else cnt[top]
            if need_ > done: req[8 * jp] = [(2, need_ - done)]
        self.step(32, 'Q', xd=X2, wd=W2, rd='q', extra=[(x, 3) for x, _ in left], req=req)
        e0, l0 = 33, int(self.opt.get('late', 38))
        early = {t: list(range(8 + 5 * (t - e0), min(32, 13 + 5 * (t - e0)))) for t in range(e0, e0 + 5)}
        late = {t: list(range(8 + 4 * (t - l0), 12 + 4 * (t - l0))) for t in range(l0, l0 + 6)}
        pl = (vTmp, vXo + 3, SWS, f's{sPF}')
        for t in range(33, 45):
            ex = []; ex2 = []; pre = None; vm = None
            if t == 33:
                pre = [f's_and_b32 s{sStL}, s{sP}, 3', f's_cselect_b32 s{sStL}, s{sSt}, {OOB}', f's_cselect_b32 s{sSt}, {OOB}, s{sSt}',
                       f's_cselect_b32 s{sWo}, {OOB}, s{sXo}']
            if t == 42: ex.append((self.poll_load(*pl), 0))
            for lst, base in ((early, sSt), (late, sStL)):
                self.grp = None
                for q, n in enumerate(lst.get(t, [])): ex += self.store(32 + 4 * n, voff(n), g=6 + 10 * q, base=base)
            if t == e0 + 7:
                assert elast < self.ends[-3]
                ex = [(self.flagstore(sWo), 0)] + ex
            if t == 42: ex2 = [(x, 2) for x in self.att_setup() + self.code_pf(vTmp + 4, vTmp + 5)]
            if t == 43:
                vm = min(self.vmwait(), nvm(k.lines[ppos:])); pre = self.poll_check(*pl, 1)
                ex2 = self.spread(self.k0_dma() + self.unit_dma(1), 2, 5)
            if t == 44: ex2 = self.spread(self.unit_dma(2), 3, 7)
            self.step(t, 'Q', xd=X2 if t <= 40 else None, wd=W2 if t <= 41 else None, rd='q', extra=ex, extra2=ex2, pre=pre, vm=vm)
            if t == e0 + 4: elast = self.last_store()
            if t == 42: ppos = k.lines.index('    ' + self.poll_load(*pl)) + 1
            if t == 43: u0 = len(k.lines)
            if t in (38, 43, 44): self.stamp({38: 4, 43: 14, 44: 15}[t])
        assert l0 + 5 <= 43
        pre = [f's_lshl_b32 s{sSt}, s{sPO}, 14', f's_add_u32 s{sSt}, s{sSt}, {WS_Q}'] + self.ring_rd()
        ex = []; self.grp = None
        for jp in range(8):
            for i in range(2):
                b = acc2(qidx(i, jp))[1]
                ex += self.pack(('v', b), b, g=4 * jp + 8) + self.store(b, i * 8192 + jp * 1024, g=4 * jp + 8)
        self.step(45, 'Q', rd=None, extra=[(self.flagstore(sXo), 0)] + ex, pre=pre, vm=nvm(k.lines[u0:]))
        q0 = len(k.lines)
        self.emit(self.kreads())
        body = []
        for jp in (6, 7, 0, 1, 2, 3, 4, 5):
            for i in range(2, 4): body += [x for x, _ in self.pack(acc2(qidx(i, jp)), 64 + 32 * (i - 2) + 4 * jp)]
        for jp in range(8):
            for i in range(2):
                b = acc2(qidx(i, jp))[1]
                body += [f'v_accvgpr_write_b32 a{32*i + 4*jp + e}, v{b + e}' for e in range(4)]
        sched(k, body, [self.spread(self.unit_dma(3) + self.ring_start(), 40, 24)], vmax=1, tmax=1)
        k(f's_waitcnt vmcnt({nvm(k.lines[q0:])})')
        k(self.flagstore(sFl))
        self.stamp(3)

    def spread(self, items, g0, dg):
        out = []; g = g0
        for x in items:
            x = x[0] if isinstance(x, tuple) else x
            if x.startswith('buffer'): out.append((x, g)); g += dg
            else: out.append((x, max(0, g - 2)))
        return out

    def role_kb(self):
        k = self.k
        t0, t1, t2, t3 = vTmp + 4, vTmp + 5, vTmp + 6, vTmp + 7
        X2 = (SX2, vXo2, sX2o, 128 * 896); W2 = (SW2, vWo2, sW2o, 2688, 2)
        k(f's_mul_i32 s{sX2o}, s{sP}, {256 * 896}')
        k(f's_mul_i32 s{sW2o}, s{sH}, 56')
        k(f's_mov_b32 s{sScale}, {f32(LOG2E / 16)}')
        self.kv_base(12, WS_KV)
        k(f'v_lshrrev_b32 v{t0}, 2, v{vL}')
        k(f'v_mul_u32_u24 v{t0}, 2688, v{t0}')
        k(f's_mul_i32 s{sT}, s{sWV}, 896')
        k(f's_cmp_eq_u32 s{sWV}, 3')
        k(f's_cselect_b32 s{sT}, {OOB}, s{sT}')
        k(f'v_add_u32 v{t0}, s{sT}, v{t0}')
        k(f'v_lshrrev_b32 v{t1}, 5, v{vL}')
        k(f'v_lshlrev_b32 v{t1}, 1, v{t1}')
        k(f'v_and_b32 v{t2}, 3, v{vL}')
        k(f'v_xor_b32 v{t1}, v{t1}, v{t2}')
        k(f'v_lshl_add_u32 v{vWo2}, v{t1}, 4, v{t0}')
        k(f'v_add_u32 v{vWo2+1}, {16 * 2688 - 1024}, v{vWo2}')
        srd(k, SP, 20, 16 * 28 * 28 * 2)
        k(f'v_and_b32 v{t0}, 15, v{vL}')
        k(f'v_lshrrev_b32 v{t1}, 4, v{vL}')
        k(f'v_cmp_eq_u32 s[{sM3}:{sM3+1}], 3, v{t1}')
        k(f'v_cmp_eq_u32 s[{sM28}:{sM28+1}], 12, v{t0}')
        k(f'v_cmp_lt_u32 vcc, 11, v{t0}')
        k(f'v_mul_u32_u24 v{t1}, 224, v{t1}')
        k(f'v_lshl_add_u32 v{t0}, v{t0}, 1, v{t1}')
        k(f'v_mov_b32 v{vTmp+3}, {OOB}')
        k(f'v_cndmask_b32 v{t1}, v{t0}, v{vTmp+3}, vcc')
        k(f'v_cndmask_b32 v{t2}, v{t0}, v{vTmp+3}, s[{sM3}:{sM3+1}]')
        k(f'v_cndmask_b32 v{t3}, v{t1}, v{vTmp+3}, s[{sM3}:{sM3+1}]')
        k(f's_mul_i32 s{sT}, s{sH}, 1568')
        for fs in range(2):
            for e in range(8):
                v = [[t0, t2], [t1, t3]][fs][e >> 2]
                k(f'buffer_load_ushort a{160 + 8*fs + e}, v{v}, s[{SP}:{SP+3}], s{sT} offen offset:{(e >> 2)*896 + (e & 3)*56 + fs*32}')
        self.gemm1('K', 'F_kloop', X2, W2)
        koff = lambda p: (pair_pos('K', p)[0] >> 1) * 32768 + (pair_pos('K', p)[0] & 1) * 8192 + pair_pos('K', p)[1] * 1024
        pre = [f's_and_b32 s{sT}, s{sWV}, 1', f's_lshl_b32 s{sT}, s{sT}, 13',
               f'v_add_u32 v{vXb}, s{sT}, v{vXb}', f'v_add_u32 v{vXb+1}, s{sT}, v{vXb+1}', f'v_add_u32 v{vXr}, s{sT}, v{vXr}',
               f'v_lshrrev_b32 v{t1}, 4, v{vL}', f'v_lshl_add_u32 v{vWr}, v{t1}, 9, v{vL+1}', f'v_xor_b32 v{vWr+1}, 32, v{vWr}']
        ex = []; self.grp = None; nxt = 0
        for p in range(32):
            ex += self.pack(acc1(p), 32 + 4 * p, scale=sScale, g=2 * p + 6)
            if p % 2 == 1 and p >= 8: ex += self.store(32 + 4 * nxt, koff(nxt), g=2 * p + 6); nxt += 1
        self.step(31, 'K', xd=X2, wd=W2, rd='b', extra=ex, pre=pre)
        self.stamp(2)
        tflag = None; per = int(self.opt.get('spsb', 4))
        pl = (vTmp, vXo + 3, SWS, f's{sPF}')
        for t in range(32, 46):
            ex = []
            for q in range(per):
                if nxt < 32:
                    ex += self.store(32 + 4 * nxt, koff(nxt), g=1 + (12 // per) * q); nxt += 1
                    if nxt == 32: tflag = t + 4
            if t == tflag:
                assert self.last_store() < self.ends[-3]
                ex = [(self.flagstore(sXo), 0)]
            if t == 42: ex += [(x, 4) for x in self.code_pf(vTmp + 4, vTmp + 5)]
            if t == 44: ex += [(x, 4) for x in self.att_setup()]
            if t == 45: ex += [(self.poll_load(*pl), 0)]
            self.step(t, 'B', xd=X2 if t <= 40 else None, wd=W2 if t <= 41 else None, rd='b' if t < 45 else None, extra=ex)
            if t == tflag: self.stamp(15)
        assert tflag <= 44
        self.stamp(4)
        self.features(pl)

    def features(self, pl):
        k = self.k
        t0, t1, t2, t3 = vTmp + 4, vTmp + 5, vTmp + 6, vTmp + 7
        WP = 144; BF = 96
        for n in range(16): k(f'v_accvgpr_read_b32 v{128 + n}, a{160 + n}')
        for n in range(8): k(f'v_lshl_or_b32 v{WP + n}, v{128 + 2*n + 1}, 16, v{128 + 2*n}')
        for n in range(8): self.emit(self.pack(('v', 160 + 8 * n), BF + 4 * n))
        k('s_nop 1')
        T = lambda n: 32 + 8 * n
        for n in range(8):
            for fs in range(2): k(mfma(('v', T(n) + 4 * fs), ('v', WP + 4 * fs), ('v', BF + 4 * n), '0'))
        k(f'v_mov_b32 v{t3}, 0x3f803f80')
        k(f's_lshl_b32 s{sT}, s{sWV}, 12')
        k(f's_add_u32 s{sT}, s{sT}, {VBO}')
        k(f'v_add_u32 v{t2}, s{sT}, v{vSt}')
        for ip in range(2):
            for j in range(2):
                b = AV(ip, j)
                self.emit(self.pack(('v', b), b))
                if j == 1:
                    for e in range(4): k(f'v_cndmask_b32 v{b + e}, v{b + e}, v{t3}, s[{sM28}:{sM28+1}]')
                k(f'ds_write_b128 v{t2}, v[{b}:{b+3}] offset:{ip*2048 + j*1024}')
        k('s_waitcnt vmcnt(0)')
        self.emit(self.poll_check(*pl, 1))
        self.stamp(5)
        MX, MN, TA = 96, 104, 112
        E = lambda n: 160 + 8 * n
        M3 = f's[{sM3}:{sM3+1}]'
        body = K()
        def each(f):
            for n in range(8): body(f(n))
        def allred(op, X, Tm):
            for sw in ('v_permlane32_swap_b32', 'v_permlane16_swap_b32'):
                each(lambda n: f'v_mov_b32 v{Tm+n}, v{X+n}')
                each(lambda n: f'{sw} v{X+n}, v{Tm+n}')
                each(lambda n: f'{op} v{X+n}, v{X+n}, v{Tm+n}')
        for nm, X in (('max', MX), ('min', MN)):
            each(lambda n: f'v_{nm}3_f32 v{X+n}, v{T(n)}, v{T(n)+1}, v{T(n)+2}')
            each(lambda n: f'v_{nm}3_f32 v{TA+n}, v{T(n)+4}, v{T(n)+5}, v{T(n)+6}')
            each(lambda n: f'v_{nm}_f32 v{TA+n}, v{TA+n}, v{T(n)+7}')
            each(lambda n: f'v_cndmask_b32 v{TA+n}, v{TA+n}, v{X+n}, {M3}')
            each(lambda n: f'v_{nm}3_f32 v{X+n}, v{X+n}, v{TA+n}, v{T(n)+3}')
            allred(f'v_{nm}_f32', X, TA)
        body(f's_mov_b32 s{sScale}, {f32(LOG2E)}')
        each(lambda n: f'v_mul_f32 v{MX+n}, s{sScale}, v{MX+n}')
        each(lambda n: f'v_mul_f32 v{MN+n}, s{sScale}, v{MN+n}')
        for n in range(8):
            for e in range(8): body(f'v_fma_f32 v{E(n)+e}, -v{T(n)+e}, s{sScale}, v{MN+n}')
            for e in range(8): body(f'v_fma_f32 v{T(n)+e}, v{T(n)+e}, s{sScale}, -v{MX+n}')
            for e in range(8): body(f'v_exp_f32 v{E(n)+e}, v{E(n)+e}')
            for e in range(8): body(f'v_exp_f32 v{T(n)+e}, v{T(n)+e}')
            for e in range(4, 8): body(f'v_cndmask_b32 v{E(n)+e}, v{E(n)+e}, 0, {M3}')
            for e in range(4, 8): body(f'v_cndmask_b32 v{T(n)+e}, v{T(n)+e}, 0, {M3}')
        fill = self.spread(self.k0_dma() + self.unit_dma(1) + self.unit_dma(2) + self.unit_dma(3) + self.ring_start() + self.ring_rd(), 2, 14)
        sched(k, [l.strip() for l in body.lines], [fill], vmax=1, tmax=1)
        f0 = len(k.lines)
        body = k
        for X, Y in ((MX, T), (MN, E)):
            each(lambda n: f'v_add_f32 v{X+n}, v{Y(n)}, v{Y(n)+1}')
            for e in range(2, 8): each(lambda n: f'v_add_f32 v{X+n}, v{X+n}, v{Y(n)+e}')
            allred('v_add_f32', X, TA)
            each(lambda n: f'v_rcp_f32 v{X+n}, v{X+n}')
        k(f'v_and_b32 v{t0}, 15, v{vL}')
        k(f'v_bfe_u32 v{t1}, v{vL}, 1, 2')
        k(f'v_lshlrev_b32 v{t1}, 5, v{t1}')
        k(f'v_lshl_add_u32 v{t0}, v{t0}, 7, v{t1}')
        k(f'v_lshrrev_b32 v{t1}, 4, v{vL}')
        k(f'v_lshl_add_u32 v{t0}, v{t1}, 3, v{t0}')
        k(f'v_add_u32 v{t0}, s{sW8}, v{t0}')
        for un in range(1, 4): k(f'v_xor_b32 v{t0 + un}, {32 * un}, v{t0}')
        k(f's_lshl_b32 s{sSt}, s{sP}, 19')
        k(f's_lshl_b32 s{sT}, s{sWV}, 17')
        k(f's_add_u32 s{sSt}, s{sSt}, s{sT}')
        k(f's_lshl_b32 s{sT}, s{sH}, 11')
        k(f's_add_u32 s{sSt}, s{sSt}, s{sT}')
        k(f's_add_u32 s{sSt}, s{sSt}, {WS_PHIQ}')
        self.grp = None
        for n in (4, 5, 6, 7, 0, 1, 2, 3):
            for sg, (X, Y) in enumerate(((MX, T), (MN, E))):
                for e in range(8): k(f'v_mul_f32 v{Y(n)+e}, v{X+n}, v{Y(n)+e}')
                self.emit(self.pack(('v', Y(n)), Y(n)))
                if n >= 4:
                    for fs in range(2): k(f'ds_write_b64 v{t0 + 2*sg + fs}, v[{Y(n)+2*fs}:{Y(n)+2*fs+1}] offset:{(n-4)*2048}')
                else: self.emit(self.store(Y(n), n * 32768 + sg * 1024))
            if n == 7:
                k(f'v_lshrrev_b32 v{vTmp}, 2, v{vL}')
                k(f'v_bfe_u32 v{vTmp+2}, v{vL}, 3, 2')
                k(f'v_xor_b32 v{vTmp+2}, s{sWV}, v{vTmp+2}')
                k(f'v_lshlrev_b32 v{vTmp+2}, 5, v{vTmp+2}')
                k(f'v_lshl_add_u32 v{vTmp}, v{vTmp}, 7, v{vTmp+2}')
                k(f'v_and_b32 v{vTmp+2}, 3, v{vL}')
                k(f'v_lshl_add_u32 v{vTmp}, v{vTmp+2}, 3, v{vTmp}')
                k(f'v_add_u32 v{vTmp+2}, {VBO}, v{vSt}')
                k(f's_waitcnt vmcnt({nvm(k.lines[f0:])}) lgkmcnt(0)')
                k('s_barrier')
                ql = (vTmp + 3, vXo + 2, SWS, f's{sXo}')
                k(f's_lshl_b32 s{sXo}, s{sPO}, 2')
                k(f's_add_u32 s{sXo}, s{sXo}, {WS_FLAG + FL_Q}')
                for kb in range(8):
                    for rho in range(2): k(f'ds_read_b64_tr_b16 a[{128 + 4*kb + 2*rho}:{129 + 4*kb + 2*rho}], v{vTmp} offset:{kb*4096 + rho*2048}')
                    for j in range(2): k(f'ds_read_b128 a[{176 + 8*kb + 4*j}:{179 + 8*kb + 4*j}], v{vTmp+2} offset:{kb*2048 + j*1024}')
                self.emit(self.kreads())
        k(f's_lshl_b32 s{sSt}, s{sH}, 16')
        k(f's_lshl_b32 s{sT}, s{sP}, 13')
        k(f's_add_u32 s{sSt}, s{sSt}, s{sT}')
        k(f's_lshl_b32 s{sT}, s{sWV}, 10')
        k(f's_add_u32 s{sSt}, s{sSt}, s{sT}')
        k(f's_add_u32 s{sSt}, s{sSt}, {WS_KVP}')
        k(self.poll_load(*ql))
        k('s_waitcnt lgkmcnt(0)')
        k('s_barrier')
        for kb in range(8):
            for j in range(2):
                d = ('v', 112 + 4 * j)
                k(mfma(d, ('a', 128 + 4 * kb), ('a', 176 + 8 * kb + 4 * j), '0' if kb == 0 else d))
        k('s_nop 7')
        self.grp = None
        for j in range(2): self.emit(self.store(112 + 4 * j, j * 4096))
        self.stamp(6)
        k('s_waitcnt vmcnt(2)')
        self.emit(self.poll_check(*ql, 1))
        self.stamp(14)
        k(f's_lshl_b32 s{sSo}, s{sPO}, 14')
        k(f's_add_u32 s{sSo}, s{sSo}, {WS_Q}')
        self.gload('a', 0, sSo)
        k('s_waitcnt vmcnt(0)')
        self.stamp(3)
```

```python
from fz_regs import *

BIAS = 24.0
vRd, vL4, vZ, vNinf, v1 = 1, 2, 3, 4, 5
vOne, vLse = 8, 12
vS, vP, vNM, vLs, vT = 16, 32, 40, 48, 56
vB, vO = 64, 128
aQ, aK, aV = 0, 64, 128
S = lambda kt, u: vS + 8 * u + 4 * kt
O = lambda dt, u: vO + 64 * u + 4 * dt

class P2:
    def att_setup(self):
        split = int(self.opt.get('split', 33))
        L = [f's_lshl_b32 s{sHB}, s{sH}, 21', f's_lshl_b32 s{sW8}, s{sWV}, 13', f's_mov_b32 s{sOOB}, {OOB}', f's_mov_b32 s{sBig}, {f32(2.0 ** 100)}',
             f's_sub_u32 s{sQT}, 15, s{sP}', f's_lshl_b32 s{sT}, s{sQT}, 2', f's_min_u32 s{sT2}, s{sT}, {split}',
             f's_lshl_b32 s{sPO}, s{sH}, 3', f's_add_u32 s{sPO}, s{sPO}, s{sP}', f's_lshl_b32 s{sPO}, s{sPO}, 2', f's_add_u32 s{sPO}, s{sPO}, s{sWV}',
             f's_lshl_b32 s{sFl}, s{sPO}, 2']
        if self.role == 'A':
            L += [f's_mov_b32 s{sN}, s{sT2}', f's_mov_b32 s{sT0}, 0', f's_mov_b32 s{sDiag}, 0', f's_mov_b32 s{sMode}, 2', f's_mov_b32 s{sNext}, 0',
                  f's_mov_b32 s{sFj}, s{sOOB}', f's_mov_b32 s{sFc2}, 64', f's_add_u32 s{sFl}, s{sFl}, {WS_FLAG + FL_B1}',
                  f's_mov_b32 s{sHen}, 1']
        else:
            L += [f's_add_u32 s{sN}, s{sT}, 4', f's_sub_u32 s{sN}, s{sN}, s{sT2}', f's_mov_b32 s{sT0}, s{sT2}', f's_mov_b32 s{sDiag}, 1',
                  f's_mov_b32 s{sMode}, 1', f's_mov_b32 s{sNext}, 1', f's_lshl_b32 s{sFc2}, s{sP}, 2', f's_add_u32 s{sFc2}, s{sFc2}, 4',
                  f's_add_u32 s{sFj}, s{sHB}, s{sW8}', f's_add_u32 s{sFj}, s{sFj}, 16384', f's_lshr_b32 s{sT}, s{sWV}, 1', f's_lshl_b32 s{sT}, s{sT}, 15',
                  f's_sub_u32 s{sFj}, s{sFj}, s{sT}', f's_add_u32 s{sFl}, s{sFl}, {WS_FLAG + FL_Q}', f's_cmp_le_u32 s{sP}, 5\ns_cselect_b32 s{sHen}, 1, 0']
        L += [f's_lshr_b32 s{sT}, s{sWV}, 1', f's_sub_u32 s{sFc}, s{sN}, s{sT}', f's_lshl_b32 s{sF}, s{sT0}, 15', f's_add_u32 s{sF}, s{sF}, s{sHB}']
        return L

    def k0_dma(self):
        return [f's_lshr_b32 s{sT}, s{sW8}, 1', f's_add_u32 s{sT2}, s{sF}, s{sT}', f's_add_u32 m0, s{sT}, 131072'] + \
               [f'buffer_load_dwordx4 v{vL16}, s[{SWS}:{SWS+3}], s{sT2} offen offset:{1024*i} sc1 lds' for i in range(4)] + \
               [f's_add_u32 s{sF}, s{sF}, s{sW8}', f's_add_u32 s{sF}, s{sF}, 16384']

    def unit_dma(self, slot):
        return [f's_add_u32 s{sDs}, s{sW8}, {32768 * slot}'] + [x for x, _ in self.dma([1] * 8) + self.adv(0)[:2]] + ['\n'.join(x for x, _ in self.adv(0)[2:])]

    def ring_start(self):
        return [f's_mov_b32 s{sDs}, s{sW8}', f's_mov_b32 s{sRs}, 32768']

    def ring_rd(self): return [f'v_add_u32 v{vRd}, {131072 - 16384}, v{vL16}']

    def qk(self, u, c0):
        return [mfma(('v', S(kt, u)), ('a', aK + 32 * kt + 4 * ds), ('a', aQ + 32 * u + 4 * ds),
                     (c0 if c0 else ('v', vNM + 4 * u)) if ds == 0 else ('v', S(kt, u)))
                for ds in range(8) for kt in range(2)]

    def pv(self, u, first):
        m = [mfma(('v', O(dt, u)), ('a', aV + 4 * dt), ('v', vP + 4 * u), '0' if first else ('v', O(dt, u))) for dt in range(16)]
        return m + [mfma(('v', vLs + 4 * u), ('v', vOne), ('v', vP + 4 * u), '0' if first else ('v', vLs + 4 * u))]

    def soft(self, u, g):
        b = vS + 8 * u
        return [(f'v_exp_f32 v{b + e}, v{b + e}', g) for e in range(8)] + \
               [(f'v_cvt_pk_bf16_f32 v{vP + 4*u + e}, v{b + 2*e}, v{b + 2*e + 1}', g) for e in range(4)]

    def vreads(self): return [f'ds_read_b128 a[{aV + 4*n}:{aV + 4*n + 3}], v{vRd} offset:{1024*n}' for n in range(16)]
    def kreads(self):
        return [f'ds_read_b128 a[{aK + 32*kt + 4*ds}:{aK + 32*kt + 4*ds + 3}], v{vRd} offset:{16384 + 8192*kt + 1024*ds}' for ds in range(8) for kt in range(2)]

    def dma(self, gaps):
        it = []
        for grp in range(2):
            g0 = gaps[4 * grp]
            if grp == 0: it.append((f's_mov_b32 m0, s{sDs}', g0 - 1)); so = sF
            else:
                it.append((f's_add_u32 s{sT2}, s{sF}, 4096', g0 - 1)); it.append((f's_add_u32 m0, s{sDs}, 4096', g0 - 1)); so = sT2
            for i in range(4):
                it.append((f'buffer_load_dwordx4 v{vL16}, s[{SWS}:{SWS+3}], s{so} offen offset:{1024*i} sc1 lds', gaps[4 * grp + i]))
        return it

    def adv(self, g):
        return [(t, g) for t in (f's_add_u32 s{sF}, s{sF}, 32768', f's_sub_u32 s{sFc}, s{sFc}, 1', f's_cmp_eq_u32 s{sFc}, 0',
                f's_cselect_b32 s{sF}, s{sFj}, s{sF}', f's_cselect_b32 s{sFc}, s{sFc2}, s{sFc}', f's_cselect_b32 s{sFj}, s{sOOB}, s{sFj}')]

    def slot_s(self, g):
        return [(t, g) for t in (f's_add_u32 s{sDs}, s{sRs}, s{sW8}', f's_add_u32 s{sRs}, s{sRs}, 32768', f's_and_b32 s{sRs}, s{sRs}, 0x1ffff')]

    def ahead(self):
        k = self.k
        k('s_waitcnt vmcnt(16) lgkmcnt(0)')
        k(f'v_add_u32 v{vRd}, s{sRs}, v{vL16}')
        k('s_barrier')

    def mask(self):
        k = self.k
        for u in range(2):
            for r in range(4): k(f'v_cndmask_b32 v{S(u, u) + r}, v{S(u, u) + r}, v{vNinf}, s[{sMK + 2*r}:{sMK + 2*r + 1}]')
        for r in range(4): k(f'v_mov_b32 v{S(1, 0) + r}, v{vNinf}')

    def rowmax(self, dst):
        k = self.k
        for u in range(2): k(f'v_max3_f32 v{dst + u}, v{vS + 8*u}, v{vS + 8*u + 1}, v{vS + 8*u + 2}')
        for e in (3, 5):
            for u in range(2): k(f'v_max3_f32 v{dst + u}, v{dst + u}, v{vS + 8*u + e}, v{vS + 8*u + e + 1}')
        for u in range(2): k(f'v_max_f32 v{dst + u}, v{dst + u}, v{vS + 8*u + 7}')

    def setmax(self, m):
        k = self.k
        for sw in ('v_permlane32_swap_b32', 'v_permlane16_swap_b32'):
            for u in range(2): k(f'v_mov_b32 v{m + 2 + u}, v{m + u}')
            k('s_nop 1')
            for u in range(2): k(f'{sw} v{m + u}, v{m + 2 + u}')
            for u in range(2): k(f'v_max_f32 v{m + u}, v{m + u}, v{m + 2 + u}')
        for u in range(2):
            for r in range(4): k(f'v_sub_f32 v{vNM + 4*u + r}, {f32(-BIAS)}, v{m + u}')

    def tail_streams(self):
        kg = [32, 33, 44, 45, 46, 47, 48] + list(range(49, 58))
        return [(t, g - 32) for t, g in zip(self.kreads(), kg)]

    def it_mid(self):
        k = self.k
        self.ahead()
        mf = self.qk(0, None) + self.qk(1, None) + self.pv(0, False) + self.pv(1, False)
        k(mf[0])
        k(f's_cmp_eq_u32 s{sCnt}, s{sHook}')
        k('s_cbranch_scc1 F_hook')
        k('F_hookret:')
        mf = mf[1:]
        rd = [(t, n) for n, t in enumerate(self.vreads())] + [('s_waitcnt lgkmcnt(0)', 29)] + [(t, g + 31) for t, g in self.tail_streams()]
        sm = self.soft(0, 17) + self.soft(1, 33)
        dm = self.dma([2, 9, 16, 28, 33, 45, 53, 59]) + self.adv(59) + self.slot_s(61) + \
            [(f's_sub_u32 s{sCnt}, s{sCnt}, 1', 62), (f's_cmp_gt_u32 s{sCnt}, s{sDiag}', 62)]
        sched(k, mf, [rd, sm, dm], req={31: [(0, 17), (1, 12)], 48: [(1, 24)]})

    def it_special(self, first):
        k = self.k
        self.ahead()
        if first: k('F_first:')
        mf = self.qk(0, '0' if first else None) + self.qk(1, '0' if first else None)
        rd = [(t, 2 * n) for n, t in enumerate(self.vreads())]
        sched(k, mf, [rd, self.dma([1, 5, 9, 13, 17, 21, 25, 29])])
        self.emit(self.adv(0) + self.slot_s(0))
        k(f's_sub_u32 s{sCnt}, s{sCnt}, 1')
        if first:
            k(f's_cmp_ge_u32 s{sCnt}, s{sDiag}')
            k('s_cbranch_scc1 F_nomask')
            self.mask()
            k('F_nomask:')
            self.rowmax(vT); self.setmax(vT)
            for u in range(2):
                for e in range(8): k(f'v_add_f32 v{vS + 8*u + e}, v{vS + 8*u + e}, v{vNM + 4*u}')
        else:
            self.mask()
        self.emit(self.soft(0, 0))
        k('s_waitcnt lgkmcnt(0)')
        k('s_nop 0')
        mf = self.pv(0, first) + self.pv(1, first)
        sched(k, mf, [self.tail_streams(), self.soft(1, 2)], req={17: [(1, 12)]})
        if first:
            k('s_waitcnt vmcnt(8)')
            k(f'buffer_store_dword v{v1}, v{vZ}, s[{SWS}:{SWS+3}], s{sFl} offen sc1')

    def it_idle(self, lbl):
        k = self.k
        self.ahead()
        self.emit(self.dma([1] * 8) + self.adv(0) + self.slot_s(0))
        k(f's_sub_u32 s{sRem}, s{sRem}, 1')
        k(f's_cmp_lg_u32 s{sRem}, 0')
        k(f's_cbranch_scc1 {lbl}')
        self.emit(self.kreads())
        k(f'{lbl}:')

    def out_store(self, ustride, merge):
        k = self.k
        for u in range(2):
            for ds in range(8):
                b = O(2 * ds, u)
                for e in range(0, 8, 2):
                    k(f'v_pk_mul_f32 v[{b+e}:{b+e+1}], v[{b+e}:{b+e+1}], v[{vT + 2*u}:{vT + 2*u + 1}]')
                if merge:
                    for e in range(4):
                        src = vB + 32 * u + 4 * ds + e
                        k(f'v_lshlrev_b32 v{vS + 2*e}, 16, v{src}')
                        k(f'v_and_b32 v{vS + 2*e + 1}, 0xffff0000, v{src}')
                    for e in range(0, 8, 2):
                        k(f'v_pk_fma_f32 v[{b+e}:{b+e+1}], v[{vS+e}:{vS+e+1}], v[{vT + 4 + 2*u}:{vT + 5 + 2*u}], v[{b+e}:{b+e+1}]')
                for e in range(4): k(f'v_cvt_pk_bf16_f32 v{b + e}, v{b + 2*e}, v{b + 2*e + 1}')
                if ds % 4 == 0: k(f's_add_u32 s{sT2}, s{sSo}, {ustride(u, ds)}')
                k(f'buffer_store_dwordx4 v[{b}:{b+3}], v{vL16}, s[{SWS}:{SWS+3}], s{sT2} offen offset:{1024 * (ds % 4)} sc1')

    def ctx_base(self):
        k = self.k
        k(f's_lshl_b32 s{sSo}, s{sQT}, 20')
        k(f's_lshl_b32 s{sT}, s{sWV}, 18')
        k(f's_add_u32 s{sSo}, s{sSo}, s{sT}')
        k(f's_lshl_b32 s{sT}, s{sH}, 13')
        k(f's_add_u32 s{sSo}, s{sSo}, s{sT}')
        k(f's_add_u32 s{sSo}, s{sSo}, {WS_CTX}')

    def slow(self):
        k = self.k
        k('F_slow:')
        k('s_waitcnt vmcnt(0) lgkmcnt(0)')
        for ps in range(2):
            k(f's_lshl_b32 s{sSo}, s{sT0}, 15')
            k(f's_add_u32 s{sSo}, s{sSo}, s{sHB}')
            k(f's_mov_b32 s{sCnt}, s{sNW}')
            if ps == 0:
                for u in range(2): k(f'v_mov_b32 v{vT + 4 + u}, v{vNinf}')
            else:
                for r in range(128): k(f'v_mov_b32 v{vO + r}, 0')
                for r in range(8): k(f'v_mov_b32 v{vLs + r}, 0')
            k(f'F_slow{ps}:')
            self.gload('a', aK, sSo, n=16 * (1 + ps))
            k(f's_add_u32 s{sSo}, s{sSo}, 32768')
            k(f's_sub_u32 s{sCnt}, s{sCnt}, 1')
            k('s_waitcnt vmcnt(0)')
            for m in self.qk(0, None if ps else '0') + self.qk(1, None if ps else '0'): k(m)
            k('s_nop 7')
            k(f's_cmp_ge_u32 s{sCnt}, s{sDiag}')
            k(f's_cbranch_scc1 F_slown{ps}')
            self.mask()
            k(f'F_slown{ps}:')
            if ps == 0:
                self.rowmax(vT)
                for u in range(2): k(f'v_max_f32 v{vT + 4 + u}, v{vT + 4 + u}, v{vT + u}')
            else:
                self.emit(self.soft(0, 0) + self.soft(1, 0))
                k('s_nop 1')
                for m in self.pv(0, False) + self.pv(1, False): k(m)
            k(f's_cmp_lg_u32 s{sCnt}, 0')
            k(f's_cbranch_scc1 F_slow{ps}')
            if ps == 0: self.setmax(vT + 4)
        self.emit(self.kreads())
        k('s_branch F_checked')

    def segcount(self):
        k = self.k
        k(f's_sub_u32 s{sRem}, 3, s{sWV}')
        k(f's_mul_i32 s{sRem}, s{sRem}, s{sDiag}')
        k(f's_sub_u32 s{sCnt}, s{sN}, s{sRem}')
        k(f's_mov_b32 s{sNW}, s{sCnt}')
        k(f's_sub_u32 s{sHook}, s{sCnt}, 2')
        k(f's_cmp_eq_u32 s{sHen}, 1')
        k(f's_cselect_b32 s{sHook}, s{sHook}, -1')
        k(f's_mov_b32 s{sHst}, 5')

    def hooks(self):
        k = self.k
        k('F_hook:')
        for n in (5, 6, 3, 4, 1, 2):
            k(f's_cmp_eq_u32 s{sHst}, {n}'); k(f's_cbranch_scc1 F_hook{n}')
        def done(nexthook):
            k(nexthook); k(f's_add_u32 s{sHst}, s{sHst}, 1'); k('s_branch F_hookret')
        k(f's_lshl_b32 s{sSo}, s{sH}, 7')
        k(f's_add_u32 s{sSo}, s{sSo}, {WS_FLAG + FL_B1}')
        k(f'v_and_b32 v{vT+1}, 0x7c, v{vL4}')
        pl = (vT, vT + 1, SWS, f's{sSo}')
        k(self.poll_load(*pl)); k('s_waitcnt vmcnt(0)')
        self.emit(self.poll_check(*pl, 1))
        k(f's_lshl_b32 s{sSo}, s{sH}, 16')
        k(f's_lshl_b32 s{sT}, s{sWV}, 11')
        k(f's_add_u32 s{sSo}, s{sSo}, s{sT}')
        k(f's_add_u32 s{sSo}, s{sSo}, {WS_KVP}')
        for r in range(8):
            for hf in range(2): k(f'buffer_load_dwordx4 v[{vB + 8*r + 4*hf}:{vB + 8*r + 4*hf + 3}], v{vL16}, s[{SWS}:{SWS+3}], s{sSo} offen offset:{1024*hf} sc1')
            k(f's_add_u32 s{sSo}, s{sSo}, 8192')
        done(f's_sub_u32 s{sHook}, s{sHook}, 3')
        k('F_hook1:')
        k('s_waitcnt vmcnt(16)')
        k(f's_lshl_b32 s{sSo}, s{sH}, 12')
        k(f's_lshl_b32 s{sT}, s{sWV}, 10')
        k(f's_add_u32 s{sSo}, s{sSo}, s{sT}')
        k(f's_add_u32 s{sSo}, s{sSo}, {WS_KVF}')
        for r in range(1, 8):
            for e in range(8): k(f'v_add_f32 v{vB + e}, v{vB + e}, v{vB + 8*r + e}')
        for e in range(4): k(f'v_cvt_pk_bf16_f32 v{vB + e}, v{vB + 2*e}, v{vB + 2*e + 1}')
        k(f'buffer_store_dwordx4 v[{vB}:{vB+3}], v{vL16}, s[{SWS}:{SWS+3}], s{sSo} offen sc1')
        done(f's_sub_u32 s{sHook}, s{sHook}, 3')
        k('F_hook2:')
        k(f's_lshl_b32 s{sSo}, s{sH}, 2')
        k(f's_add_u32 s{sSo}, s{sSo}, s{sWV}')
        k(f's_lshl_b32 s{sSo}, s{sSo}, 2')
        k(f's_add_u32 s{sSo}, s{sSo}, {WS_FLAG + FL_KVR}')
        k(f'buffer_store_dword v{v1}, v{vZ}, s[{SWS}:{SWS+3}], s{sSo} offen sc1')
        done(f's_mov_b32 s{sHook}, 6')
        pl = (vT + 4, vL4, SWS, f's{sPF}')
        k('F_hook5:')
        k(self.poll_load(*pl))
        done(f's_sub_u32 s{sHook}, s{sHook}, 1')
        k('F_hook6:')
        k('s_waitcnt vmcnt(8)')
        self.emit(self.poll_check(*pl, 1))
        k(f's_mov_b32 s{sHook}, s{sHk}')
        k(f's_mov_b32 s{sHst}, s{sHn}')
        k('s_branch F_hookret')
        k('F_hook3:')
        self.emit(self.code_pf(vT + 1, vT + 2))
        k(f'v_xor_b32 v{vT+1}, 0x8000, v{vT+1}')
        k(f'global_load_dword v{vT+3}, v{vT+1}, s[30:31]')
        done(f's_mov_b32 s{sHook}, 2')
        k('F_hook4:')
        k(f's_lshl_b32 s{sSo}, s{sPO}, 2')
        k(f's_add_u32 s{sSo}, s{sSo}, {WS_FLAG + FL_P}')
        pl = (vT, vZ, SWS, f's{sSo}')
        k(self.poll_load(*pl)); k('s_waitcnt vmcnt(0)')
        self.emit(self.poll_check(*pl, 1))
        k(f's_lshl_b32 s{sT}, s{sPO}, 10')
        k(f's_add_u32 s{sT}, s{sT}, {WS_ML}')
        for u in range(2): k(f'buffer_load_dword v{vLse + u}, v{vL4}, s[{SWS}:{SWS+3}], s{sT} offen offset:{256*u} sc1')
        k(f's_lshl_b32 s{sSo}, s{sPO}, 14')
        k(f's_add_u32 s{sSo}, s{sSo}, {WS_PART}')
        self.gload('v', vB, sSo)
        k('s_branch F_hookret')

    def attention(self):
        k = self.k
        k('F_att:')
        k(f'v_lshrrev_b32 v{vL4}, 2, v{vL16}')
        k(f'v_mov_b32 v{vZ}, 0')
        k(f'v_mov_b32 v{v1}, 1')
        k(f'v_mov_b32 v{vNinf}, 0xff800000')
        for r in range(4): k(f'v_mov_b32 v{vOne + r}, 0x3f803f80')
        k(f'v_bfe_u32 v{vLse}, v{vL16}, 4, 4')
        k(f'v_lshrrev_b32 v{vLse+1}, 8, v{vL16}')
        k(f'v_lshlrev_b32 v{vLse+1}, 2, v{vLse+1}')
        for r in range(4):
            k(f'v_cmp_gt_u32 s[{sMK + 2*r}:{sMK + 2*r + 1}], v{vLse+1}, v{vLse}')
            k(f'v_add_u32 v{vLse+1}, 1, v{vLse+1}')
        k(f's_cmp_eq_u32 s{sP}, 7')
        k(f's_cselect_b32 s{sHk}, 24, 6')
        k(f's_cselect_b32 s{sHn}, 0, 3')
        k(f's_cmp_eq_u32 s{sROLE}, 1')
        k(f's_cselect_b32 s{sHk}, s{sHk}, -1')
        self.segcount()
        k('s_waitcnt lgkmcnt(0)')
        k(f'v_add_u32 v{vRd}, s{sRs}, v{vL16}')
        k('s_branch F_first')
        k('F_seg:')
        self.segcount()
        self.it_special(True)
        k(f's_cmp_gt_u32 s{sCnt}, s{sDiag}')
        k('s_cbranch_scc0 F_loopend')
        k('.p2align 5'); k('s_nop 0'); k('s_nop 0'); k('s_nop 0'); k('s_nop 0')
        k('F_loop:')
        self.it_mid()
        k('s_cbranch_scc1 F_loop')
        k('F_loopend:')
        k(f's_cmp_eq_u32 s{sCnt}, 0')
        k('s_cbranch_scc1 F_done')
        self.it_special(False)
        k('F_done:')
        k('s_nop 7')
        k(f'v_cmp_ngt_f32 vcc, s{sBig}, v{vLs}')
        k(f'v_cmp_ngt_f32 s[{sM28}:{sM28+1}], s{sBig}, v{vLs + 4}')
        k('s_nop 0')
        k(f's_or_b64 vcc, vcc, s[{sM28}:{sM28+1}]')
        k('s_cbranch_scc1 F_slow')
        k('F_checked:')
        if self.ts:
            k(f's_cmp_eq_u32 s{sNext}, 0'); k('s_cbranch_scc1 F_ts2'); self.stamp(5); k('F_ts2:'); self.stamp(7)
        k(f's_cmp_eq_u32 s{sRem}, 0')
        k('s_cbranch_scc1 F_epi')
        self.it_idle('F_epi')
        for u in range(2): k(f'v_rcp_f32 v{vT + 2*u}, v{vLs + 4*u}')
        for u in range(2): k(f'v_log_f32 v{vT + 4 + 2*u}, v{vLs + 4*u}')
        k(f's_cmp_eq_u32 s{sMode}, 2')
        k('s_cbranch_scc1 F_merge')
        for u in range(2): k(f'v_mov_b32 v{vT + 2*u + 1}, v{vT + 2*u}')
        for u in range(2): k(f'v_sub_f32 v{vT + 4 + 2*u}, v{vT + 4 + 2*u}, v{vNM + 4*u}')
        self.ctx_base()
        k(f's_lshl_b32 s{sT}, s{sPO}, 10')
        k(f's_add_u32 s{sT}, s{sT}, {WS_ML}')
        k(f's_lshl_b32 s{sT2}, s{sPO}, 14')
        k(f's_add_u32 s{sT2}, s{sT2}, {WS_PART}')
        k(f's_cmp_eq_u32 s{sMode}, 1')
        k(f's_cselect_b32 s{sT}, s{sT}, s{sOOB}')
        k(f's_cselect_b32 s{sSo}, s{sT2}, s{sSo}')
        k(f's_mov_b32 s{sSt}, 131072')
        k(f's_cselect_b32 s{sSt}, 8192, s{sSt}')
        k(f's_add_u32 s{sSt2}, s{sSt}, 4096')
        for u in range(2): k(f'buffer_store_dword v{vT + 4 + 2*u}, v{vL4}, s[{SWS}:{SWS+3}], s{sT} offen offset:{256*u} sc1')
        self.out_store(lambda u, ds: (ds * 1024 if u == 0 else f's{sSt2 if ds else sSt}'), False)
        k('F_post:')
        k(f's_cmp_eq_u32 s{sRem}, 0')
        k('s_cbranch_scc1 F_post2')
        self.it_idle('F_post1')
        k(f's_cmp_eq_u32 s{sNext}, 0')
        k('s_cbranch_scc0 F_post')
        k('s_waitcnt vmcnt(0)')
        k('s_branch F_post')
        k('F_post2:')
        k(f's_cmp_eq_u32 s{sNext}, 0')
        k('s_cbranch_scc1 F_p3')
        for r in range(64): k(f'v_accvgpr_write_b32 a{aQ + r}, v{vB + r}')
        self.stamp(6)
        k(f's_mov_b32 s{sNext}, 0')
        k(f's_xor_b32 s{sHen}, s{sHen}, 1')
        k(f's_mov_b32 s{sMode}, 0')
        k(f's_mov_b32 s{sT0}, 0')
        k(f's_mov_b32 s{sQT}, s{sP}')
        k(f's_lshl_b32 s{sN}, s{sP}, 2')
        k(f's_add_u32 s{sN}, s{sN}, 4')
        k(f's_add_u32 s{sFl}, s{sFl}, {FL_P - FL_Q}')
        k('s_branch F_seg')
        self.hooks()
        self.slow()
        self.flush_late()
        k('F_merge:')
        k('s_waitcnt vmcnt(0)')
        for u in range(2): k(f'v_sub_f32 v{vT + 4 + 2*u}, v{vT + 4 + 2*u}, v{vNM + 4*u}')
        for u in range(2): k(f'v_sub_f32 v{vT + 4 + 2*u}, v{vT + 4 + 2*u}, v{vLse + u}')
        for u in range(2): k(f'v_exp_f32 v{vT + 1 + 2*u}, -v{vT + 4 + 2*u}')
        for u in range(2): k(f'v_exp_f32 v{vT + 4 + 2*u}, v{vT + 4 + 2*u}')
        for u in range(2): k(f'v_add_f32 v{vT + 1 + 2*u}, 1.0, v{vT + 1 + 2*u}')
        for u in range(2): k(f'v_add_f32 v{vT + 4 + 2*u}, 1.0, v{vT + 4 + 2*u}')
        for u in range(2): k(f'v_rcp_f32 v{vT + 1 + 2*u}, v{vT + 1 + 2*u}')
        for u in range(2): k(f'v_rcp_f32 v{vT + 4 + 2*u}, v{vT + 4 + 2*u}')
        for u in range(2): k(f'v_mul_f32 v{vT + 2*u}, v{vT + 2*u}, v{vT + 1 + 2*u}')
        for u in range(2): k(f'v_mov_b32 v{vT + 5 + 2*u}, v{vT + 4 + 2*u}')
        for u in range(2): k(f'v_mov_b32 v{vT + 1 + 2*u}, v{vT + 2*u}')
        self.ctx_base()
        self.out_store(lambda u, ds: u * 131072 + ds * 1024, True)
```

```python
from fz_regs import *
from fz2 import vZ, v1, vL4

SO = SX
sRT, sCc, sXq, sWq, sLb, sOo, sCf = 56, 57, 58, 59, 60, 61, 62
vL, vXo, vWo, vWr, vOut, vT = 1, 8, 16, 20, 22, 24

class P3:
    def w3dma(self, lds, so):
        return [f's_add_u32 m0, s{sLb}, {lds}'] + \
               [f'buffer_load_dwordx4 v{vWo + n}, s[{SW}:{SW+3}], s{so} offen offset:{1024*n} lds' for n in range(4)]

    def w3reads(self, dst, lds):
        return [f'ds_read_b64_tr_b16 a[{dst + 4*j + 2*rho}:{dst + 4*j + 2*rho + 1}], v{vWr + (j & 1)} offset:{lds + rho*2048 + (j >> 1)*256}'
                for j in range(4) for rho in range(2)]

    def ctxflag(self):
        return f'buffer_store_dword v{v1}, v{vZ}, s[{SWS}:{SWS+3}], s{sCf} offen sc1'

    def out_a(self):
        k = self.k
        srd(k, SW, 14, 4096 * 896)
        k(f's_mul_i32 s{sLb}, s{sWV}, 40960')
        k(f's_mul_i32 s{sWq}, s{sWV}, {1024 * 896}')
        k(f's_lshl_b32 s{sT}, s{sCc}, 7')
        k(f's_add_u32 s{sWq}, s{sWq}, s{sT}')
        pos = {}
        def wd(s):
            self.emit(self.w3dma(4096 * (s % 10), sWq) + [f's_add_u32 s{sWq}, s{sWq}, {32 * 896}'])
            pos['w', s] = len(k.lines)
        since = lambda key: nvm(k.lines[pos[key]:])
        pos['st'] = len(k.lines)
        for s in range(4): wd(s)
        k(f's_lshl_b32 s{sXq}, s{sRT}, 19')
        k(f's_lshl_b32 s{sT}, s{sWV}, 15')
        k(f's_add_u32 s{sXq}, s{sXq}, s{sT}')
        k(f's_add_u32 s{sXq}, s{sXq}, {WS_CTX}')
        for i in range(4): k(f'v_add_u32 v{vXo + i}, {131072 * i}, v{vL16}')
        for j in range(2): k(f'v_add_u32 v{vWr + j}, s{sLb}, v{vWr + j}')
        k(f's_lshl_b32 s{sSo}, s{sRT}, 7')
        k(f's_lshl_b32 s{sT}, s{sWV}, 5')
        k(f's_add_u32 s{sSo}, s{sSo}, s{sT}')
        k(f's_add_u32 s{sSo}, s{sSo}, {WS_FLAG + FL_CTX}')
        k(f'v_and_b32 v{vT+1}, 0x1c, v{vL4}')
        k(f's_waitcnt vmcnt({since("st")})')
        k(self.ctxflag())
        self.stamp(9)
        for s in range(4, 10): wd(s)
        pl = (vT, vT + 1, SWS, f's{sSo}')
        nreg = int(self.opt.get('wreg', 16))
        for s in range(nreg):
            k(f's_waitcnt vmcnt({since(("w", s))})')
            self.emit(self.w3reads(16 * s, 4096 * (s % 10)))
            if s == nreg - 6:
                k(self.poll_load(*pl)); pos['poll'] = len(k.lines)
            k('s_waitcnt lgkmcnt(0)')
            wd(s + 10)
        k(f's_waitcnt vmcnt({since("poll")})')
        self.emit(self.poll_check(*pl, 1))
        self.stamp(10)
        xl = lambda s, i: f'buffer_load_dwordx4 v[{128 + 16*(s % 8) + 4*i}:{131 + 16*(s % 8) + 4*i}], v{vXo + i}, s[{SWS}:{SWS+3}], s{sXq} offen sc1'
        xadv = f's_add_u32 s{sXq}, s{sXq}, 1024'
        for s in range(8):
            for i in range(4): k(xl(s, i))
            k(xadv); pos['x', s] = len(k.lines)
        for s in range(32):
            wr = s - 1 + nreg if s >= 1 else None
            if wr is not None and wr > 31: wr = None
            n = since(('x', s))
            if wr is not None: n = min(n, since(('w', wr)))
            k(f's_waitcnt vmcnt({n}) lgkmcnt(0)')
            mf = []
            for i in range(4):
                for j in (range(4) if i % 2 == 0 else range(3, -1, -1)):
                    d = ('v', 64 + 16 * i + 4 * j)
                    mf.append(mfma(d, ('a', 16 * (s % nreg) + 4 * j), ('v', 128 + 16 * (s % 8) + 4 * i), d if s else '0'))
            rd = [(t, g) for g, t in enumerate(self.w3reads(16 * (wr % nreg), 4096 * (wr % 10)))] if wr is not None else []
            ld = []
            wn = s - 2 + nreg + 10
            if s >= 2 and wn <= 31:
                w = self.w3dma(4096 * (wn % 10), sWq) + [f's_add_u32 s{sWq}, s{sWq}, {32 * 896}']
                ld += [(t, g) for g, t in enumerate(w)]
            if s + 8 <= 31: ld += [(xl(s + 8, i), 4 * i + 3) for i in range(4)] + [(xadv, 15)]
            sched(k, mf, [rd, ld])
            if s >= 2 and wn <= 31: pos['w', wn] = max(i for i, l in enumerate(k.lines) if l.rstrip().endswith(' lds')) + 1
            pos['x', s + 8] = len(k.lines)
        self.stamp(11)
        k(f'v_add_u32 v{vT}, s{sLb}, v{vL16}')
        k(f'v_and_b32 v{vT+1}, 15, v{vL}')
        k(f'v_lshrrev_b32 v{vT+2}, 4, v{vL}')
        k(f'v_lshlrev_b32 v{vT+3}, 9, v{vT+2}')
        k(f'v_lshl_add_u32 v{vT+3}, v{vT+1}, 4, v{vT+3}')
        k(f's_lshl_b32 s{sT}, s{sWV}, 12')
        k(f'v_add_u32 v{vT+3}, s{sT}, v{vT+3}')
        k(f'v_add_u32 v{vT+4}, {2 * 40960}, v{vT+3}')
        for n in range(16): k(f'ds_write_b128 v{vT}, v[{64 + 4*n}:{67 + 4*n}] offset:{1024*n}')
        k(f'v_mul_u32_u24 v{vOut}, 1792, v{vT+1}')
        k(f'v_lshl_add_u32 v{vOut}, v{vT+2}, 4, v{vOut}')
        k(f's_lshl_b32 s{sT}, s{sRT}, 2')
        k(f's_add_u32 s{sT}, s{sT}, s{sWV}')
        k(f's_mul_i32 s{sOo}, s{sT}, {16 * 1792}')
        k(f's_lshl_b32 s{sT}, s{sCc}, 7')
        k(f's_add_u32 s{sOo}, s{sOo}, s{sT}')
        k('s_waitcnt lgkmcnt(0)')
        k('s_barrier')
        for w in range(4):
            for hf in range(2):
                for c in range(2):
                    d = 128 + 16 * w + 8 * hf + 4 * c
                    k(f'ds_read_b128 v[{d}:{d+3}], v{vT + 3 + (w >> 1)} offset:{(w & 1)*40960 + hf*2048 + c*256}')
        for w in range(1, 4):
            k(f's_waitcnt lgkmcnt({12 - 4 * w})')
            for e in range(16): k(f'v_add_f32 v{128 + e}, v{128 + e}, v{128 + 16*w + e}')
        for e in range(8): k(f'v_cvt_pk_bf16_f32 v{128 + e}, v{128 + 2*e}, v{129 + 2*e}')
        for hf in range(2): k(f'buffer_store_dwordx4 v[{128 + 4*hf}:{131 + 4*hf}], v{vOut}, s[{SO}:{SO+3}], s{sOo} offen offset:{64*hf}')

    def out_b(self):
        k = self.k
        OF = 98304
        srd(k, SW, 22, 448 * 896)
        k(f's_mul_i32 s{sLb}, s{sWV}, 24576')
        k(f's_lshl_b32 s{sWq}, s{sWV}, 8')
        k(f's_cmp_eq_u32 s{sWV}, 3')
        k(f's_cselect_b32 s{sXd}, s{sOOB}, 128')
        def wstep(s):
            slot = 8192 * (s % 3)
            return self.w3dma(slot, sWq) + [f's_add_u32 s{sT2}, s{sWq}, s{sXd}'] + self.w3dma(slot + 4096, sT2) + [f's_add_u32 s{sWq}, s{sWq}, {28 * 896}']
        k(f's_mov_b32 s{sSo}, {WS_FLAG + FL_KVR}')
        pl = (vT, vL4, SWS, f's{sSo}')
        k(self.poll_load(*pl))
        self.emit(wstep(0))
        k('s_waitcnt vmcnt(8)')
        k(self.ctxflag())
        self.emit(self.poll_check(*pl, 1))
        k(f's_lshl_b32 s{sSo}, s{sWV}, 14')
        k(f's_add_u32 s{sSo}, s{sSo}, {WS_KVF}')
        self.gload('a', 128, sSo)
        k(f's_lshl_b32 s{sXq}, s{sRT}, 17')
        k(f's_lshl_b32 s{sT}, s{sWV}, 13')
        k(f's_add_u32 s{sXq}, s{sXq}, s{sT}')
        k(f's_add_u32 s{sXq}, s{sXq}, {WS_PHIQ}')
        for i in range(4):
            self.gload('a', 32 * i, sXq, n=8)
            k(f's_add_u32 s{sXq}, s{sXq}, 32768')
        for j in range(2): k(f'v_add_u32 v{vWr + j}, s{sLb}, v{vWr + j}')
        k(f'v_and_b32 v{vT+1}, 15, v{vL}')
        k(f'v_lshrrev_b32 v{vT+2}, 4, v{vL}')
        k(f'v_cmp_eq_u32 s[{sM3}:{sM3+1}], 3, v{vT+2}')
        k(f'v_lshlrev_b32 v{vT+3}, 2, v{vT+1}')
        k(f'v_add_u32 v{vT+3}, 192, v{vT+3}')
        k(f's_lshl_b32 s{sT}, s{sWV}, 14')
        k(f's_add_u32 s{sT}, s{sT}, {OF}')
        k(f'v_add_u32 v{vT+4}, s{sT}, v{vL16}')
        k(f'v_add_u32 v{vT+5}, {OF}, v{vL16}')
        k(f'v_mul_u32_u24 v{vOut}, 1792, v{vT+1}')
        k(f'v_and_b32 v{vT+6}, 1, v{vT+2}')
        k(f'v_lshl_add_u32 v{vOut}, v{vT+6}, 5, v{vOut}')
        k(f'v_lshrrev_b32 v{vT+6}, 1, v{vT+2}')
        k(f'v_lshl_add_u32 v{vOut}, v{vT+6}, 4, v{vOut}')
        N = lambda hh, i: 128 + 32 * hh + 8 * i
        for i in range(4):
            k(f's_waitcnt vmcnt({[24, 24, 24, 16][i]})')
            for hh in range(4):
                for j in range(2):
                    d = ('v', N(hh, i) + 4 * j)
                    for sg in range(2): k(mfma(d, ('a', 128 + 16 * hh + 8 * j + 4 * sg), ('a', 32 * i + 8 * hh + 4 * sg), d if sg else '0'))
            if i < 2: self.emit(wstep(i + 1))
        self.stamp(9)
        k('s_nop 7')
        items = [(hh, i) for i in range(4) for hh in range(4)]
        for n, (hh, i) in enumerate(items): k(f'ds_bpermute_b32 v{32 + n}, v{vT+3}, v{N(hh, i) + 4}')
        k('s_waitcnt lgkmcnt(0)')
        for n in range(16): k(f'v_add_f32 v{32 + n}, {f32(1e-6)}, v{32 + n}')
        for n in range(16): k(f'v_rcp_f32 v{32 + n}, v{32 + n}')
        for n, (hh, i) in enumerate(items):
            b = N(hh, i)
            for e in range(8): k(f'v_mul_f32 v{b + e}, v{32 + n}, v{b + e}')
            for e in range(4): k(f'v_cvt_pk_bf16_f32 v{b + e}, v{b + 2*e}, v{b + 2*e + 1}')
            for e in range(2, 4): k(f'v_cndmask_b32 v{b + e}, v{b + e}, 0, s[{sM3}:{sM3+1}]')
            k(f'ds_write_b128 v{vT+4}, v[{b}:{b+3}] offset:{4096*hh + 1024*i}')
        k('s_waitcnt lgkmcnt(0)')
        k('s_barrier')
        self.stamp(10)
        def reads(s):
            fb = 48 * (s & 1); slot = 8192 * (s % 3)
            return [f'ds_read_b128 a[{fb + 32 + 4*i}:{fb + 35 + 4*i}], v{vT+5} offset:{4096*s + 1024*i}' for i in range(4)] + \
                self.w3reads(fb, slot) + self.w3reads(fb + 16, slot + 4096)
        self.emit(reads(0))
        for s in range(16):
            k(f's_waitcnt vmcnt({8 if s < 14 else 0}) lgkmcnt(0)')
            fb = 48 * (s & 1); mf = []
            for i in range(4):
                for j in (range(8) if i % 2 == 0 else range(7, -1, -1)):
                    d = ('v', 128 + 32 * i + 4 * j)
                    mf.append(mfma(d, ('a', fb + 4 * j), ('a', fb + 32 + 4 * i), d if s else '0'))
            rd = [(t, n) for n, t in enumerate(reads(s + 1))] if s < 15 else []
            ld = [(t, n) for n, t in enumerate(wstep(s + 3))] if s < 13 else []
            sched(k, mf, [ld, rd])
        self.stamp(11)
        k(f's_mul_i32 s{sOo}, s{sRT}, {64 * 1792}')
        k(f's_lshl_b32 s{sT}, s{sWV}, 8')
        k(f's_add_u32 s{sOo}, s{sOo}, s{sT}')
        k(f's_add_u32 s{sOo}, s{sOo}, 896')
        k(f's_cmp_eq_u32 s{sWV}, 3')
        k(f's_cselect_b32 s{sT2}, s{sOOB}, s{sOo}')
        for i in range(4):
            for jp in range(4):
                b = 128 + 32 * i + 8 * jp
                for e in range(4): k(f'v_cvt_pk_bf16_f32 v{b + e}, v{b + 2*e}, v{b + 2*e + 1}')
            k('s_nop 0')
            for jp in range(4):
                b = 128 + 32 * i + 8 * jp
                for e in range(2): k(f'v_permlane16_swap_b32 v{b + e}, v{b + 2 + e}')
            for jp in range(4):
                b = 128 + 32 * i + 8 * jp
                k(f'buffer_store_dwordx4 v[{b}:{b+3}], v{vOut}, s[{SO}:{SO+3}], s{sOo if jp < 2 else sT2} offen offset:{64*jp}')
            k(f's_add_u32 s{sOo}, s{sOo}, {16 * 1792}')
            k(f's_add_u32 s{sT2}, s{sT2}, {16 * 1792}')

    def phase3(self):
        k = self.k
        k('F_p3:')
        self.stamp(8)
        k('s_load_dwordx2 s[44:45], s[0:1], 80')
        k(f's_lshl_b32 s{sT}, s{sROLE}, 3')
        k(f's_add_u32 s{sT}, s{sT}, s{sP}')
        k(f's_lshl_b32 s{sT}, s{sT}, 1')
        k(f's_lshr_b32 s{sT2}, s2, 7')
        k(f's_add_u32 s{sT}, s{sT}, s{sT2}')
        k(f's_lshr_b32 s{sCc}, s{sT}, 2')
        k(f's_and_b32 s{sT}, s{sT}, 3')
        k(f's_and_b32 s{sRT}, s2, 7')
        k(f's_lshl_b32 s{sRT}, s{sRT}, 2')
        k(f's_add_u32 s{sRT}, s{sRT}, s{sT}')
        k(f's_lshl_b32 s{sCf}, s{sQT}, 1')
        k(f's_lshr_b32 s{sT}, s{sWV}, 1')
        k(f's_add_u32 s{sCf}, s{sCf}, s{sT}')
        k(f's_lshl_b32 s{sCf}, s{sCf}, 4')
        k(f's_add_u32 s{sCf}, s{sCf}, s{sH}')
        k(f's_lshl_b32 s{sCf}, s{sCf}, 1')
        k(f's_and_b32 s{sT}, s{sWV}, 1')
        k(f's_add_u32 s{sCf}, s{sCf}, s{sT}')
        k(f's_lshl_b32 s{sCf}, s{sCf}, 2')
        k(f's_add_u32 s{sCf}, s{sCf}, {WS_FLAG + FL_CTX}')
        t0, t1, t2, t3 = vT + 4, vT + 5, vT + 6, vT + 7
        k(f'v_lshrrev_b32 v{vL}, 4, v{vL16}')
        k(f'v_lshrrev_b32 v{t0}, 5, v{vL}')
        k(f'v_bfe_u32 v{t1}, v{vL}, 2, 2')
        k(f'v_lshl_add_u32 v{t2}, v{t0}, 2, v{t1}')
        k(f'v_mul_u32_u24 v{t2}, 896, v{t2}')
        k(f'v_bfe_u32 v{t3}, v{vL}, 4, 1')
        k(f'v_lshl_add_u32 v{t2}, v{t3}, 6, v{t2}')
        k(f'v_lshlrev_b32 v{t0}, 1, v{t0}')
        k(f'v_and_b32 v{vWo+1}, 3, v{vL}')
        k(f'v_xor_b32 v{t0}, v{t0}, v{vWo+1}')
        k(f'v_lshl_add_u32 v{vWo}, v{t0}, 4, v{t2}')
        k(f'v_lshrrev_b32 v{t0}, 4, v{vL}')
        k(f'v_lshlrev_b32 v{t0}, 9, v{t0}')
        k(f'v_lshl_add_u32 v{t0}, v{t1}, 6, v{t0}')
        k(f'v_lshl_add_u32 v{t0}, v{t3}, 5, v{t0}')
        k(f'v_lshl_add_u32 v{vWr}, v{vWo+1}, 3, v{t0}')
        k(f'v_xor_b32 v{vWr+1}, 32, v{vWr}')
        for n in range(1, 4): k(f'v_add_u32 v{vWo + n}, {n * (8 * 896 - 1024)}, v{vWo}')
        k('s_waitcnt vmcnt(16) lgkmcnt(0)')
        k('s_barrier')
        srd(k, SO, 44, 2048 * 1792)
        k(f's_cmp_eq_u32 s{sCc}, 7')
        k('s_cbranch_scc1 F_p3b')
        self.out_a()
        k('s_branch F_fin')
        self.flush_late()
        k('F_p3b:')
        self.out_b()
        k('F_fin:')
        if self.ts:
            self.stamp(12)
            stamp_out(k, True, 13, SWS, sWV, sT, vT, WS_TS)
            if self.opt.get('dbg'):
                k(f's_lshl_b32 s{sT}, s2, 2'); k(f's_add_u32 s{sT}, s{sT}, s{sWV}')
                k(f's_cmp_lg_u32 s{sT}, {int(self.opt["dbg"]) * 4 + 3}'); k('s_cbranch_scc1 F_end')
                srd(k, SP, SDBG, 64)
                k('v_subrev_u32 v0, s84, v0'); k(f'v_add_u32 v{vT}, 4, v{vT}')
                k(f'buffer_store_dword v0, v{vT}, s[{SP}:{SP+3}], 0 offen')
        k('F_end:')
        k('s_endpgm')
        self.flush_late()
```

```python
from asmlib import *
from layout import *
import struct

def f32(x): return '0x%08x' % struct.unpack('<I', struct.pack('<f', x))[0]
LOG2E = 1.4426950408889634
OOB = 0x40000000

sH, sP, sROLE, sWV = 26, 27, 28, 29
SX, SW, SWS, SX2, SW2, SP = 32, 36, 40, 44, 48, 52
sXo, sWo, sX2o, sW2o = 56, 57, 58, 59
sA, sB, sC, sWd, sCnt, sSt, sT, sT2, sScale, sXd = 60, 61, 62, 63, 64, 65, 66, 67, 68, 69
sM3, sM28, sSt2, sPF = 70, 72, 74, 75
sF, sFc, sFj, sFc2, sOOB, sRs, sDs, sDiag, sMode, sHook = 4, 5, 6, 7, 8, 9, 10, 11, 12, 13
sRem, sNext, sQT, sHB, sW8, sPO = 16, 17, 18, 19, 20, 21
sFl, sNW, sT0, sSo = 76, 77, 78, 79
sMK = 88
sBig, sN, sHst, sSpin = 96, 97, 98, 99
sHen, sHn, sHk, sStL = 3, 70, 71, 68
SDBG = 100

FL_KV, FL_Q, FL_P, FL_B1, FL_CTX, FL_KVR = 0, 4096, 6144, 8192, 10240, 14336

vL16 = 15

def nvm(lines):
    return sum(1 for l in lines if l.split()[0].startswith(('buffer_', 'global_')))

class Base:
    def __init__(self, ts, opt):
        self.k = K(); self.ts = ts; self.opt = opt or {}; self.late = []; self.uid = 0

    def stamp(self, idx): stamp(self.k, self.ts, idx)

    def poll_load(self, vdst, vaddr, srd_, so):
        return f'buffer_load_dword v{vdst}, v{vaddr}, s[{srd_}:{srd_+3}], {so} offen sc1'

    def poll_check(self, vdst, vaddr, srd_, so, val):
        self.uid += 1; L = f'F_spin{self.uid}'
        cmp_ = [f'v_cmp_ne_u32 vcc, {val}, v{vdst}', 's_nop 0', 's_cmp_lg_u64 vcc, 0']
        self.late += [f'{L}:', f's_mov_b32 s{sSpin}, 0x200000', f'{L}a:', self.poll_load(vdst, vaddr, srd_, so),
                      's_waitcnt vmcnt(0)', f's_sub_u32 s{sSpin}, s{sSpin}, 1', f's_cbranch_scc1 {L}r'] + cmp_ + \
                     [f's_cbranch_scc1 {L}a', f's_branch {L}r']
        return cmp_ + [f's_cbranch_scc1 {L}', f'{L}r:']

    def code_pf(self, va, vd):
        return [f's_lshr_b32 s{sT}, s2, 3', f's_lshl_b32 s{sT}, s{sT}, 2', f's_add_u32 s{sT}, s{sT}, s{sWV}', f's_lshl_b32 s{sT}, s{sT}, 10',
                f'v_and_b32 v{va}, 0x380, v{vL16}', f'v_add_u32 v{va}, s{sT}, v{va}', f'global_load_dword v{vd}, v{va}, s[30:31]']

    def gload(self, cls, base, so, n=16):
        k = self.k
        for i in range(n):
            if i % 4 == 0: k(f's_add_u32 s{sT2}, s{so}, {1024 * i}')
            k(f'buffer_load_dwordx4 {R(cls, base + 4*i, 4)}, v{vL16}, s[{SWS}:{SWS+3}], s{sT2} offen offset:{1024 * (i % 4)} sc1')

    def emit(self, ts):
        for t in ts:
            t = t[0] if isinstance(t, tuple) else t
            self.k(t)
            if ' m0,' in t: self.k('s_nop 0')

    def flush_late(self):
        for t in self.late: self.k(t)
        self.late = []
```

```python
import sys, argparse
from fz_regs import *
from fz1 import P1
from fz2 import P2
from fz3 import P3

class F(Base, P1, P2, P3):
    def build(self):
        k = self.k
        self.ends = []; self.grp = None
        self.setup()
        ends = list(self.ends); ml = len(k.lines)
        k(f's_cmp_eq_u32 s{sROLE}, 1')
        k('s_cbranch_scc1 F_kb')
        self.role = 'B'
        self.role_vq()
        k('s_branch F_att')
        self.prefetch('F_vloop', [(4, 2048 * 896), (8, 448 * 8192)])
        self.prefetch('F_kloop', [(4, 2048 * 896), (8, 448 * 2688), (14, 4096 * 896), (22, 448 * 896)])
        self.flush_late()
        k('F_kb:')
        save = k.lines; nv = [nvm(save[e:ml]) for e in ends]
        k.lines = ['    buffer_placeholder lds'] * nv[0]
        self.ends = [nv[0] - x for x in nv]
        self.role = 'A'
        self.role_kb()
        k.lines = save + k.lines[nv[0]:]
        self.attention()
        self.phase3()
        return k.text()

if __name__ == '__main__':
    p = argparse.ArgumentParser()
    p.add_argument('out'); p.add_argument('--ts', type=int, default=0); p.add_argument('--opt', default='')
    a = p.parse_args()
    opt = dict(x.split('=') for x in a.opt.split(',') if x)
    label = NAME + '_kernel'
    code, desc = kernel_wrap(label, F(a.ts, opt).build(), 512, 256)
    pad = f'.fill (131072 + 256 - (. - {label})) / 4, 4, 0xbf800000\n'
    open(a.out, 'w').write('; @launch grid=(256,1,1) block=(256,1,1) lds=163840\n.amdgcn_target "amdgcn-amd-amdhsa--gfx950"\n' + code + pad + desc)
```

```python
NAME = 'concat_heads__compressed_kv_cla__linear_kernel_hedgehog__prompt'

class K:
    def __init__(self):
        self.lines = []
    def __call__(self, s):
        for l in s.split('\n'):
            l = l.strip()
            if l:
                self.lines.append(l if l.endswith(':') else '    ' + l)
    def text(self):
        return '\n'.join(self.lines) + '\n'

def kernel_wrap(label, body, vgpr, accum, sgpr=102):
    head = f'.text\n.globl {label}\n.p2align 8\n.type {label},@function\n{label}:\n'
    desc = f'''.section .rodata,"a"
.p2align 6
.amdhsa_kernel {label}
  .amdhsa_next_free_vgpr {vgpr}
  .amdhsa_next_free_sgpr {sgpr}
  .amdhsa_accum_offset {accum}
  .amdhsa_group_segment_fixed_size 0
  .amdhsa_kernarg_size 104
  .amdhsa_user_sgpr_count 2
  .amdhsa_user_sgpr_kernarg_segment_ptr 1
  .amdhsa_system_sgpr_workgroup_id_x 1
.end_amdhsa_kernel
'''
    return head + body, desc

def file_wrap(launches, kernels):
    s = ''
    for (label, g, b, lds) in launches:
        s += f'; @launch kernel={label} grid=({g},1,1) block=({b},1,1) lds={lds}\n'
    s += '.amdgcn_target "amdgcn-amd-amdhsa--gfx950"\n'
    for code, _ in kernels:
        s += code
    for _, desc in kernels:
        s += desc
    return s

def srd(k, d, base, nbytes):
    k(f's_mov_b32 s{d}, s{base}')
    k(f's_and_b32 s{d+1}, s{base+1}, 0xffff')
    k(f's_mov_b32 s{d+2}, {nbytes}')
    k(f's_mov_b32 s{d+3}, 0x20000')

VMCOST = [1]

def vcost(t):
    op = t.split()[0]
    if op.startswith('s_'): return 0
    if op in ('v_exp_f32', 'v_log_f32', 'v_rcp_f32', 'v_rsq_f32'): return 2
    if op.startswith(('buffer_', 'global_')): return VMCOST[0]
    return 1

def sched(k, mfmas, streams, req=None, vmax=2, tmax=3, flush=True, prio=None):
    req = req or {}
    pos = [0] * len(streams)
    for m, mf in enumerate(mfmas):
        for (s, c) in req.get(m, []):
            while pos[s] < c:
                k(streams[s][pos[s]][0]); pos[s] += 1
        k(mf)
        v = 0; t = 0
        progress = True
        while progress:
            progress = False
            for s in (prio or range(len(streams))):
                st = streams[s]
                if pos[s] < len(st):
                    text, eg = st[pos[s]]
                    c = vcost(text)
                    if eg <= m and v + c <= vmax and t + 1 <= tmax:
                        k(text); pos[s] += 1; v += c; t += 1; progress = True
    left = [st[pos[s]:] for s, st in enumerate(streams)]
    if flush:
        for st in left:
            for text, _ in st: k(text)
        return None
    return left

def R(cls, base, n):
    return f'{cls}[{base}:{base+n-1}]'

def mfma(d, a, b, c):
    cs = c if isinstance(c, str) else R(c[0], c[1], 4)
    return f'v_mfma_f32_16x16x32_bf16 {R(d[0], d[1], 4)}, {R(a[0], a[1], 4)}, {R(b[0], b[1], 4)}, {cs}'

class VM:
    def __init__(self): self.n = 0; self.marks = {}
    def count(self, lines):
        return sum(1 for l in lines if l.split()[0].startswith(('buffer_', 'global_')))


def stamp(k, on, idx):
    if not on: return
    if idx == 0:
        k('s_memrealtime s[84:85]'); k('s_memtime s[86:87]'); return
    k('s_memrealtime s[80:81]'); k('s_memtime s[82:83]'); k('s_waitcnt lgkmcnt(0)')
    if idx == 1:
        k('v_mov_b32 v0, 0'); k('s_nop 0'); k('v_writelane_b32 v0, s84, 0'); k('v_writelane_b32 v0, s86, 16')
    k(f'v_writelane_b32 v0, s80, {idx}'); k(f'v_writelane_b32 v0, s82, {16 + idx}')

def stamp_out(k, on, idx, srd_, swv, st, vt, base):
    if not on: return
    k('s_waitcnt vmcnt(0)')
    stamp(k, on, idx)
    k(f's_lshl_b32 s{st}, s2, 2'); k(f's_add_u32 s{st}, s{st}, s{swv}'); k(f's_lshl_b32 s{st}, s{st}, 8'); k(f's_add_u32 s{st}, s{st}, {base}')
    k(f'v_mbcnt_lo_u32_b32 v{vt}, -1, 0'); k(f'v_mbcnt_hi_u32_b32 v{vt}, -1, v{vt}'); k(f'v_lshlrev_b32 v{vt}, 2, v{vt}')
    k(f'buffer_store_dword v0, v{vt}, s[{srd_}:{srd_+3}], s{st} offen')
```

```python
from fz_regs import *

vXo, vWo, vXb, vXr, vWr, vSt = 1, 5, 9, 11, 13, vL16
vTmp = 16
vXo2, vWo2 = 24, 28
vL = 30
FR = 32
XB = 65536
SG, SF = 88, 92
sPa, sPb, sPc = 76, 77, 78
KV0 = 131072
VBO = 147456

def FX(b, i): return ('a', FR + 64 * b + 4 * i)
def FW(b, j): return ('a', FR + 64 * b + 32 + 4 * j)
def QX(t, i): return ('a', 96 + 16 * (t & 1) + 4 * i)
def QW(t, j):
    n = (16 * (t - 32) + j) % 20
    return ('a', 32 + 4 * n if n < 16 else 128 + 4 * (n - 16))

def acc1(p): return ('v', 32 + 8 * p) if p < 28 else ('a', 8 * (p - 28))
def acc2(p):
    if p < 14: return ('a', 144 + 8 * p)
    if p < 16: return ('v', 32 + 8 * (p - 14))
    return acc1(p)
def qidx(i, jp): return 4 * jp + (i ^ 2 if jp == 3 else i)
JLAST = (3, 4, 5, 6, 7, 0, 1, 2)

def pair_pos(kind, n):
    if kind == 'V':
        a = n >> 3; return a, (n & 7) if a % 2 == 0 else 7 - (n & 7)
    i = n >> 2; return i, (n & 3) if i % 2 == 0 else 3 - (n & 3)

def order(kind):
    o = []
    for n in range(32):
        x, y = pair_pos(kind, n)
        if kind == 'V':
            for hf in ((0, 1) if n % 2 == 0 else (1, 0)): o.append((n, hf, 2 * x + hf, y))
        else:
            for hf in ((0, 1) if x % 2 == 0 else (1, 0)): o.append((n, hf, x, 2 * y + hf))
    return o

AQ = lambda i: 160 + 8 * i
AK = lambda i: 192 + 8 * i
AV = lambda ip, j: 224 + 16 * ip + 8 * j

class P1:
    def vmwait(self): return nvm(self.k.lines[self.ends[-3]:])

    def mark(self):
        self.ends.append(max(i for i, l in enumerate(self.k.lines) if l.rstrip().endswith(' lds')) + 1)

    def last_store(self):
        return max(i for i, l in enumerate(self.k.lines) if 'buffer_store_dwordx4' in l)

    def xdma(self, par, srd_, voff, soff, delta, g0=3, dg=8):
        it = []
        if par == 0:
            it.append((f's_add_u32 s{sT}, s{soff}, {delta}', g0 - 2))
            it.append((f's_add_u32 m0, s{sC}, 16384', g0 - 1)); so = sT
        else:
            it.append((f's_mov_b32 m0, s{sA}', g0 - 1)); so = soff
        for i in range(4):
            it.append((f'buffer_load_dwordx4 v{voff + i}, s[{srd_}:{srd_+3}], s{so} offen offset:{1024*i} {self.opt.get("xflag", "")} lds', g0 + dg * i))
        if par == 0: it.append((f's_add_u32 s{soff}, s{soff}, 128', g0 + dg * 3 + 1))
        return it

    def wdma(self, par, srd_, voff, soff, stride, n=4, g0=35, dg=8):
        it = [(f's_mov_b32 m0, s{sWd}' if par == 0 else f's_add_u32 m0, s{sWd}, 16384', g0 - 1)]
        fl = self.opt.get('wflag', '') if srd_ == SW else ''
        for i in range(n):
            it.append((f'buffer_load_dwordx4 v{voff + i}, s[{srd_}:{srd_+3}], s{soff} offen offset:{1024*i} {fl} lds', g0 + dg * i))
        it.append((f's_add_u32 s{soff}, s{soff}, {32 * stride}', g0 + dg * (n - 1) + 1))
        return it

    def reads(self, t, kind, dg=2):
        par = t & 1; nb = 1 - par
        xr = vXr + (1 if par == 0 else 0)
        wo = 16384 if par == 0 else 0
        tr = lambda reg, rho, j, off: f'ds_read_b64_tr_b16 {R(reg[0], reg[1] + 2*rho, 2)}, v{vWr + (j & 1)} offset:{wo + off}'
        if kind == 'q':
            xs = [f'ds_read_b128 {R(*QX(t + 1, i), 4)}, v{xr} offset:{(i & 1)*2048 + (i >> 1)*16384}' for i in range(4)]
            ws = [[tr(QW(t + 1, j), rho, j, (j >> 3)*8192 + rho*1024 + ((j >> 1) & 3)*256) for rho in range(2)] for j in range(16)]
            it = []
            if t == 31:
                for j in range(16): it += [(ws[j][0], 2 * j), (ws[j][1], 2 * j + 1)]
                it += [(x, 33 + 2 * n) for n, x in enumerate(xs)]
                return it, 42
            g = 0
            for j in range(16):
                g = max(g, 4 * (j - 4) + 4)
                it += [(ws[j][0], g), (ws[j][1], g + 1)]; g += 2
                if 4 <= j < 8: it.append((xs[j - 4], g)); g += 1
            return it, g
        xs = [f'ds_read_b128 {R(*FX(nb, i), 4)}, v{xr} offset:{2048*i}' for i in range(8 if kind == 'main' else 4)]
        if kind == 'main': ws = [tr(FW(nb, j), rho, j, rho*1024 + (j >> 1)*256) for j in range(8) for rho in range(2)]
        else: ws = [tr(FW(nb, j), rho, j, (j >> 1)*4096 + rho*256) for j in range(6) for rho in range(2)]
        seq = []
        while xs or ws:
            if xs: seq.append(xs.pop(0))
            seq += ws[:2]; ws = ws[2:]
        return [(x, int(n * dg)) for n, x in enumerate(seq)], int(len(seq) * dg)

    def book(self, par, g):
        if par == 0:
            return [(f'v_xor_b32 v{vWr}, 0x8000, v{vWr}', g), (f'v_xor_b32 v{vWr+1}, 0x8000, v{vWr+1}', g),
                    (f'v_add_u32 v{vXr}, s{sB}, v{vXb}', g)]
        return [(f'v_add_u32 v{vXr+1}, s{sB}, v{vXb+1}', g)]

    def rot(self, t, g):
        if t % 2 == 0 or t >= 43: return []
        return [(f's_xor_b32 s{sWd}, s{sWd}, 0x8000', g), (f's_mov_b32 s{sT2}, s{sA}', g), (f's_mov_b32 s{sA}, s{sB}', g),
                (f's_mov_b32 s{sB}, s{sC}', g), (f's_mov_b32 s{sC}, s{sT2}', g)]

    def mfmas(self, t, kind, first):
        par = t & 1; mf = []
        if kind in 'KV':
            for (p, hf, i, j) in order(kind):
                c, b = acc1(p); d = (c, b + 4 * hf)
                a_, b_ = (FX(par, i), FW(par, j)) if kind == 'V' else (FW(par, j), FX(par, i))
                mf.append(mfma(d, a_, b_, '0' if first else d))
        elif kind == 'Q':
            groups = [(0, 1, 2, 3)] if t < 45 else [(0, 1), (2, 3)]
            for grp in groups:
                for j in (range(16) if t < 45 else [2 * jp + x for jp in JLAST for x in range(2)]):
                    for i in (grp if j % 2 == 0 else grp[::-1]):
                        c, b = acc2(qidx(i, j >> 1)); d = (c, b + 4 * (j & 1))
                        mf.append(mfma(d, QW(t, j), QX(t, i), '0' if first else d))
        else:
            for i in range(4):
                for j in (range(6) if i % 2 == 0 else range(5, -1, -1)):
                    if j < 4:
                        d = ('v', (AQ(i) if j < 2 else AK(i)) + 4 * (j & 1))
                        mf.append(mfma(d, FW(par, j), FX(par, i), '0' if first else d))
                    else:
                        d = ('v', AV(i >> 1, j & 1) + 4 * (i & 1))
                        mf.append(mfma(d, FX(par, i), FW(par, j), '0' if first else d))
        return mf

    def step(self, t, kind, xd=None, wd=None, rd='main', extra=None, extra2=None, req=None, pre=None, tail=None, flush=True, vm=None, dmx=None, rdg=2, ins=None):
        k = self.k; par = t & 1; start = len(k.lines)
        n = self.vmwait() if vm is None else vm
        assert n <= 63
        prof = self.opt.get('stprof') and (t >= 27 or t < 3)
        if self.opt.get('stprof') == '2':
            prof = t < 3
            if t in (3, 27): k('s_memtime s[82:83]'); k(f's_sub_u32 m0, 44, s{sCnt}'); k('s_waitcnt lgkmcnt(0)'); k('v_writelane_b32 v0, s82, m0')
        if prof: k('s_memtime s[82:83]')
        k(f's_waitcnt vmcnt({n}) lgkmcnt(0)')
        if prof: k(f'v_writelane_b32 v0, s82, {32 + t - 27 if t >= 27 else 56 + t}')
        k('s_barrier')
        for x in (pre or []): k(x)
        mf = self.mfmas(t, kind, t in (0, 32))
        for pos in sorted(ins or {}, reverse=True): mf[pos:pos] = ins[pos]
        small = kind == 'B'
        rs, g = self.reads(t, rd, dg=1 if small else rdg) if rd else ([], 0)
        rs = rs + (self.book(par, g) if rd else [])
        if small: dm = (self.xdma(par, *xd, g0=2, dg=3) if xd else []) + (self.wdma(par, *wd, g0=14, dg=3) if wd else []) + self.rot(t, 21)
        else: dm = (self.xdma(par, *xd) if xd else []) + (self.wdma(par, *wd) if wd else []) + self.rot(t, 61)
        if dmx: dm = dmx + self.rot(t, 61)
        VMCOST[0] = 1 if small else int(self.opt.get('vmc', 2))
        left = sched(k, mf, [rs, dm + (tail or []), extra or [], extra2 or []], req=req, flush=False, prio=None if small else [1, 3, 2, 0])
        VMCOST[0] = 1
        for st in (left[0], left[1], left[3]): self.emit(st)
        if flush: self.emit(left[2])
        if self.rot(t, 0) and rd:
            body = [l.strip() for l in k.lines[start:]]
            assert body.index(f'v_add_u32 v{vXr+1}, s{sB}, v{vXb+1}') < body.index(f's_mov_b32 s{sB}, s{sC}')
        if xd or wd: self.mark()
        elif not dmx: self.ends.append(self.ends[-1])
        return n, left[2]

    def pack(self, src, dst, scale=None, g=0):
        it = []; c, b = src
        if c == 'a':
            for e in range(8): it.append((f'v_accvgpr_read_b32 v{vTmp + e}, a{b + e}', g))
            b = vTmp
        if scale is not None:
            if g <= 20: it += [(f'v_mul_f32 v{b + e}, s{scale}, v{b + e}', g) for e in range(8)]
            else: it += [(f'v_pk_mul_f32 v[{b + e}:{b + e + 1}], v[{b + e}:{b + e + 1}], s[{scale}:{scale + 1}]', g) for e in range(0, 8, 2)]
        for e in range(4): it.append((f'v_cvt_pk_bf16_f32 v{dst + e}, v{b + 2*e}, v{b + 2*e + 1}', g))
        return it

    def store(self, reg, off, g=0, base=sSt):
        it = []
        if off // 4096 != self.grp:
            self.grp = off // 4096
            it.append((f's_add_u32 s{sSt2}, s{base}, {self.grp * 4096}', g))
        it.append((f'buffer_store_dwordx4 v[{reg}:{reg+3}], v{vSt}, s[{SWS}:{SWS+3}], s{sSt2} offen offset:{off % 4096} sc1', g))
        return it

    def kvprep(self):
        return [f's_lshl_b32 s{sXo}, s{sH}, 11', f's_add_u32 s{sPF}, s{sXo}, {WS_FLAG + FL_KV}', f's_lshl_b32 s{sXo}, s{sROLE}, 3', f's_add_u32 s{sXo}, s{sXo}, s{sP}',
                f's_lshl_b32 s{sXo}, s{sXo}, 7', f's_add_u32 s{sXo}, s{sXo}, s{sPF}', f's_cmp_eq_u32 s{sWV}, 0\ns_cselect_b32 s{sXo}, s{sXo}, {OOB}',
                f'v_mov_b32 v{vXo+1}, 1', f'v_bfe_u32 v{vXo+2}, v{vL16}, 2, 7'] + self.lanes(vXo + 3, 16)

    def plan(self, ta, tc):
        pl = {t: [] for t in range(ta, tc)}
        for n in range(28): pl[ta + n * (tc - ta) // 28].append(4 + n)
        return pl, min(t for t in pl if 7 in pl[t])

    def planned(self, lst, off, g0, span):
        ex = []
        for q, n in enumerate(lst): ex += self.store(32 + 4 * n, off(n), g=g0 + span * q // len(lst))
        return ex

    def flag1(self):
        return [(self.flagstore(sXo), 0), (f'v_mov_b32 v{vXo+1}, 2', 2)]

    def flagstore(self, so):
        return f'buffer_store_dword v{vXo+1}, v{vXo+2}, s[{SWS}:{SWS+3}], s{so} offen sc1'

    def setup(self):
        k = self.k
        k('s_cmp_ge_u32 s2, 256')
        k('s_cbranch_scc1 F_end')
        self.stamp(0)
        k('s_load_dwordx16 s[4:19], s[0:1], 0')
        k('s_load_dwordx4 s[20:23], s[0:1], 64')
        k('s_load_dwordx2 s[24:25], s[0:1], 96')
        k(f's_load_dwordx2 s[{SDBG}:{SDBG+1}], s[0:1], 88')
        k('s_getpc_b64 s[30:31]')
        k('F_pc:')
        k(f'v_lshrrev_b32 v{vTmp+3}, 6, v0')
        k(f'v_and_b32 v{vL}, 63, v0')
        k(f'v_readfirstlane_b32 s{sWV}, v{vTmp+3}')
        k(f'v_lshlrev_b32 v{vSt}, 4, v{vL}')
        self.emit(self.code_pf(vTmp, vTmp + 1))
        k(f's_and_b32 s{sH}, s2, 7')
        k(f's_lshl_b32 s{sH}, s{sH}, 1')
        k(f's_lshr_b32 s{sT}, s2, 7')
        k(f's_add_u32 s{sH}, s{sH}, s{sT}')
        k(f's_lshr_b32 s{sP}, s2, 3')
        k(f's_and_b32 s{sP}, s{sP}, 7')
        k(f's_lshr_b32 s{sROLE}, s2, 6')
        k(f's_and_b32 s{sROLE}, s{sROLE}, 1')
        t0, t1, t2, t3 = vTmp + 4, vTmp + 5, vTmp + 6, vTmp + 7
        k(f'v_lshrrev_b32 v{t0}, 3, v{vL}')
        k(f's_lshl_b32 s{sT}, s{sWV}, 5')
        k(f'v_add_u32 v{t0}, s{sT}, v{t0}')
        k(f'v_lshrrev_b32 v{t1}, 4, v{vL}')
        k(f'v_and_b32 v{t2}, 7, v{vL}')
        k(f'v_xor_b32 v{t1}, v{t1}, v{t2}')
        k(f'v_lshlrev_b32 v{t1}, 4, v{t1}')
        k(f'v_xor_b32 v{t2}, 64, v{t1}')
        for base, stride in ((vXo, 2048), (vXo2, 896)):
            k(f'v_mul_u32_u24 v{t3}, {stride}, v{t0}')
            if base == vXo:
                k(f's_mul_i32 s{sT}, s{sWV}, {224 * 2048}')
                k(f'v_add_u32 v{t3}, s{sT}, v{t3}')
            for i in range(4):
                k(f'v_add_u32 v{base + i}, v{t3}, v{t1 if i % 2 == 0 else t2}')
                if i: k(f'v_add_u32 v{base + i}, {i * (8 * stride - 1024)}, v{base + i}')
        k(f'v_lshrrev_b32 v{t0}, 2, v{vL}')
        k(f'v_and_b32 v{t0}, 3, v{t0}')
        k(f's_and_b32 s{sT}, s{sWV}, 1')
        k(f's_lshl_b32 s{sT}, s{sT}, 17')
        k(f's_lshr_b32 s{sT2}, s{sWV}, 1')
        k(f's_lshl_b32 s{sT2}, s{sT2}, 8')
        k(f's_add_u32 s{sT}, s{sT}, s{sT2}')
        k(f'v_lshlrev_b32 v{t1}, 13, v{t0}')
        k(f'v_add_u32 v{t1}, s{sT}, v{t1}')
        k(f'v_lshrrev_b32 v{t2}, 4, v{vL}')
        k(f'v_lshl_add_u32 v{t1}, v{t2}, 6, v{t1}')
        k(f'v_and_b32 v{t3}, 3, v{vL}')
        k(f'v_lshl_add_u32 v{vWo}, v{t3}, 4, v{t1}')
        k(f'v_add_u32 v{vWo+1}, {4*8192 - 1024}, v{vWo}')
        k(f'v_xor_b32 v{vWo+2}, 32, v{vWo}')
        k(f'v_add_u32 v{vWo+2}, {8*8192 - 2048}, v{vWo+2}')
        k(f'v_add_u32 v{vWo+3}, {4*8192 - 1024}, v{vWo+2}')
        k(f's_lshl_b32 s{sWd}, s{sWV}, 12')
        k(f's_add_u32 s{sA}, s{sWd}, {XB}')
        k(f's_add_u32 s{sB}, s{sWd}, {XB + 32768}')
        k(f's_add_u32 s{sC}, s{sWd}, {XB + 65536}')
        k(f'v_min_u32 v{t0}, 17, v{vL}')
        k(f'v_lshlrev_b32 v{t0}, 7, v{t0}')
        k(f'v_mov_b32 v{t1}, 0')
        k(f's_mul_i32 s{sT2}, s2, {18 * 128}')
        k(f's_add_u32 s{sT2}, s{sT2}, {WS_FLAG}')
        k(f's_cmp_eq_u32 s{sWV}, 0')
        k(f's_cselect_b32 s{sT2}, s{sT2}, {OOB}')
        k('s_waitcnt lgkmcnt(0)')
        srd(k, SX, 6, 2048 * 2048)
        k(f's_cmp_eq_u32 s{sROLE}, 0')
        k(f's_cselect_b32 s10, s12, s10')
        k(f's_cselect_b32 s11, s13, s11')
        srd(k, SW, 10, 1024 * 8192)
        srd(k, SWS, 24, WS_BYTES)
        k(f's_lshl_b32 s{sXo}, s{sP}, 16')
        k(f's_lshl_b32 s{sWo}, s{sH}, 9')
        k(f'buffer_store_dword v{t1}, v{t0}, s[{SWS}:{SWS+3}], s{sT2} offen sc1')
        self.emit(self.wblk(0) + self.xblk(sA, 0) + self.xblk(sA, 1) + self.wblk(16384) + self.xblk(sB, 0))
        if self.PF[0]: self.emit(self.xpf() + self.wpf(64, self.PF[0], vTmp + 6))
        srd(k, SG, SDBG, 256)
        self.ntlb = int(self.opt.get('tlb', 0))
        if self.ntlb >= 1: k(f'buffer_load_dword a194, off, s[{SG}:{SG+3}], 0')
        if self.ntlb >= 2:
            k(f'v_min_u32 v{vTmp+4}, 39, v{vL}'); k(f'v_lshlrev_b32 v{vTmp+4}, 21, v{vTmp+4}')
            k(f's_lshr_b32 s{sT}, s2, 3'); k(f's_add_u32 s{sT}, s{sT}, s{sWV}'); k(f's_cmp_eq_u32 s{sT}, 0'); k(f's_cselect_b32 s{sT}, 0, {OOB}')
            k(f'buffer_load_dword a195, v{vTmp+4}, s[{SWS}:{SWS+3}], s{sT} offen')
        self.wtile_addr()
        k(f's_cmp_eq_u32 s{sROLE}, 0')
        k(f's_cselect_b32 s4, s4, s16')
        k(f's_cselect_b32 s5, s5, s17')
        k(f's_cselect_b32 s8, s8, s18')
        k(f's_cselect_b32 s9, s9, s19')
        k(f's_mov_b32 s{sT}, {448 * 2688}')
        k(f's_cselect_b32 s{sT}, {448 * 8192}, s{sT}')
        srd(k, SX2, 4, 2048 * 896)
        srd(k, SW2, 8, 0)
        k(f's_mov_b32 s{SW2+2}, s{sT}')
        k(f'v_and_b32 v{t0}, 15, v{vL}')
        k(f'v_lshrrev_b32 v{t1}, 4, v{vL}')
        k(f'v_lshrrev_b32 v{t2}, 1, v{t0}')
        k(f'v_xor_b32 v{t2}, v{t2}, v{t1}')
        k(f'v_lshlrev_b32 v{t2}, 4, v{t2}')
        k(f'v_lshl_add_u32 v{t2}, v{t0}, 7, v{t2}')
        k(f's_lshr_b32 s{sT}, s{sWV}, 1')
        k(f's_lshl_b32 s{sT}, s{sT}, 14')
        k(f's_sub_u32 s{sT}, s{sT}, s{sWd}')
        k(f'v_add_u32 v{vXb}, s{sT}, v{t2}')
        k(f'v_xor_b32 v{t2}, 64, v{t2}')
        k(f'v_add_u32 v{vXb+1}, s{sT}, v{t2}')
        k(f'v_lshrrev_b32 v{t2}, 2, v{t0}')
        k(f'v_lshlrev_b32 v{t2}, 6, v{t2}')
        k(f'v_and_b32 v{t3}, 3, v{t0}')
        k(f'v_lshl_add_u32 v{t2}, v{t3}, 3, v{t2}')
        k(f'v_and_b32 v{t3}, 1, v{t1}')
        k(f'v_lshl_add_u32 v{t2}, v{t3}, 5, v{t2}')
        k(f'v_mov_b32 v{vL+1}, v{t2}')
        k(f'v_lshl_add_u32 v{t2}, v{t1}, 11, v{t2}')
        k(f's_and_b32 s{sT}, s{sWV}, 1')
        k(f's_lshl_b32 s{sT}, s{sT}, 13')
        k(f'v_add_u32 v{vWr}, s{sT}, v{t2}')
        k(f'v_xor_b32 v{vWr+1}, 32, v{vWr}')
        k(f'v_add_u32 v{vXr}, s{sA}, v{vXb}')
        k(f'v_add_u32 v{vXr+1}, s{sA}, v{vXb+1}')

    def selmat(self):
        k = self.k
        k(f'v_bfe_u32 v{vTmp+4}, v{vL}, 1, 3')
        k(f'v_lshrrev_b32 v{vTmp+5}, 4, v{vL}')
        k(f'v_lshlrev_b32 v{vTmp+5}, 2, v{vTmp+5}')
        k(f'v_sub_u32 v{vTmp+4}, v{vTmp+4}, v{vTmp+5}')
        k(f'v_and_b32 v{vTmp+5}, 1, v{vL}')
        k(f'v_lshlrev_b32 v{vTmp+5}, 4, v{vTmp+5}')
        k(f'v_mov_b32 v{vTmp+6}, 0x3f80')
        k(f'v_lshlrev_b32 v{vTmp+5}, v{vTmp+5}, v{vTmp+6}')
        for n in range(8):
            k(f'v_cmp_eq_i32 vcc, {(n & 3) - 8 * (n >> 2)}, v{vTmp+4}')
            k('s_nop 1')
            k(f'v_cndmask_b32 v{vTmp+6}, 0, v{vTmp+5}, vcc')
            k(f'v_accvgpr_write_b32 a{196 + n}, v{vTmp+6}')
        k('s_nop 1')

    def xpf(self):
        return [f's_lshl_b32 s{sT}, s2, 2', f's_add_u32 s{sT}, s{sT}, s{sWV}', f's_lshl_b32 s{sT}, s{sT}, 12', f'v_lshlrev_b32 v{vTmp+4}, 2, v{vL16}',
                f'v_and_b32 v{vTmp+4}, {0x800 | (int(self.opt.get("xl", 4)) * 128 - 1)}, v{vTmp+4}',
                f'buffer_load_dword a192, v{vTmp+4}, s[{SX}:{SX+3}], s{sT} offen']

    def wpf(self, row0, per, v):
        return [f's_lshl_b32 s{sT2}, s{sP}, 2', f's_add_u32 s{sT2}, s{sT2}, s{sWV}', f's_mul_i32 s{sT2}, s{sT2}, {per * 8192}', f's_lshl_b32 s{sSpin}, s{sH}, 9',
                f's_add_u32 s{sT2}, s{sT2}, s{sSpin}', f's_add_u32 s{sT2}, s{sT2}, {row0 * 8192}',
                f'v_lshrrev_b32 v{v}, 2, v{vL}', f'v_min_u32 v{v}, {per - 1}, v{v}', f'v_lshlrev_b32 v{v}, 6, v{v}', f'v_and_or_b32 v{v}, v{vL}, 3, v{v}',
                f'v_lshlrev_b32 v{v}, 7, v{v}', f'buffer_load_dword a193, v{v}, s[{SW}:{SW+3}], s{sT2} offen']

    def xblk(self, slot, hf):
        return [f's_add_u32 s{sT}, s{sXo}, {hf * 1024 * 2048}', f's_add_u32 m0, s{slot}, {hf * 16384}'] + \
               [f'buffer_load_dwordx4 v{vXo + i}, s[{SX}:{SX+3}], s{sT} offen offset:{1024*i} lds' for i in range(4)] + \
               ([f's_add_u32 s{sXo}, s{sXo}, 128'] if hf else [])

    def wblk(self, off):
        return [f's_add_u32 m0, s{sWd}, {off & 0xffffffff}'] + \
               [f'buffer_load_dwordx4 v{vWo + i}, s[{SW}:{SW+3}], s{sWo} offen offset:{1024*i} lds' for i in range(4)] + [f's_add_u32 s{sWo}, s{sWo}, {32 * 8192}']

    def wtile_addr(self):
        k = self.k
        k(f's_lshl_b32 s{sSt2}, s{sH}, 1'); k(f's_add_u32 s{sSt2}, s{sSt2}, s{sROLE}'); k(f's_lshl_b32 s{sSt2}, s{sSt2}, 3'); k(f's_add_u32 s{sSt2}, s{sSt2}, s{sP}')
        k(f's_lshl_b32 s{sSt2}, s{sSt2}, 2'); k(f's_add_u32 s{sSt2}, s{sSt2}, s{sWV}')
        k(f's_cmp_lt_u32 s{sSt2}, 896')
        k('s_cbranch_scc0 F_wtb')
        srd(k, SP, 14, 4096 * 896)
        k(f's_and_b32 s{sT}, s{sSt2}, 127'); k(f's_mul_i32 s{sT}, s{sT}, {32 * 896}'); k(f's_lshr_b32 s{sT2}, s{sSt2}, 7')
        if ROT(self): k(f's_and_b32 s{sCnt}, s{sT2}, 1'); k(f's_lshl_b32 s{sCnt}, s{sCnt}, 4'); k(f's_xor_b32 s{sSt2}, s{sSt2}, s{sCnt}')
        k('s_branch F_wtc')
        k('F_wtb:')
        srd(k, SP, 22, 448 * 896)
        k(f's_bfe_u32 s{sT}, s{sSt2}, 0x40001'); k(f's_mul_i32 s{sT}, s{sT}, {28 * 896}')
        k(f's_bfe_u32 s{sT2}, s{sSt2}, 0x20005'); k(f's_lshl_b32 s{sT2}, s{sT2}, 1'); k(f's_and_b32 s{sCnt}, s{sSt2}, 1'); k(f's_add_u32 s{sT2}, s{sT2}, s{sCnt}')
        k('F_wtc:')
        k(f's_lshl_b32 s{sT2}, s{sT2}, 7'); k(f's_add_u32 s3, s{sT2}, s{sT}')
        k(f's_lshl_b32 s{sSt2}, s{sSt2}, 12'); k(f's_add_u32 s{sSt2}, s{sSt2}, {WS_WF}')

    def gemm1(self, kind, lbl, X2, W2):
        k = self.k
        X1 = (SX, vXo, sXo, 1024 * 2048); W1 = (SW, vWo, sWo, 8192)
        e = (2 if self.PF[0] else 0) + self.ntlb
        nx, nw = 3, (6 if kind == 'V' else 2)
        k(f's_lshr_b32 s{sT}, s2, 7'); k(f's_lshl_b32 s{sT}, s{sT}, 6'); k(f's_and_b32 s{sT2}, s2, 63'); k(f's_add_u32 s{sT}, s{sT}, s{sT2}')
        k(f's_lshl_b32 s{sT}, s{sT}, 2'); k(f's_add_u32 s{sT}, s{sT}, s{sWV}')
        k(f's_mul_i32 s{sPa}, s{sT}, {28 * 128}')
        k(f's_mul_i32 s{sPb}, s{sT}, {(56 if kind == "V" else 19) * 128}')
        k(f's_mov_b32 s{sPc}, s3')
        self.selmat()
        k(f'v_min_u32 v{vTmp}, {nx - 1}, v{vL}'); k(f'v_lshlrev_b32 v{vTmp}, 7, v{vTmp}')
        k(f'v_min_u32 v{vTmp+2}, {nw - 1}, v{vL}'); k(f'v_lshlrev_b32 v{vTmp+2}, 7, v{vTmp+2}')
        k(f'v_min_u32 v{vTmp+3}, 2, v{vL}'); k(f'v_mul_u32_u24 v{vTmp+3}, 896, v{vTmp+3}')
        k(f's_lshr_b32 s{sT}, s2, 7'); k(f's_lshl_b32 s{sT}, s{sT}, 3'); k(f's_add_u32 s{sT}, s{sT}, s{sP}'); k(f's_lshl_b32 s{sT}, s{sT}, 2')
        k(f's_add_u32 s{sT}, s{sT}, s{sWV}'); k(f's_lshl_b32 s{sT}, s{sT}, 9'); k(f's_add_u32 s{sT}, s{sT}, {lbl}_x-F_pc')
        k(f'v_min_u32 v{vTmp+4}, 3, v{vL}'); k(f'v_lshlrev_b32 v{vTmp+4}, 7, v{vTmp+4}'); k(f'v_add_u32 v{vTmp+4}, s{sT}, v{vTmp+4}')
        k(f'v_lshlrev_b32 v{vTmp+5}, 8, v{vL}'); k(f'v_mov_b32 v{vTmp+6}, 1'); k(f's_lshl_b32 s{sPF}, s{sWV}, 8'); k(f's_add_u32 s{sPF}, s{sPF}, s2'); k(f's_add_u32 s{sHst}, s{sP}, 5')
        def touch(v, srd_, so, d, g):
            return [(f'buffer_load_dword a{192 + (v & 3)}, v{v}, s[{srd_}:{srd_+3}], s{so} offen', g), (f's_add_u32 s{so}, s{so}, {d}', g + 1)]
        k(f's_waitcnt vmcnt({8 + e})')
        k('s_barrier')
        self.stamp(1)
        self.emit(self.reads(-1, 'main')[0])
        self.step(0, kind, dmx=self.spread(self.xblk(sB, 1) + self.wblk(32768) + self.wblk(49152), 1, 5), vm=4 + e)
        self.step(1, kind, dmx=self.spread(self.xblk(sC, 0) + self.wblk(0) + self.xblk(sC, 1), 1, 5), vm=4)
        self.step(2, kind, dmx=self.spread(self.xblk(sC, 0) + self.wblk(-16384) + self.xblk(sC, 1) + self.wblk(0), 1, 4), vm=12)
        self.ends = [None, None, len(k.lines)]
        k(f's_mov_b32 s{sCnt}, 12')
        k('.p2align 5'); k('s_nop 0'); k('s_nop 0'); k('s_nop 0'); k('s_nop 0')
        k(f'{lbl}:')
        self.step(3, kind, xd=X1, wd=W1, vm=16, extra=touch(vTmp, SX2, sPa, nx * 128, 7) + touch(vTmp + 3, SP, sPc, 3 * 896, 39))
        self.step(4, kind, xd=X1, wd=W1, vm=18, extra=touch(vTmp + 2, SW2, sPb, nw * 128, 7) + [(f'global_load_dword a193, v{vTmp+4}, s[30:31]', 39),
                  (f's_cmp_eq_u32 s{sCnt}, s{sHst}\ns_cselect_b32 s{sSpin}, s{sPF}, {OOB}', 52), (f'buffer_store_byte v{vTmp+6}, v{vTmp+5}, s[{SG}:{SG+3}], s{sSpin} offen sc1', 55)],
                  tail=[(f's_sub_u32 s{sCnt}, s{sCnt}, 1', 61), (f's_cmp_lg_u32 s{sCnt}, 0', 62)])
        k(f's_cbranch_scc1 {lbl}')
        k(f'{lbl}_x:')
        pl = (vXo, vXo + 3, SG, '0')
        raw = [f'v_lshlrev_b32 v{vXo+3}, 2, v{vL}', f'v_and_b32 v{vTmp}, 15, v{vL}', f'v_mul_u32_u24 v{vTmp}, 896, v{vTmp}', f'v_and_or_b32 v{vTmp}, v{vL}, 48, v{vTmp}', self.poll_load(*pl)]
        for rho in range(2):
            raw += [f'buffer_load_dwordx4 a[{176 + 8*rho + 4*cp}:{179 + 8*rho + 4*cp}], v{vTmp}, s[{SP}:{SP+3}], s3 offen offset:{64*cp}' for cp in range(2)]
            raw.append(f's_add_u32 s3, s3, {16 * 896}')
        self.step(27, kind, xd=X2, wd=W1, extra=self.spread(raw, 7, 8))
        self.step(28, kind, xd=X2, wd=W2)
        self.step(29, kind, xd=X2, wd=W2, extra=self.spread(self.wphi(), 13, 2) if kind == 'K' else None)
        ins = {}; ex = []
        for j in range(4):
            ins[1 + 13 * j] = [mfma(('v', vTmp + 4 * rho), ('a', 176 + 8 * rho + 4 * (j >> 1)), ('a', 196 + 4 * (j & 1)), '0') for rho in range(2)]
            ex += self.pack(('v', vTmp), vTmp, g=8 + 15 * j)
            ex.append((f'buffer_store_dwordx4 v[{vTmp}:{vTmp+3}], v{vSt}, s[{SWS}:{SWS+3}], s{sSt2} offen offset:{1024*j} sc1', 8 + 15 * j))
        self.step(30, kind, xd=X2, wd=W2, pre=self.poll_check(*pl, 0x01010101), ins=ins, extra=ex, extra2=[(x, 56) for x in self.kvprep()], req={15 * j - 1: [(2, 5 * j)] for j in (1, 2, 3)})

    def wphi(self):
        k = K()
        t0, t1, t2, t3 = vTmp + 4, vTmp + 5, vTmp + 6, vTmp + 7
        srd(k, SF, 20, 16 * 28 * 28 * 2)
        k(f'v_and_b32 v{t0}, 15, v{vL}')
        k(f'v_lshrrev_b32 v{t1}, 4, v{vL}')
        k(f'v_cmp_eq_u32 s[{sM3}:{sM3+1}], 3, v{t1}')
        k(f'v_cmp_eq_u32 s[{sM28}:{sM28+1}], 12, v{t0}')
        k(f'v_cmp_lt_u32 vcc, 11, v{t0}')
        k(f'v_mul_u32_u24 v{t1}, 224, v{t1}')
        k(f'v_lshl_add_u32 v{t0}, v{t0}, 1, v{t1}')
        k(f'v_mov_b32 v{vTmp+3}, {OOB}')
        k(f'v_add_u32 v{t1}, 32, v{t0}')
        k(f'v_cndmask_b32 v{t1}, v{t1}, v{t0}, vcc')
        k(f'v_cndmask_b32 v{t2}, v{t0}, v{vTmp+3}, s[{sM3}:{sM3+1}]')
        k(f'v_cndmask_b32 v{t3}, v{t1}, v{vTmp+3}, s[{sM3}:{sM3+1}]')
        k(f's_mul_i32 s{sPa}, s{sBH}, 1568')
        for fs in range(2):
            for e in range(8):
                v = [[t0, t2], [t1, t3]][fs][e >> 2]
                k(f'buffer_load_ushort a{160 + 8*fs + e}, v{v}, s[{SF}:{SF+3}], s{sPa} offen offset:{(e >> 2)*896 + (e & 3)*56}')
        return [l.strip() for l in k.lines]

    def kv_base(self, wcshift, add):
        k = self.k
        k(f's_lshl_b32 s{sSt}, s{sH}, 21')
        k(f's_lshl_b32 s{sT}, s{sP}, 15')
        k(f's_add_u32 s{sSt}, s{sSt}, s{sT}')
        k(f's_lshr_b32 s{sT}, s{sWV}, 1')
        k(f's_lshl_b32 s{sT}, s{sT}, 20')
        k(f's_add_u32 s{sSt}, s{sSt}, s{sT}')
        k(f's_and_b32 s{sT}, s{sWV}, 1')
        k(f's_lshl_b32 s{sT}, s{sT}, {wcshift}')
        k(f's_add_u32 s{sSt}, s{sSt}, s{sT}')
        if add: k(f's_add_u32 s{sSt}, s{sSt}, {add}')

    def role_vq(self):
        k = self.k
        X2 = (SX2, vXo2, sX2o, f's{sXd}'); W2 = (SW2, vWo, sW2o, 8192)
        k(f's_lshl_b32 s{sW2o}, s{sH}, 9')
        k(f's_sub_u32 s{sT}, 15, s{sP}')
        k(f's_mul_i32 s{sX2o}, s{sT}, {128 * 896}')
        k(f's_mul_i32 s{sXd}, s{sP}, {128 * 896}')
        k(f's_sub_u32 s{sXd}, s{sXd}, s{sX2o}')
        self.kv_base(13, WS_KV + 16384)
        self.gemm1('V', 'F_vloop', X2, W2)
        voff = lambda p: pair_pos('V', p)[0] * 262144 + pair_pos('V', p)[1] * 1024
        self.grp = None
        pre = [f's_lshr_b32 s{sT}, s{sWV}, 1', f's_lshl_b32 s{sT}, s{sT}, 14', f's_lshl_b32 s{sSt2}, s{sWV}, 12', f's_sub_u32 s{sT}, s{sSt2}, s{sT}',
               f'v_add_u32 v{vXb}, s{sT}, v{vXb}', f'v_add_u32 v{vXb+1}, s{sT}, v{vXb+1}', f'v_add_u32 v{vXr}, s{sT}, v{vXr}',
               f'v_and_b32 v{vWr}, 0x1fff, v{vWr}', f'v_and_b32 v{vWr+1}, 0x1fff, v{vWr+1}']
        ex = []; cnt = []
        for p in range(32):
            ex += self.pack(acc1(p), 32 + 4 * p, g=2 * p + 6)
            if p % 4 == 3 and p < 16: ex += self.store(32 + 4 * (p >> 2), voff(p >> 2), g=2 * p + 6)
            cnt.append(len(ex))
        _, left = self.step(31, 'V', xd=X2, wd=W2, rd='q', extra=ex, pre=pre, flush=False)
        done = len(ex) - len(left)
        self.stamp(2)
        req = {}
        for jp in range(8):
            top = max(qidx(i, jp) for i in range(4))
            need_ = cnt[top]
            if top >= 12 and need_ > done: req[8 * jp] = [(2, need_ - done)]
        self.step(32, 'Q', xd=X2, wd=W2, rd='q', extra=[(x, 3) for x, _ in left], req=req)
        plan, te = self.plan(int(self.opt.get('tab', 33)), 44)
        pl = (vTmp, vXo + 3, SWS, f's{sPF}')
        for t in range(33, 45):
            ex = []; ex2 = []; pre = None; vm = None
            if t == 42: ex.append((self.poll_load(*pl), 0))
            if plan.get(t): ex += self.planned(plan[t], voff, 6, 48)
            if t == te + 3:
                assert elast < self.ends[-3]
                ex = self.flag1() + ex
            if t == 42: ex2 = [(x, 2) for x in self.att_setup() + self.code_pf(vTmp + 4, vTmp + 5)]
            if t == 43:
                vm = min(self.vmwait(), nvm(k.lines[ppos:])); pre = self.poll_check(*pl, 1)
                ex2 = self.spread(self.k0_dma() + self.unit_dma(1), 2, 5)
            if t == 44: ex2 = self.spread(self.unit_dma(2), 3, 7)
            self.step(t, 'Q', xd=X2 if t <= 40 else None, wd=W2 if t <= 41 else None, rd='q', extra=ex, extra2=ex2, pre=pre, vm=vm)
            if t == te: elast = self.last_store()
            if t == 42: ppos = k.lines.index('    ' + self.poll_load(*pl)) + 1
            if t == 43: u0 = len(k.lines)
            if t in (38, 43, 44): self.stamp({38: 4, 43: 14, 44: 15}[t])
        pre = [f's_lshl_b32 s{sSt}, s{sPO}, 14', f's_add_u32 s{sSt}, s{sSt}, {WS_Q}'] + self.ring_rd()
        ex = []; self.grp = None
        q1 = {}; na = 0
        for n, jp in enumerate(JLAST):
            for i in range(2):
                src = acc2(qidx(i, jp))
                if src[0] == 'v': q1[i, jp] = src[1]
                else: q1[i, jp] = 128 + 4 * na; na += 1
                ex += self.pack(src, q1[i, jp], g=4 * n + 8) + self.store(q1[i, jp], i * 8192 + jp * 1024, g=4 * n + 8)
        wl = (vWo, vWo + 1, SWS, f's{sWt}')
        self.step(45, 'Q', rd=None, extra=[(self.flagstore(sXo), 0)] + [(x, 1) for x in self.lanes(vWo + 1, 8) + [self.poll_load(*wl)]] + ex, pre=pre, vm=nvm(k.lines[u0:]))
        q0 = len(k.lines)
        self.emit(self.kreads())
        body = []
        for jp in JLAST:
            for i in range(2, 4): body += [x for x, _ in self.pack(acc2(qidx(i, jp)), 64 + 32 * (i - 2) + 4 * jp)]
        for jp in range(8):
            for i in range(2): body += [f'v_accvgpr_write_b32 a{32*i + 4*jp + e}, v{q1[i, jp] + e}' for e in range(4)]
        sched(k, body, [self.spread(self.unit_dma(3) + self.ring_start(), 20, 20)], vmax=1, tmax=1)
        k(f's_waitcnt vmcnt({nvm(k.lines[q0:])})')
        k(self.flagstore(sFl))
        self.emit(self.poll_check(*wl, 1))
        self.stamp(3)

    def spread(self, items, g0, dg):
        out = []; g = g0
        for x in items:
            x = x[0] if isinstance(x, tuple) else x
            if x.startswith('buffer'): out.append((x, g)); g += dg
            else: out.append((x, max(0, g - 2)))
        return out

    def role_kb(self):
        k = self.k
        t0, t1, t2, t3 = vTmp + 4, vTmp + 5, vTmp + 6, vTmp + 7
        X2 = (SX2, vXo2, sX2o, 128 * 896); W2 = (SW2, vWo2, sW2o, 2688, 2)
        if int(self.opt.get('bmap', 1)):
            k(f's_and_b32 s{sBH}, s2, 1'); k(f's_lshl_b32 s{sBH}, s{sBH}, 3'); k(f's_add_u32 s{sBH}, s{sBH}, s{sP}')
            k(f's_and_b32 s{sBR}, s2, 6'); k(f's_lshr_b32 s{sT}, s2, 7'); k(f's_add_u32 s{sBR}, s{sBR}, s{sT}')
        else:
            k(f's_mov_b32 s{sBH}, s{sH}'); k(f's_mov_b32 s{sBR}, s{sP}')
        k(f's_mul_i32 s{sX2o}, s{sBR}, {256 * 896}')
        k(f's_mul_i32 s{sW2o}, s{sBH}, 56')
        k(f's_mov_b32 s{sScale}, {f32(LOG2E / 16)}')
        k(f's_mov_b32 s{sScale + 1}, s{sScale}')
        self.kv_base(12, WS_KV)
        k(f'v_lshrrev_b32 v{t0}, 2, v{vL}')
        k(f'v_mul_u32_u24 v{t0}, 2688, v{t0}')
        k(f's_mul_i32 s{sT}, s{sWV}, 896')
        k(f's_cmp_eq_u32 s{sWV}, 3')
        k(f's_cselect_b32 s{sT}, {OOB}, s{sT}')
        k(f'v_add_u32 v{t0}, s{sT}, v{t0}')
        k(f'v_lshrrev_b32 v{t1}, 5, v{vL}')
        k(f'v_lshlrev_b32 v{t1}, 1, v{t1}')
        k(f'v_and_b32 v{t2}, 3, v{vL}')
        k(f'v_xor_b32 v{t1}, v{t1}, v{t2}')
        k(f'v_lshl_add_u32 v{vWo2}, v{t1}, 4, v{t0}')
        k(f'v_add_u32 v{vWo2+1}, {16 * 2688 - 1024}, v{vWo2}')
        self.gemm1('K', 'F_kloop', X2, W2)
        koff = lambda p: (pair_pos('K', p)[0] >> 1) * 262144 + (pair_pos('K', p)[0] & 1) * 8192 + pair_pos('K', p)[1] * 1024
        pre = [f's_and_b32 s{sT}, s{sWV}, 1', f's_lshl_b32 s{sT}, s{sT}, 13',
               f'v_add_u32 v{vXb}, s{sT}, v{vXb}', f'v_add_u32 v{vXb+1}, s{sT}, v{vXb+1}', f'v_add_u32 v{vXr}, s{sT}, v{vXr}',
               f'v_lshrrev_b32 v{t1}, 4, v{vL}', f'v_lshl_add_u32 v{vWr}, v{t1}, 9, v{vL+1}', f'v_xor_b32 v{vWr+1}, 32, v{vWr}']
        ex = []; self.grp = None; nxt = 0
        for p in range(32):
            ex += self.pack(acc1(p), 32 + 4 * p, scale=sScale, g=2 * p + 6)
            if p % 4 == 3 and p >= 16: ex += self.store(32 + 4 * nxt, koff(nxt), g=2 * p + 6); nxt += 1
        self.step(31, 'K', xd=X2, wd=W2, rd='b', extra=ex, pre=pre)
        self.stamp(2)
        plan, te = self.plan(32, int(self.opt.get('tca', 45))); tb = te + 1; tflag = te + 4
        pl = (vTmp, vXo + 3, SWS, f's{sPF}')
        for t in range(32, 46):
            ex = self.planned(plan[t], koff, 1, 12) if plan.get(t) else []
            if t == tb: elast = self.last_store()
            if t == tflag:
                assert elast < self.ends[-3]
                ex = self.flag1() + ex
            if t == 42: ex += [(x, 4) for x in self.code_pf(vTmp + 4, vTmp + 5)]
            if t == 44: ex += [(x, 4) for x in self.att_setup()]
            if t == 45: ex += [(self.poll_load(*pl), 0)]
            self.step(t, 'B', xd=X2 if t <= 40 else None, wd=W2 if t <= 41 else None, rd='b' if t < 45 else None, extra=ex)
            if t == tflag: self.stamp(15)
        assert tflag <= 44
        self.stamp(4)
        self.features(pl)

    def features(self, pl):
        k = self.k
        t0, t1, t2, t3 = vTmp + 4, vTmp + 5, vTmp + 6, vTmp + 7
        WP = 144; BF = 96
        for n in range(16): k(f'v_accvgpr_read_b32 v{128 + n}, a{160 + n}')
        for n in range(8): k(f'v_lshl_or_b32 v{WP + n}, v{128 + 2*n + 1}, 16, v{128 + 2*n}')
        for n in range(8): self.emit(self.pack(('v', 160 + 8 * n), BF + 4 * n))
        k('s_nop 1')
        T = lambda n: 32 + 8 * n
        for n in range(8):
            for fs in range(2): k(mfma(('v', T(n) + 4 * fs), ('v', WP + 4 * fs), ('v', BF + 4 * n), '0'))
        k(f'v_mov_b32 v{t3}, 0x3f803f80')
        k(f's_lshl_b32 s{sT}, s{sWV}, 12')
        k(f's_add_u32 s{sT}, s{sT}, {VBO}')
        k(f'v_add_u32 v{t2}, s{sT}, v{vSt}')
        for ip in range(2):
            for j in range(2):
                b = AV(ip, j)
                self.emit(self.pack(('v', b), b))
                if j == 1:
                    for e in range(4): k(f'v_cndmask_b32 v{b + e}, v{b + e}, v{t3}, s[{sM28}:{sM28+1}]')
                k(f'ds_write_b128 v{t2}, v[{b}:{b+3}] offset:{ip*2048 + j*1024}')
        k('s_waitcnt vmcnt(0)')
        self.emit(self.poll_check(*pl, 1))
        self.stamp(5)
        E = lambda n: 160 + 8 * n
        BP, BN, TS, NI = 96, 104, 112, vTmp + 1
        SC = f's[{sScale}:{sScale+1}]'
        k(f's_mov_b32 s{sScale}, {f32(LOG2E)}')
        k(f's_mov_b32 s{sScale+1}, s{sScale}')
        k(f'v_mov_b32 v{NI}, 0xff800000')
        def reduce4(ops, mids):
            ch = []
            for X, op, mid in zip((BP, BN), ops, mids):
                x = [X + 2 * n for n in range(4)]
                ch.append([[f'v_permlane32_swap_b32 v{x[0]}, v{x[2]}', f'v_permlane32_swap_b32 v{x[1]}, v{x[3]}'],
                           [f'{op} v{x[0]}, v{x[0]}, v{x[2]}', f'{op} v{x[1]}, v{x[1]}, v{x[3]}'], ['s_nop 0'],
                           [f'v_permlane16_swap_b32 v{x[0]}, v{x[1]}'], [f'{op} v{x[0]}, v{x[0]}, v{x[1]}'], [mid(x[0])],
                           [f'v_mov_b32 v{x[1]}, v{x[0]}'], ['s_nop 0'], [f'v_permlane16_swap_b32 v{x[0]}, v{x[1]}'],
                           [f'v_mov_b32 v{x[2]}, v{x[0]}', f'v_mov_b32 v{x[3]}, v{x[1]}'], ['s_nop 0'],
                           [f'v_permlane32_swap_b32 v{x[0]}, v{x[2]}', f'v_permlane32_swap_b32 v{x[1]}, v{x[3]}']])
            out = ['s_nop 1']
            for a_, b_ in zip(*ch): out += a_ + (b_ if a_ != ['s_nop 0'] else [])
            return out
        def group(n0):
            L = []
            for nm, X in (('max', BP), ('min', BN)):
                L += [f'v_{nm}3_f32 v{X + 2*n}, v{T(n0+n)}, v{T(n0+n)+1}, v{T(n0+n)+2}' for n in range(4)]
                for e in (3, 5): L += [f'v_{nm}3_f32 v{X + 2*n}, v{X + 2*n}, v{T(n0+n)+e}, v{T(n0+n)+e+1}' for n in range(4)]
                L += [f'v_{nm}_f32 v{X + 2*n}, v{X + 2*n}, v{T(n0+n)+7}' for n in range(4)]
            L += reduce4(('v_max_f32', 'v_min_f32'), (lambda x: f'v_mul_f32 v{x}, s{sScale}, -v{x}', lambda x: f'v_mul_f32 v{x}, s{sScale}, v{x}'))
            L += [f'v_cndmask_b32 v{X + 2*n + 1}, v{X + 2*n}, v{NI}, s[{sM3}:{sM3+1}]' for X in (BP, BN) for n in range(4)]
            for n in range(4):
                t, e_ = T(n0 + n), E(n0 + n)
                for X, d, ng in ((BN, e_, 1), (BP, t, 0)):
                    for e in range(0, 8, 2):
                        h = e >> 2
                        L.append(f'v_pk_fma_f32 v[{d+e}:{d+e+1}], v[{t+e}:{t+e+1}], {SC}, v[{X + 2*n}:{X + 2*n + 1}] op_sel:[0,0,{h}] op_sel_hi:[1,1,{h}] neg_lo:[{ng},0,0] neg_hi:[{ng},0,0]')
                L += [f'v_exp_f32 v{d+e}, v{d+e}' for d in (e_, t) for e in range(8)]
            pairs = [(X, Y, n) for X, Y in ((BN, E), (BP, T)) for n in range(4)]
            L += [f'v_pk_add_f32 v[{X + 2*n}:{X + 2*n + 1}], v[{Y(n0+n)}:{Y(n0+n)+1}], v[{Y(n0+n)+2}:{Y(n0+n)+3}]' for X, Y, n in pairs]
            for e in (4, 6): L += [f'v_pk_add_f32 v[{X + 2*n}:{X + 2*n + 1}], v[{X + 2*n}:{X + 2*n + 1}], v[{Y(n0+n)+e}:{Y(n0+n)+e+1}]' for X, Y, n in pairs]
            L += [f'v_add_f32 v{X + 2*n}, v{X + 2*n}, v{X + 2*n + 1}' for X, Y, n in pairs]
            L += reduce4(('v_add_f32', 'v_add_f32'), (lambda x: f'v_rcp_f32 v{x}, v{x}',) * 2)
            for n in range(4):
                for sg, (X, Y) in enumerate(((BP, T), (BN, E))):
                    y = Y(n0 + n)
                    L += [f'v_pk_mul_f32 v[{y+e}:{y+e+1}], v[{y+e}:{y+e+1}], v[{X + 2*n}:{X + 2*n + 1}] op_sel_hi:[1,0]' for e in range(0, 8, 2)]
                    d = y if n0 else 64 + 8 * n + 4 * sg
                    L += [x for x, _ in self.pack(('v', y), d)]
                    if n0: L += [f'ds_write_b64 v{t0 + 2*sg + fs}, v[{y+2*fs}:{y+2*fs+1}] offset:{n*2048}' for fs in range(2)]
            return L
        k(f'v_and_b32 v{t0}, 15, v{vL}')
        k(f'v_bfe_u32 v{t1}, v{vL}, 1, 2')
        k(f'v_lshlrev_b32 v{t1}, 5, v{t1}')
        k(f'v_lshl_add_u32 v{t0}, v{t0}, 7, v{t1}')
        k(f'v_lshrrev_b32 v{t1}, 4, v{vL}')
        k(f'v_lshl_add_u32 v{t0}, v{t1}, 3, v{t0}')
        k(f'v_add_u32 v{t0}, s{sW8}, v{t0}')
        for un in range(1, 4): k(f'v_xor_b32 v{t0 + un}, {32 * un}, v{t0}')
        ql = (vTmp + 3, vXo + 2, SWS, f's{sWo}')
        k(f's_lshl_b32 s{sWo}, s{sPO}, 7')
        k(f's_add_u32 s{sWo}, s{sWo}, {WS_FLAG + FL_Q}')
        k(f's_lshl_b32 s{sSo}, s{sPO}, 14')
        k(f's_add_u32 s{sSo}, s{sSo}, {WS_Q}')
        wl = (vWo, vWo + 1, SWS, f's{sWt}')
        self.emit(self.lanes(vWo + 1, 8))
        fill = self.spread(self.k0_dma() + self.unit_dma(1) + self.unit_dma(2) + [self.poll_load(*wl), self.poll_load(*ql)] + self.ring_rd(), 2, 12)
        sched(k, group(4), [fill], vmax=1, tmax=1)
        k(f'v_lshrrev_b32 v{vTmp}, 2, v{vL}')
        k(f'v_bfe_u32 v{vTmp+2}, v{vL}, 3, 2')
        k(f'v_xor_b32 v{vTmp+2}, s{sWV}, v{vTmp+2}')
        k(f'v_lshlrev_b32 v{vTmp+2}, 5, v{vTmp+2}')
        k(f'v_lshl_add_u32 v{vTmp}, v{vTmp}, 7, v{vTmp+2}')
        k(f'v_and_b32 v{vTmp+2}, 3, v{vL}')
        k(f'v_lshl_add_u32 v{vTmp}, v{vTmp+2}, 3, v{vTmp}')
        k(f'v_add_u32 v{vTmp+2}, {VBO}, v{vSt}')
        k('s_waitcnt vmcnt(10) lgkmcnt(0)')
        k('s_barrier')
        k(self.flagstore(sXo))
        for kb in range(8):
            for rho in range(2): k(f'ds_read_b64_tr_b16 a[{128 + 4*kb + 2*rho}:{129 + 4*kb + 2*rho}], v{vTmp} offset:{kb*4096 + rho*2048}')
            for j in range(2): k(f'ds_read_b128 a[{176 + 8*kb + 4*j}:{179 + 8*kb + 4*j}], v{vTmp+2} offset:{kb*2048 + j*1024}')
        self.emit(self.kreads())
        self.stamp(6)
        k('s_waitcnt vmcnt(1)')
        self.emit(self.poll_check(*wl, 1))
        self.emit(self.poll_check(*ql, 1))
        self.stamp(14)
        qk_ = K(); save = self.k; self.k = qk_; self.gload('a', 0, sSo); self.k = save
        fill = self.spread([l.strip() for l in qk_.lines] + self.unit_dma(3) + self.ring_start(), 2, 11)
        sched(k, group(0), [fill], vmax=1, tmax=1)
        k(f's_lshl_b32 s{sSt}, s{sBH}, 16')
        k(f's_lshl_b32 s{sT}, s{sBR}, 13')
        k(f's_add_u32 s{sSt}, s{sSt}, s{sT}')
        k(f's_lshl_b32 s{sT}, s{sWV}, 10')
        k(f's_add_u32 s{sSt}, s{sSt}, s{sT}')
        k(f's_add_u32 s{sSt}, s{sSt}, {WS_KVP}')
        k('s_waitcnt lgkmcnt(0)')
        k('s_barrier')
        for kb in range(8):
            for j in range(2):
                d = ('v', 112 + 4 * j)
                k(mfma(d, ('a', 128 + 4 * kb), ('a', 176 + 8 * kb + 4 * j), '0' if kb == 0 else d))
        k('s_nop 7')
        self.grp = None
        for j in range(2): self.emit(self.store(112 + 4 * j, j * 4096))
        k('s_waitcnt vmcnt(10)')
        self.stamp(3)
```

```python
from fz_regs import *

BIAS = 24.0
vRd, vL4, vZ, vNinf = 1, 2, 3, 4
v1 = vNinf
vPl, vH = 5, 6
vDump = 14
vOne, vLse = 8, 12
vS, vP, vNM, vLs, vT = 16, 32, 40, 48, 56
vB, vO = 64, 128
aQ, aK, aV = 0, 64, 128
S = lambda kt, u: vS + 8 * u + 4 * kt
O = lambda dt, u: vO + 64 * u + 4 * dt

class P2:
    def att_setup(self):
        split = int(self.opt.get('split', 33))
        L = [f's_lshl_b32 s{sHB}, s{sH}, 21', f's_lshl_b32 s{sW8}, s{sWV}, 13', f's_mov_b32 s{sOOB}, {OOB}', f's_mov_b32 s{sBig}, {f32(2.0 ** 100)}',
             f's_sub_u32 s{sQT}, 15, s{sP}', f's_lshl_b32 s{sT}, s{sQT}, 2', f's_min_u32 s{sT2}, s{sT}, {split}',
             f's_lshl_b32 s{sPO}, s{sH}, 3', f's_add_u32 s{sPO}, s{sPO}, s{sP}', f's_lshl_b32 s{sPO}, s{sPO}, 2', f's_add_u32 s{sPO}, s{sPO}, s{sWV}',
             f's_lshl_b32 s{sFl}, s{sPO}, 7']
        if self.role == 'A':
            L += [f's_mov_b32 s{sN}, s{sT2}', f's_mov_b32 s{sT0}, 0', f's_mov_b32 s{sDiag}, 0', f's_mov_b32 s{sMode}, 2', f's_mov_b32 s{sNext}, 0',
                  f's_mov_b32 s{sFj}, s{sOOB}', f's_mov_b32 s{sFc2}, 64', f's_lshl_b32 s{sFl}, s{sBH}, 3', f's_add_u32 s{sFl}, s{sFl}, s{sBR}', f's_lshl_b32 s{sFl}, s{sFl}, 2',
                  f's_add_u32 s{sFl}, s{sFl}, s{sWV}', f's_lshl_b32 s{sFl}, s{sFl}, 7', f's_add_u32 s{sFl}, s{sFl}, {WS_FLAG + FL_B1}']
        else:
            L += [f's_add_u32 s{sN}, s{sT}, 4', f's_sub_u32 s{sN}, s{sN}, s{sT2}', f's_mov_b32 s{sT0}, s{sT2}', f's_mov_b32 s{sDiag}, 1',
                  f's_mov_b32 s{sMode}, 1', f's_mov_b32 s{sNext}, 1', f's_lshl_b32 s{sFc2}, s{sP}, 2', f's_add_u32 s{sFc2}, s{sFc2}, 4',
                  f's_add_u32 s{sFj}, s{sHB}, s{sW8}', f's_add_u32 s{sFj}, s{sFj}, 16384', f's_lshr_b32 s{sT}, s{sWV}, 1', f's_lshl_b32 s{sT}, s{sT}, 15',
                  f's_sub_u32 s{sFj}, s{sFj}, s{sT}', f's_add_u32 s{sFl}, s{sFl}, {WS_FLAG + FL_Q}']
        L += [f's_lshr_b32 s{sT}, s{sWV}, 1', f's_sub_u32 s{sFc}, s{sN}, s{sT}', f's_lshl_b32 s{sF}, s{sT0}, 15', f's_add_u32 s{sF}, s{sF}, s{sHB}']
        L += [f's_lshl_b32 s{sT}, s{sROLE}, 3', f's_add_u32 s{sT}, s{sT}, s{sP}', f's_lshl_b32 s{sT}, s{sT}, 1', f's_lshr_b32 s{sRT}, s2, 7',
              f's_add_u32 s{sT}, s{sT}, s{sRT}', f's_lshr_b32 s{sCc}, s{sT}, 2', f's_and_b32 s{sT}, s{sT}, 3', f's_and_b32 s{sRT}, s2, 7',
              f's_lshl_b32 s{sRT}, s{sRT}, 2', f's_add_u32 s{sRT}, s{sRT}, s{sT}', f's_lshl_b32 s{sT}, s{sCc}, 2', f's_add_u32 s{sT}, s{sT}, s{sWV}',
              f's_lshl_b32 s{sWp}, s{sT}, 17', f's_add_u32 s{sWp}, s{sWp}, {WS_WF}', f's_lshl_b32 s{sWt}, s{sT}, 10', f's_add_u32 s{sWt}, s{sWt}, {WS_FLAG + FL_KV}']
        return L

    def k0_dma(self):
        return [f's_lshr_b32 s{sT}, s{sW8}, 1', f's_add_u32 s{sT2}, s{sF}, s{sT}', f's_add_u32 m0, s{sT}, 131072'] + \
               [f'buffer_load_dwordx4 v{vL16}, s[{SWS}:{SWS+3}], s{sT2} offen offset:{1024*i} sc1 lds' for i in range(4)] + \
               [f's_add_u32 s{sF}, s{sF}, s{sW8}', f's_add_u32 s{sF}, s{sF}, 16384']

    def unit_dma(self, slot):
        return [f's_add_u32 s{sDs}, s{sW8}, {32768 * slot}'] + [x for x, _ in self.dma([1] * 8)] + [f's_add_u32 s{sF}, s{sF}, 32768', f's_sub_u32 s{sFc}, s{sFc}, 1',
                f's_cmp_eq_u32 s{sFc}, 0\ns_cselect_b32 s{sF}, s{sFj}, s{sF}\ns_cselect_b32 s{sFc}, s{sFc2}, s{sFc}\ns_cselect_b32 s{sFj}, s{sOOB}, s{sFj}']

    def ring_start(self):
        return [f's_mov_b32 s{sDs}, s{sW8}', f's_mov_b32 s{sRs}, 32768']

    def ring_rd(self): return [f'v_add_u32 v{vRd}, {131072 - 16384}, v{vL16}']

    def qk(self, u, c0):
        return [mfma(('v', S(kt, u)), ('a', aK + 32 * kt + 4 * ds), ('a', aQ + 32 * u + 4 * ds),
                     (c0 if c0 else ('v', vNM + 4 * u)) if ds == 0 else ('v', S(kt, u)))
                for ds in range(8) for kt in range(2)]

    def pv(self, u, first):
        m = [mfma(('v', O(dt, u)), ('a', aV + 4 * dt), ('v', vP + 4 * u), '0' if first else ('v', O(dt, u))) for dt in range(16)]
        return m + [mfma(('v', vLs + 4 * u), ('v', vOne), ('v', vP + 4 * u), '0' if first else ('v', vLs + 4 * u))]

    def soft(self, u, g):
        b = vS + 8 * u
        return [(f'v_exp_f32 v{b + e}, v{b + e}', g) for e in range(8)] + \
               [(f'v_cvt_pk_bf16_f32 v{vP + 4*u + e}, v{b + 2*e}, v{b + 2*e + 1}', g) for e in range(4)]

    def vreads(self): return [f'ds_read_b128 a[{aV + 4*n}:{aV + 4*n + 3}], v{vRd} offset:{1024*n}' for n in range(16)]
    def kreads(self):
        return [f'ds_read_b128 a[{aK + 32*kt + 4*ds}:{aK + 32*kt + 4*ds + 3}], v{vRd} offset:{16384 + 8192*kt + 1024*ds}' for ds in range(8) for kt in range(2)]

    def dma(self, gaps):
        it = []
        for grp in range(2):
            g0 = gaps[4 * grp]
            if grp == 0: it.append((f's_mov_b32 m0, s{sDs}', g0 - 1)); so = sF
            else:
                it.append((f's_add_u32 s{sT2}, s{sF}, 4096', g0 - 1)); it.append((f's_add_u32 m0, s{sDs}, 4096', g0 - 1)); so = sT2
            for i in range(4):
                it.append((f'buffer_load_dwordx4 v{vL16}, s[{SWS}:{SWS+3}], s{so} offen offset:{1024*i} {self.opt.get("kvf", "sc1").replace("_", " ")} lds', gaps[4 * grp + i]))
        return it

    def adv(self, g):
        self.uid += 1; L = f'F_sw{self.uid}'
        self.late += [f'{L}:', f's_mov_b32 s{sF}, s{sFj}', f's_mov_b32 s{sFc}, s{sFc2}', f's_mov_b32 s{sFj}, s{sOOB}', f's_cmp_eq_u32 s{sF}, s{sOOB}',
                      f's_cbranch_scc0 {L}r', f's_add_u32 s{sF}, s{sWp}, {4 * 4096}', f's_mov_b32 s{sW0}, s{sRs}', f's_mov_b32 s{sUs}, 8192',
                      f's_mov_b32 s{sFc}, 4096', f's_branch {L}r']
        return [(t, g) for t in (f's_add_u32 s{sF}, s{sF}, s{sUs}', f's_sub_u32 s{sFc}, s{sFc}, 1', f's_cmp_eq_u32 s{sFc}, 0',
                f's_cbranch_scc1 {L}\n{L}r:')]

    def slot_s(self, g):
        return [(t, g) for t in (f's_add_u32 s{sDs}, s{sRs}, s{sW8}', f's_add_u32 s{sRs}, s{sRs}, 32768', f's_and_b32 s{sRs}, s{sRs}, 0x1ffff',
                f's_add_u32 s{sIt}, s{sIt}, 1')]

    def ahead(self):
        k = self.k
        if self.opt.get('itprof'): k('s_memtime s[82:83]')
        if self.opt.get('vfirst'): k(f'v_add_u32 v{vRd}, s{sRs}, v{vL16}')
        k('s_waitcnt vmcnt(16) lgkmcnt(0)')
        if not self.opt.get('vfirst'): k(f'v_add_u32 v{vRd}, s{sRs}, v{vL16}')
        if self.opt.get('itprof'): k(f's_mov_b32 m0, s{sIt}'); k('s_nop 0'); k(f'v_writelane_b32 v{vDump}, s82, m0')
        if not self.opt.get('nobar'): k('s_barrier')

    def mask(self):
        k = self.k
        for u in range(2):
            for r in range(4): k(f'v_cndmask_b32 v{S(u, u) + r}, v{S(u, u) + r}, v{vNinf}, s[{sMK + 2*r}:{sMK + 2*r + 1}]')
        for r in range(4): k(f'v_mov_b32 v{S(1, 0) + r}, v{vNinf}')

    def rowmax(self, dst):
        k = self.k
        for u in range(2): k(f'v_max3_f32 v{dst + u}, v{vS + 8*u}, v{vS + 8*u + 1}, v{vS + 8*u + 2}')
        for e in (3, 5):
            for u in range(2): k(f'v_max3_f32 v{dst + u}, v{dst + u}, v{vS + 8*u + e}, v{vS + 8*u + e + 1}')
        for u in range(2): k(f'v_max_f32 v{dst + u}, v{dst + u}, v{vS + 8*u + 7}')

    def setmax(self, m):
        k = self.k
        for sw in ('v_permlane32_swap_b32', 'v_permlane16_swap_b32'):
            for u in range(2): k(f'v_mov_b32 v{m + 2 + u}, v{m + u}')
            k('s_nop 1')
            for u in range(2): k(f'{sw} v{m + u}, v{m + 2 + u}')
            for u in range(2): k(f'v_max_f32 v{m + u}, v{m + u}, v{m + 2 + u}')
        for u in range(2):
            for r in range(4): k(f'v_sub_f32 v{vNM + 4*u + r}, {f32(-BIAS)}, v{m + u}')

    def tail_streams(self):
        kg = [32, 33, 44, 45, 46, 47, 48] + list(range(49, 58))
        return [(t, g - 32) for t, g in zip(self.kreads(), kg)]

    def it_mid(self):
        k = self.k; o = self.opt
        L = lambda key, d: [int(x) for x in o[key].split('.')] if key in o else d
        self.ahead()
        mf = self.qk(0, None) + self.qk(1, None) + self.pv(0, False) + self.pv(1, False)
        k(mf[0])
        if not o.get('nohook'):
            k(f's_cmp_ge_u32 s{sIt}, s{sHook}')
            k('s_cbranch_scc1 F_hook')
        k('F_hookret:')
        mf = mf[1:]
        if o.get('noones'): mf = [m if f'v[{vOne}:' not in m else 's_nop 0' for m in mf]
        vg = L('vg', [0, 1, 2, 3, 5, 6, 7, 8, 9, 10, 11, 13, 14, 15, 16, 16]); kg = L('kg', [31, 32, 33, 45, 46, 47, 48, 49, 50, 51, 53, 54, 55, 56, 57, 58]); dg = L('dg', [4, 12, 20, 28, 36, 44, 52, 60])
        rd = list(zip(self.vreads(), vg)) + [('s_waitcnt lgkmcnt(0)', 29)] + list(zip(self.kreads(), kg))
        if o.get('nords'): rd = [('s_nop 0', 0)] * 17
        sm = self.soft(0, int(o.get('s0', 17))) + self.soft(1, int(o.get('s1', 34)))
        dm = self.dma(dg)
        if o.get('nodma'): dm = []
        ag = int(o.get('ag', 60))
        dm += self.adv(ag) + self.slot_s(ag + 2) + [(f's_sub_u32 s{sCnt}, s{sCnt}, 1', 62), (f's_cmp_gt_u32 s{sCnt}, s{sDiag}', 62)]
        if o.get('dp', 1):
            VMCOST[0] = 2
            sched(k, mf, [dm, rd, sm], req={31: [(1, 17), (2, 12)], 48: [(2, 24)]})
            VMCOST[0] = 1
        else: sched(k, mf, [rd, sm, dm], req={31: [(0, 17), (1, 12)], 48: [(1, 24)]})

    def it_special(self, first):
        k = self.k
        self.ahead()
        if first: k('F_first:')
        mf = self.qk(0, '0' if first else None) + self.qk(1, '0' if first else None)
        rd = [(t, 2 * n) for n, t in enumerate(self.vreads())]
        def wl(n0, g0, dg):
            it = []
            for n in range(n0, n0 + 8):
                if n % 4 == 0: it.append((f's_add_u32 s{sSo}, s{sWt}, {1024 * n}', g0 + dg * (n - n0) - 1))
                it.append((f'buffer_load_dwordx4 a[{192 + 4*n}:{195 + 4*n}], v{vL16}, s[{SWS}:{SWS+3}], s{sSo} offen offset:{1024 * (n % 4)} sc1', g0 + dg * (n - n0)))
            return it if first else []
        sched(k, mf, [rd, self.dma([1, 5, 9, 13, 17, 21, 25, 29]), wl(0, 3, 4)])
        self.emit(self.adv(0) + self.slot_s(0))
        k(f's_sub_u32 s{sCnt}, s{sCnt}, 1')
        if first:
            k(f's_cmp_ge_u32 s{sCnt}, s{sDiag}')
            k('s_cbranch_scc1 F_nomask')
            self.mask()
            k('F_nomask:')
            self.rowmax(vT); self.setmax(vT)
            for u in range(2):
                for e in range(8): k(f'v_add_f32 v{vS + 8*u + e}, v{vS + 8*u + e}, v{vNM + 4*u}')
        else:
            self.mask()
        self.emit(self.soft(0, 0))
        k('s_waitcnt lgkmcnt(0)')
        k('s_nop 0')
        mf = self.pv(0, first) + self.pv(1, first)
        sched(k, mf, [self.tail_streams(), self.soft(1, 2), wl(8, 1, 4)], req={17: [(1, 12)]})
        if first:
            k('s_waitcnt vmcnt(24)')
            k(f'buffer_store_dword v{v1}, v{vZ}, s[{SWS}:{SWS+3}], s{sFl} offen sc1')

    def it_idle(self, lbl):
        k = self.k
        self.ahead()
        self.emit(self.dma([1] * 8) + self.adv(0) + self.slot_s(0))
        k(f's_sub_u32 s{sRem}, s{sRem}, 1')
        k(f's_cmp_lg_u32 s{sRem}, 0')
        k(f's_cbranch_scc1 {lbl}')
        self.emit(self.kreads())
        k(f'{lbl}:')

    def out_store(self, ustride, merge, fill=None):
        k = self.k
        for u in range(2):
            for ds in range(8):
                b = O(2 * ds, u)
                for e in range(0, 8, 2):
                    k(f'v_pk_mul_f32 v[{b+e}:{b+e+1}], v[{b+e}:{b+e+1}], v[{vT + 2*u}:{vT + 2*u + 1}]')
                if merge:
                    for e in range(4):
                        src = vB + 32 * u + 4 * ds + e
                        k(f'v_lshlrev_b32 v{vS + 2*e}, 16, v{src}')
                        k(f'v_and_b32 v{vS + 2*e + 1}, 0xffff0000, v{src}')
                    for e in range(0, 8, 2):
                        k(f'v_pk_fma_f32 v[{b+e}:{b+e+1}], v[{vS+e}:{vS+e+1}], v[{vT + 4 + 2*u}:{vT + 5 + 2*u}], v[{b+e}:{b+e+1}]')
                for e in range(4): k(f'v_cvt_pk_bf16_f32 v{b + e}, v{b + 2*e}, v{b + 2*e + 1}')
                if ds % 4 == 0: k(f's_add_u32 s{sT2}, s{sSo}, {ustride(u, ds)}')
                k(f'buffer_store_dwordx4 v[{b}:{b+3}], v{vL16}, s[{SWS}:{SWS+3}], s{sT2} offen offset:{1024 * (ds % 4)} {self.opt.get("ctxsc", "sc1")}')
                if fill: self.emit(fill[8 * u + ds])

    def ctx_base(self):
        k = self.k
        k(f's_lshl_b32 s{sSo}, s{sQT}, 20')
        k(f's_lshl_b32 s{sT}, s{sWV}, 18')
        k(f's_add_u32 s{sSo}, s{sSo}, s{sT}')
        k(f's_lshl_b32 s{sT}, s{sH}, 13')
        k(f's_add_u32 s{sSo}, s{sSo}, s{sT}')
        k(f's_add_u32 s{sSo}, s{sSo}, {WS_CTX}')

    def slow(self):
        k = self.k
        k('F_slow:')
        k('s_waitcnt vmcnt(0) lgkmcnt(0)')
        for ps in range(2):
            k(f's_lshl_b32 s{sSo}, s{sT0}, 15')
            k(f's_add_u32 s{sSo}, s{sSo}, s{sHB}')
            k(f's_mov_b32 s{sCnt}, s{sNW}')
            if ps == 0:
                for u in range(2): k(f'v_mov_b32 v{vT + 4 + u}, v{vNinf}')
            else:
                for r in range(128): k(f'v_mov_b32 v{vO + r}, 0')
                for r in range(8): k(f'v_mov_b32 v{vLs + r}, 0')
            k(f'F_slow{ps}:')
            self.gload('a', aK, sSo, n=16 * (1 + ps))
            k(f's_add_u32 s{sSo}, s{sSo}, 32768')
            k(f's_sub_u32 s{sCnt}, s{sCnt}, 1')
            k('s_waitcnt vmcnt(0)')
            for m in self.qk(0, None if ps else '0') + self.qk(1, None if ps else '0'): k(m)
            k('s_nop 7')
            k(f's_cmp_ge_u32 s{sCnt}, s{sDiag}')
            k(f's_cbranch_scc1 F_slown{ps}')
            self.mask()
            k(f'F_slown{ps}:')
            if ps == 0:
                self.rowmax(vT)
                for u in range(2): k(f'v_max_f32 v{vT + 4 + u}, v{vT + 4 + u}, v{vT + u}')
            else:
                self.emit(self.soft(0, 0) + self.soft(1, 0))
                k('s_nop 1')
                for m in self.pv(0, False) + self.pv(1, False): k(m)
            k(f's_cmp_lg_u32 s{sCnt}, 0')
            k(f's_cbranch_scc1 F_slow{ps}')
            if ps == 0: self.setmax(vT + 4)
        self.emit(self.kreads())
        k('s_branch F_checked')

    def segcount(self):
        k = self.k
        k(f's_sub_u32 s{sRem}, 3, s{sWV}')
        k(f's_mul_i32 s{sRem}, s{sRem}, s{sDiag}')
        k(f's_sub_u32 s{sCnt}, s{sN}, s{sRem}')
        k(f's_mov_b32 s{sNW}, s{sCnt}')
        k(f's_cmp_eq_u32 s{sNext}, 0')
        k(f's_cselect_b32 s{sWt}, s{sWp}, s{sOOB}')

    def hooks(self):
        k = self.k
        k('F_hook:')
        for n in (1, 6, 7, 8, 9, 10, 2, 3, 4, 5):
            k(f's_cmp_eq_u32 s{sHst}, {n}'); k(f's_cbranch_scc1 F_hook{n}')
        def done(d):
            k(f's_add_u32 s{sHook}, s{sIt}, {d}'); k(f's_add_u32 s{sHst}, s{sHst}, 1'); k('s_branch F_hookret')
        flag = lambda so: k(f'buffer_store_dword v{v1}, v{vZ}, s[{SWS}:{SWS+3}], s{so} offen sc1')
        kv = (vPl, vH, SWS, f's{sPF}')
        self.emit(self.lanes(vH, 16))
        k(self.poll_load(*kv))
        done(1)
        k('F_hook1:')
        k('s_waitcnt vmcnt(8)')
        self.emit(self.poll_check(*kv, 2))
        k(f's_cmp_eq_u32 s{sP}, 7')
        k(f's_cselect_b32 s{sHst}, 2, 6')
        k(f's_cselect_b32 s{sHook}, 8, 20')
        k(f's_cmp_eq_u32 s{sROLE}, 1')
        k(f's_cselect_b32 s{sHook}, s{sHook}, -1')
        k('s_branch F_hookret')
        PB = 96
        def pload(r0):
            k(f's_lshl_b32 s{sSo}, s{sH}, 16')
            k(f's_lshl_b32 s{sT}, s{sWV}, 11')
            k(f's_add_u32 s{sSo}, s{sSo}, s{sT}')
            k(f's_add_u32 s{sSo}, s{sSo}, {WS_KVP + 8192 * r0}')
            for r in range(4):
                for hf in range(2): k(f'buffer_load_dwordx4 v[{PB + 8*r + 4*hf}:{PB + 8*r + 4*hf + 3}], v{vL16}, s[{SWS}:{SWS+3}], s{sSo} offen offset:{1024*hf} sc1')
                k(f's_add_u32 s{sSo}, s{sSo}, 8192')
        k('F_hook2:')
        k(f's_lshl_b32 s{sSo}, s{sH}, 12')
        k(f's_add_u32 s{sSo}, s{sSo}, {WS_FLAG + FL_B1}')
        self.emit(self.lanes(vH, 32))
        pl = (vPl, vH, SWS, f's{sSo}')
        k(self.poll_load(*pl)); k('s_waitcnt vmcnt(0)')
        self.emit(self.poll_check(*pl, 1))
        pload(0)
        done(2)
        k('F_hook3:')
        for e in range(0, 8, 2): k(f'v_pk_add_f32 v[{vT+e}:{vT+e+1}], v[{PB+e}:{PB+e+1}], v[{PB+8+e}:{PB+9+e}]')
        for r in (2, 3):
            for e in range(0, 8, 2): k(f'v_pk_add_f32 v[{vT+e}:{vT+e+1}], v[{vT+e}:{vT+e+1}], v[{PB+8*r+e}:{PB+8*r+e+1}]')
        pload(4)
        done(2)
        k('F_hook4:')
        k(f's_lshl_b32 s{sSo}, s{sH}, 12')
        k(f's_lshl_b32 s{sT}, s{sWV}, 10')
        k(f's_add_u32 s{sSo}, s{sSo}, s{sT}')
        k(f's_add_u32 s{sSo}, s{sSo}, {WS_KVF}')
        for r in range(4):
            for e in range(0, 8, 2): k(f'v_pk_add_f32 v[{vT+e}:{vT+e+1}], v[{vT+e}:{vT+e+1}], v[{PB+8*r+e}:{PB+8*r+e+1}]')
        for e in range(4): k(f'v_cvt_pk_bf16_f32 v{vT + e}, v{vT + 2*e}, v{vT + 2*e + 1}')
        k(f'buffer_store_dwordx4 v[{vT}:{vT+3}], v{vL16}, s[{SWS}:{SWS+3}], s{sSo} offen sc1')
        done(2)
        k('F_hook5:')
        k(f's_lshl_b32 s{sSo}, s{sH}, 2')
        k(f's_add_u32 s{sSo}, s{sSo}, s{sWV}')
        k(f's_lshl_b32 s{sSo}, s{sSo}, 7')
        k(f's_add_u32 s{sSo}, s{sSo}, {WS_FLAG + FL_KVR}')
        flag(sSo)
        done(6)
        pl = (vPl, vH, SWS, f's{sWt}')
        k('F_hook6:')
        k(f's_lshl_b32 s{sWt}, s{sBH}, 9')
        k(f's_add_u32 s{sWt}, s{sWt}, {WS_FLAG + FL_KVR}')
        self.emit(self.lanes(vH, 4))
        k(self.poll_load(*pl))
        done(1)
        k('F_hook7:')
        k('s_waitcnt vmcnt(8)')
        self.emit(self.poll_check(*pl, 1))
        k(f's_lshl_b32 s{sSo}, s{sBH}, 12')
        k(f's_add_u32 s{sSo}, s{sSo}, {WS_KVF}')
        self.gload('v', PB, sSo, n=4)
        done(2)
        k('F_hook8:')
        k(f's_lshl_b32 s{sSo}, s{sBR}, 2')
        k(f's_add_u32 s{sSo}, s{sSo}, s{sWV}')
        k(f's_lshl_b32 s{sSo}, s{sSo}, 4')
        k(f's_add_u32 s{sSo}, s{sSo}, s{sBH}')
        k(f's_lshl_b32 s{sWt}, s{sSo}, 7')
        k(f's_add_u32 s{sWt}, s{sWt}, {WS_FLAG + FL_O}')
        k(f's_lshl_b32 s{sSo}, s{sSo}, 12')
        k(f's_add_u32 s{sSo}, s{sSo}, {WS_OF}')
        k(f'v_and_b32 v{vH}, 0x3c, v{vL4}')
        k(f'v_add_u32 v{vH}, 192, v{vH}')
        NB = lambda i: (112, 120, 64, 72)[i]
        for i in range(4):
            for j in (1, 0):
                d = ('v', NB(i) + 4 * j)
                for sg in range(2): k(mfma(d, ('v', PB + 8 * j + 4 * sg), ('v', vB + 8 * i + 4 * sg), d if sg else '0'))
        k('s_nop 4')
        for i in range(4): k(f'ds_bpermute_b32 v{vT + 2*i}, v{vH}, v{NB(i) + 4}')
        k('s_waitcnt lgkmcnt(0)')
        for i in range(4): k(f'v_add_f32 v{vT + 2*i}, {f32(1e-6)}, v{vT + 2*i}')
        for i in range(4): k(f'v_rcp_f32 v{vT + 2*i}, v{vT + 2*i}')
        for i in range(4):
            b_ = NB(i)
            for e in range(0, 8, 2): k(f'v_pk_mul_f32 v[{b_+e}:{b_+e+1}], v[{b_+e}:{b_+e+1}], v[{vT + 2*i}:{vT + 2*i + 1}] op_sel_hi:[1,0]')
            for e in range(4): k(f'v_cvt_pk_bf16_f32 v{b_ + e}, v{b_ + 2*e}, v{b_ + 2*e + 1}')
            for e in (2, 3): k(f'v_cndmask_b32 v{b_ + e}, v{b_ + e}, 0, s[{sM3}:{sM3+1}]')
            k(f'buffer_store_dwordx4 v[{b_}:{b_+3}], v{vL16}, s[{SWS}:{SWS+3}], s{sSo} offen offset:{1024*i} sc1')
        k(f's_sub_u32 s{sHook}, s{sN}, 3')
        k(f's_mov_b32 s{sHst}, 9')
        k('s_branch F_hookret')
        pl = (vPl, vZ, SWS, f's{sWt}')
        k('F_hook9:')
        flag(sWt)
        k(f's_lshl_b32 s{sWt}, s{sPO}, 7')
        k(f's_add_u32 s{sWt}, s{sWt}, {WS_FLAG + FL_P}')
        k(self.poll_load(*pl))
        self.emit(self.code_pf(vH, vH + 1))
        k(f'v_xor_b32 v{vH}, 0x8000, v{vH}')
        k(f'global_load_dword v{vH+1}, v{vH}, s[30:31]')
        done(1)
        k('F_hook10:')
        k('s_waitcnt vmcnt(8)')
        self.emit(self.poll_check(*pl, 1))
        k(f's_lshl_b32 s{sT}, s{sPO}, 10')
        k(f's_add_u32 s{sT}, s{sT}, {WS_ML}')
        for u in range(2): k(f'buffer_load_dword v{vLse + u}, v{vL4}, s[{SWS}:{SWS+3}], s{sT} offen offset:{256*u} sc1')
        k(f's_lshl_b32 s{sSo}, s{sPO}, 14')
        k(f's_add_u32 s{sSo}, s{sSo}, {WS_PART}')
        self.gload('v', vB, sSo)
        k(f's_mov_b32 s{sHook}, -1')
        k('s_branch F_hookret')

    def attention(self):
        k = self.k
        k('F_att:')
        k(f'v_lshrrev_b32 v{vL4}, 2, v{vL16}')
        k(f'v_bfe_u32 v{vZ}, v{vL16}, 2, 7')
        k(f'v_mov_b32 v{vNinf}, 0xff800000')
        for r in range(4): k(f'v_mov_b32 v{vOne + r}, 0x3f803f80')
        k(f'v_bfe_u32 v{vLse}, v{vL16}, 4, 4')
        k(f'v_lshrrev_b32 v{vLse+1}, 8, v{vL16}')
        k(f'v_lshlrev_b32 v{vLse+1}, 2, v{vLse+1}')
        for r in range(4):
            k(f'v_cmp_gt_u32 s[{sMK + 2*r}:{sMK + 2*r + 1}], v{vLse+1}, v{vLse}')
            k(f'v_add_u32 v{vLse+1}, 1, v{vLse+1}')
        k(f's_mov_b32 s{sUs}, 32768')
        k(f's_mov_b32 s{sIt}, 0')
        k(f's_mov_b32 s{sHook}, 1')
        k(f's_mov_b32 s{sHst}, 0')
        self.segcount()
        k('s_waitcnt lgkmcnt(0)')
        k(f'v_add_u32 v{vRd}, s{sRs}, v{vL16}')
        k('s_branch F_first')
        k('F_seg:')
        self.segcount()
        self.it_special(True)
        k(f's_cmp_gt_u32 s{sCnt}, s{sDiag}')
        k('s_cbranch_scc0 F_loopend')
        k('.p2align 6')
        for _ in range(int(self.opt.get('al', 4))): k('s_nop 0')
        k('F_loop:')
        self.it_mid()
        k('s_cbranch_scc1 F_loop')
        k('F_loopend:')
        k(f's_cmp_eq_u32 s{sCnt}, 0')
        k('s_cbranch_scc1 F_done')
        self.it_special(False)
        k('F_done:')
        k('s_nop 7')
        k(f'v_cmp_ngt_f32 vcc, s{sBig}, v{vLs}')
        k(f'v_cmp_ngt_f32 s[{sM28}:{sM28+1}], s{sBig}, v{vLs + 4}')
        k('s_nop 0')
        k(f's_or_b64 vcc, vcc, s[{sM28}:{sM28+1}]')
        k('s_cbranch_scc1 F_slow')
        k('F_checked:')
        if self.ts:
            k(f's_cmp_eq_u32 s{sNext}, 0'); k('s_cbranch_scc1 F_ts2'); self.stamp(5); k('F_ts2:'); self.stamp(7)
        k(f's_add_u32 s{sBar}, s{sRem}, s{sNext}')
        k(f's_cmp_lg_u32 s{sBar}, 0')
        k('s_cbranch_scc1 F_nobar')
        k('s_waitcnt lgkmcnt(0)')
        k('s_barrier')
        k('F_nobar:')
        k(f's_cmp_eq_u32 s{sRem}, 0')
        k('s_cbranch_scc1 F_epi')
        self.it_idle('F_epi')
        for u in range(2): k(f'v_rcp_f32 v{vT + 2*u}, v{vLs + 4*u}')
        for u in range(2): k(f'v_log_f32 v{vT + 4 + 2*u}, v{vLs + 4*u}')
        k(f's_cmp_eq_u32 s{sMode}, 2')
        k('s_cbranch_scc1 F_merge')
        for u in range(2): k(f'v_mov_b32 v{vT + 2*u + 1}, v{vT + 2*u}')
        for u in range(2): k(f'v_sub_f32 v{vT + 4 + 2*u}, v{vT + 4 + 2*u}, v{vNM + 4*u}')
        self.ctx_base()
        k(f's_lshl_b32 s{sT}, s{sPO}, 10')
        k(f's_add_u32 s{sT}, s{sT}, {WS_ML}')
        k(f's_lshl_b32 s{sT2}, s{sPO}, 14')
        k(f's_add_u32 s{sT2}, s{sT2}, {WS_PART}')
        k(f's_cmp_eq_u32 s{sMode}, 1')
        k(f's_cselect_b32 s{sT}, s{sT}, s{sOOB}')
        k(f's_cselect_b32 s{sSo}, s{sT2}, s{sSo}')
        k(f's_mov_b32 s{sSt}, 131072')
        k(f's_cselect_b32 s{sSt}, 8192, s{sSt}')
        k(f's_add_u32 s{sSt2}, s{sSt}, 4096')
        for u in range(2): k(f'buffer_store_dword v{vT + 4 + 2*u}, v{vL4}, s[{SWS}:{SWS+3}], s{sT} offen offset:{256*u} sc1')
        self.out_store(lambda u, ds: (ds * 1024 if u == 0 else f's{sSt2 if ds else sSt}'), False)
        k('F_post:')
        k(f's_cmp_eq_u32 s{sRem}, 0')
        k('s_cbranch_scc1 F_post2')
        self.it_idle('F_post1')
        k('s_branch F_post')
        k('F_post2:')
        k(f's_cmp_eq_u32 s{sNext}, 0')
        k('s_cbranch_scc1 F_p3')
        for r in range(64): k(f'v_accvgpr_write_b32 a{aQ + r}, v{vB + r}')
        self.stamp(6)
        k(f's_mov_b32 s{sNext}, 0')
        k(f's_mov_b32 s{sMode}, 0')
        k(f's_mov_b32 s{sT0}, 0')
        k(f's_mov_b32 s{sQT}, s{sP}')
        k(f's_lshl_b32 s{sN}, s{sP}, 2')
        k(f's_add_u32 s{sN}, s{sN}, 4')
        k(f's_add_u32 s{sFl}, s{sFl}, {FL_P - FL_Q}')
        k('s_branch F_seg')
        self.hooks()
        self.slow()
        self.flush_late()
        k('F_merge:')
        k('s_waitcnt vmcnt(16)')
        self.p3_direct('F_mv')
        self.p3_setup()
        for u in range(2): k(f'v_sub_f32 v{vT + 4 + 2*u}, v{vT + 4 + 2*u}, v{vNM + 4*u}')
        for u in range(2): k(f'v_sub_f32 v{vT + 4 + 2*u}, v{vT + 4 + 2*u}, v{vLse + u}')
        for u in range(2): k(f'v_exp_f32 v{vT + 1 + 2*u}, -v{vT + 4 + 2*u}')
        for u in range(2): k(f'v_exp_f32 v{vT + 4 + 2*u}, v{vT + 4 + 2*u}')
        for u in range(2): k(f'v_add_f32 v{vT + 1 + 2*u}, 1.0, v{vT + 1 + 2*u}')
        for u in range(2): k(f'v_add_f32 v{vT + 4 + 2*u}, 1.0, v{vT + 4 + 2*u}')
        for u in range(2): k(f'v_rcp_f32 v{vT + 1 + 2*u}, v{vT + 1 + 2*u}')
        for u in range(2): k(f'v_rcp_f32 v{vT + 4 + 2*u}, v{vT + 4 + 2*u}')
        for u in range(2): k(f'v_mul_f32 v{vT + 2*u}, v{vT + 2*u}, v{vT + 1 + 2*u}')
        for u in range(2): k(f'v_mov_b32 v{vT + 5 + 2*u}, v{vT + 4 + 2*u}')
        for u in range(2): k(f'v_mov_b32 v{vT + 1 + 2*u}, v{vT + 2*u}')
        self.ctx_base()
        self.out_store(lambda u, ds: u * 131072 + ds * 1024, True)
        self.stamp(8)
        k('s_branch F_p3c')
```

```python
from fz_regs import *
from fz2 import vZ, v1, vL4

SO = SX
sXq, sOo, sCf = 58, 61, 62
sM = (63, 65, 74, 75, 69)
vL, vXo, vWr, vOut, vT = 1, 8, 32, 42, 24
AR = lambda s: 16 * ((s + 12) % 16)

class P3:
    def wd3(self, s):
        return [f's_add_u32 m0, s{sM[((s + 6) % 10) >> 1]}, {4096 * (s & 1)}', f's_add_u32 s{sT2}, s{sWp}, {4096 * s}'] + \
               [f'buffer_load_dwordx4 v{vL16}, s[{SWS}:{SWS+3}], s{sT2} offen offset:{1024*n} sc1 lds' for n in range(4)]

    def wr3(self, s):
        return [f'ds_read_b128 a[{AR(s) + 4*j}:{AR(s) + 4*j + 3}], v{vWr + (((s + 6) % 10) >> 1)} offset:{4096 * (s & 1) + 1024*j}' for j in range(4)]

    def wg3(self, s):
        return [f's_add_u32 s{sT2}, s{sWp}, {4096 * s}'] + \
               [f'buffer_load_dwordx4 a[{AR(s) + 4*j}:{AR(s) + 4*j + 3}], v{vL16}, s[{SWS}:{SWS+3}], s{sT2} offen offset:{1024*j} sc1' for j in range(4)]

    def ctxflag(self):
        return f'buffer_store_dword v{v1}, v{vZ}, s[{SWS}:{SWS+3}], s{sCf} offen sc1'

    def p3_setup(self):
        k = self.k
        k(f's_load_dwordx2 s[{SW}:{SW+1}], s[0:1], 80')
        k(f's_lshl_b32 s{sCf}, s{sQT}, 1')
        k(f's_lshr_b32 s{sT}, s{sWV}, 1')
        k(f's_add_u32 s{sCf}, s{sCf}, s{sT}')
        k(f's_lshl_b32 s{sCf}, s{sCf}, 4')
        k(f's_add_u32 s{sCf}, s{sCf}, s{sH}')
        k(f's_lshl_b32 s{sCf}, s{sCf}, 1')
        k(f's_and_b32 s{sT}, s{sWV}, 1')
        k(f's_add_u32 s{sCf}, s{sCf}, s{sT}')
        k(f's_lshl_b32 s{sCf}, s{sCf}, 7')
        k(f's_add_u32 s{sCf}, s{sCf}, {WS_FLAG + FL_CTX}')
        for n in range(4):
            k(f's_add_u32 s{sM[n]}, s{sW0}, {32768 * n}')
            k(f's_and_b32 s{sM[n]}, s{sM[n]}, 0x1ffff')
            k(f's_add_u32 s{sM[n]}, s{sM[n]}, s{sW8}')
        k(f's_add_u32 s{sM[4]}, s{sW8}, 131072')
        k(f'v_lshrrev_b32 v{vL}, 4, v{vL16}')
        for n in range(5): k(f'v_add_u32 v{vWr + n}, s{sM[n]}, v{vL16}')

    def p3_direct(self, lbl):
        k = self.k
        k(f's_cmp_ge_u32 s{sWV}, 2')
        k(f's_cbranch_scc1 {lbl}')
        self.emit(self.wg3(10) + self.wg3(11))
        k(f'{lbl}:')
        self.emit(self.wg3(12) + self.wg3(13))

    def out_a(self):
        k = self.k
        pos = {}
        since = lambda key: nvm(k.lines[pos[key]:])
        def wd(s):
            for x in self.wd3(s): k(x)
            pos['w', s] = len(k.lines)
        nl = 16 + int(self.opt.get('nlds', 10))
        k(f's_lshl_b32 s{sXq}, s{sRT}, 19')
        k(f's_lshl_b32 s{sT}, s{sWV}, 15')
        k(f's_add_u32 s{sXq}, s{sXq}, s{sT}')
        k(f's_add_u32 s{sXq}, s{sXq}, {WS_CTX}')
        k(f's_and_b32 s{sOo}, s{sCc}, {ROT(self)}')
        k(f's_lshl_b32 s{sOo}, s{sOo}, 14')
        k(f's_add_u32 s{sXq}, s{sXq}, s{sOo}')
        k(f's_lshl_b32 s{sOo}, s{sOo}, 1')
        k(f's_sub_u32 s{sOo}, 1024, s{sOo}')
        for i in range(4): k(f'v_add_u32 v{vXo + i}, {131072 * i}, v{vL16}')
        k(f's_lshl_b32 s{sSo}, s{sRT}, 12')
        k(f's_lshl_b32 s{sT}, s{sWV}, 10')
        k(f's_add_u32 s{sSo}, s{sSo}, s{sT}')
        k(f's_add_u32 s{sSo}, s{sSo}, {WS_FLAG + FL_CTX}')
        self.emit(self.lanes(vT + 1, 8))
        k('s_waitcnt vmcnt(8)')
        k(self.ctxflag())
        self.stamp(9)
        pl = (vT, vT + 1, SWS, f's{sSo}')
        for s in range(16, nl):
            if s == nl - 2:
                k(self.poll_load(*pl)); pos['poll'] = len(k.lines)
            wd(s)
        k(f's_waitcnt vmcnt({since("poll")})')
        self.stamp(14)
        self.emit(self.poll_check(*pl, 1))
        self.stamp(10)
        xl = lambda s, i: f'buffer_load_dwordx4 v[{128 + 16*(s % 8) + 4*i}:{131 + 16*(s % 8) + 4*i}], v{vXo + i}, s[{SWS}:{SWS+3}], s{sXq} offen sc1'
        xadv = lambda s: f's_add_u32 s{sXq}, s{sXq}, ' + ('1024' if s != 15 else f's{sOo}')
        for s in range(8):
            for i in range(4): k(xl(s, i))
            k(xadv(s)); pos['x', s] = len(k.lines)
        for s in range(32):
            wn = s + 15 if 1 <= s <= 16 else None
            n = since(('x', s))
            if s >= nl: n = min(n, since(('w', s)))
            k(f's_waitcnt vmcnt({n}) lgkmcnt(0)')
            mf = []
            for i in range(4):
                for j in (range(4) if i % 2 == 0 else range(3, -1, -1)):
                    d = ('v', 64 + 16 * i + 4 * j)
                    mf.append(mfma(d, ('a', AR(s) + 4 * j), ('v', 128 + 16 * (s % 8) + 4 * i), d if s else '0'))
            rd = []
            if wn is not None: rd = [(t, g) for g, t in enumerate(self.wr3(wn) if wn < nl else self.wg3(wn))]
            ld = [(xl(s + 8, i), 4 * i + 3) for i in range(4)] + [(xadv(s + 8), 15)] if s + 8 <= 31 else []
            sched(k, mf, [rd, ld])
            if wn is not None and wn >= nl: pos['w', wn] = len(k.lines)
            pos['x', s + 8] = len(k.lines)
        self.stamp(11)
        k(f'v_add_u32 v{vT}, s{sW8}, v{vL16}')
        k(f'v_and_b32 v{vT+1}, 15, v{vL}')
        k(f'v_lshrrev_b32 v{vT+2}, 4, v{vL}')
        k(f'v_lshlrev_b32 v{vT+3}, 9, v{vT+2}')
        k(f'v_lshl_add_u32 v{vT+3}, v{vT+1}, 4, v{vT+3}')
        k(f's_and_b32 s{sT}, s{sWV}, 1')
        k(f's_lshl_b32 s{sT}, s{sT}, 12')
        k(f's_lshr_b32 s{sT2}, s{sWV}, 1')
        k(f's_lshl_b32 s{sT2}, s{sT2}, 15')
        k(f's_add_u32 s{sT}, s{sT}, s{sT2}')
        k(f'v_add_u32 v{vT+3}, s{sT}, v{vT+3}')
        for n in range(16): k(f'ds_write_b128 v{vT}, v[{64 + 4*n}:{67 + 4*n}] offset:{1024*(n & 7) + 32768*(n >> 3)}')
        k(f'v_mul_u32_u24 v{vOut}, 1792, v{vT+1}')
        k(f'v_lshl_add_u32 v{vOut}, v{vT+2}, 4, v{vOut}')
        k(f's_lshl_b32 s{sT}, s{sRT}, 2')
        k(f's_add_u32 s{sT}, s{sT}, s{sWV}')
        k(f's_mul_i32 s{sOo}, s{sT}, {16 * 1792}')
        k(f's_lshl_b32 s{sT}, s{sCc}, 7')
        k(f's_add_u32 s{sOo}, s{sOo}, s{sT}')
        k('s_waitcnt lgkmcnt(0)')
        k('s_barrier')
        for w in range(4):
            for hf in range(2):
                for c in range(2):
                    d = 128 + 16 * w + 8 * hf + 4 * c
                    k(f'ds_read_b128 v[{d}:{d+3}], v{vT + 3} offset:{w*8192 + hf*2048 + c*256}')
        for w in range(1, 4):
            k(f's_waitcnt lgkmcnt({12 - 4 * w})')
            for e in range(16): k(f'v_add_f32 v{128 + e}, v{128 + e}, v{128 + 16*w + e}')
        for e in range(8): k(f'v_cvt_pk_bf16_f32 v{128 + e}, v{128 + 2*e}, v{129 + 2*e}')
        for hf in range(2): k(f'buffer_store_dwordx4 v[{128 + 4*hf}:{131 + 4*hf}], v{vOut}, s[{SO}:{SO+3}], s{sOo} offen offset:{64*hf}')

    def out_b(self):
        k = self.k
        k('F_p3b:')
        k(f's_lshl_b32 s{sSo}, s{sRT}, 11')
        k(f's_add_u32 s{sSo}, s{sSo}, {WS_FLAG + FL_O}')
        self.emit(self.lanes(vT + 1, 16))
        pl = (vT, vT + 1, SWS, f's{sSo}')
        k(self.poll_load(*pl))
        k(f'v_and_b32 v{vT+3}, 15, v{vL}')
        k(f'v_lshrrev_b32 v{vT+2}, 4, v{vL}')
        k(f'v_mul_u32_u24 v{vOut}, 1792, v{vT+3}')
        k(f'v_and_b32 v{vT+6}, 1, v{vT+2}')
        k(f'v_lshl_add_u32 v{vOut}, v{vT+6}, 5, v{vOut}')
        k(f'v_lshrrev_b32 v{vT+6}, 1, v{vT+2}')
        k(f'v_lshl_add_u32 v{vOut}, v{vT+6}, 4, v{vOut}')
        k(f's_lshl_b32 s{sXq}, s{sRT}, 16')
        k(f's_lshl_b32 s{sT}, s{sWV}, 14')
        k(f's_add_u32 s{sXq}, s{sXq}, s{sT}')
        k(f's_add_u32 s{sXq}, s{sXq}, {WS_OF}')
        k('s_waitcnt vmcnt(9)')
        k(self.ctxflag())
        k('s_waitcnt vmcnt(1)')
        self.emit(self.poll_check(*pl, 1))
        for hh in range(4):
            k(f's_add_u32 m0, s{sW8}, {32768*(hh >> 1) + 4096*(hh & 1)}')
            k(f's_add_u32 s{sT2}, s{sXq}, {4096 * hh}')
            for n in range(4): k(f'buffer_load_dwordx4 v{vL16}, s[{SWS}:{SWS+3}], s{sT2} offen offset:{1024*n} sc1 lds')
        self.stamp(9)
        k('s_waitcnt vmcnt(0)')
        k('s_barrier')
        self.stamp(10)
        oread = lambda s: [f'ds_read_b128 v[{64 + 16*(s & 1) + 4*i}:{67 + 16*(s & 1) + 4*i}], v{vL16} offset:{8192*(s >> 2) + 32768*((s >> 1) & 1) + 4096*(s & 1) + 1024*i}' for i in range(4)]
        self.emit(oread(0))
        k(f's_mul_i32 s{sOo}, s{sRT}, {64 * 1792}')
        k(f's_lshl_b32 s{sT}, s{sWV}, 8')
        k(f's_add_u32 s{sOo}, s{sOo}, s{sT}')
        k(f's_add_u32 s{sOo}, s{sOo}, 896')
        k(f's_cmp_eq_u32 s{sWV}, 3')
        k(f's_cselect_b32 s{sT}, s{sOOB}, s{sOo}')
        pos = {}
        def outp(i):
            it = []
            for jp in range(4):
                b = 128 + 32 * i + 8 * jp
                it += [f'v_cvt_pk_bf16_f32 v{b + e}, v{b + 2*e}, v{b + 2*e + 1}' for e in range(4)]
            it.append('s_nop 0')
            for jp in range(4):
                b = 128 + 32 * i + 8 * jp
                it += [f'v_permlane16_swap_b32 v{b + e}, v{b + 2 + e}' for e in range(2)]
            for jp in range(4):
                b = 128 + 32 * i + 8 * jp
                it.append(f'buffer_store_dwordx4 v[{b}:{b+3}], v{vOut}, s[{SO}:{SO+3}], s{sOo if jp < 2 else sT} offen offset:{64*jp}')
            return it + [f's_add_u32 s{sOo}, s{sOo}, {16 * 1792}', f's_add_u32 s{sT}, s{sT}, {16 * 1792}']
        for s in range(16):
            k(f's_waitcnt vmcnt({nvm(k.lines[pos[s]:])}) lgkmcnt(0)' if s >= 8 else 's_waitcnt lgkmcnt(0)')
            mf = []
            for i in range(4):
                for j in (range(8) if i % 2 == 0 else range(7, -1, -1)):
                    d = ('v', 128 + 32 * i + 4 * j)
                    mf.append(mfma(d, ('a', AR(2 * s + (j >> 2)) + 4 * (j & 3)), ('v', 64 + 16 * (s & 1) + 4 * i), d if s else '0'))
            rd = [(t, 2 * n) for n, t in enumerate(oread(s + 1))] if s < 15 else []
            ld = [(t, 3 * n) for n, t in enumerate(self.wg3(2 * s + 14) + self.wg3(2 * s + 15))] if 1 <= s <= 8 else []
            if s == 15: ld = [(t, 8 * i + 15) for i in range(4) for t in outp(i)]
            sched(k, mf, [rd, ld])
            pos[s + 7] = len(k.lines)
        self.stamp(11)

    def phase3(self):
        k = self.k
        k('F_p3:')
        self.stamp(8)
        self.p3_setup()
        k(f's_cmp_eq_u32 s{sBar}, 0')
        k('s_cbranch_scc1 F_p3n')
        k('s_waitcnt lgkmcnt(0)')
        k('s_barrier')
        k('F_p3n:')
        self.p3_direct('F_p3v')
        k('F_p3c:')
        k('s_waitcnt vmcnt(16)')
        for s in range(4, 10): self.emit(self.wr3(s))
        k(f's_cmp_lt_u32 s{sWV}, 2')
        k('s_cbranch_scc1 F_p3k')
        self.emit(self.wr3(10) + self.wr3(11))
        k('F_p3k:')
        self.emit(self.wg3(14) + self.wg3(15))
        k('s_waitcnt lgkmcnt(0)')
        srd(k, SO, SW, 2048 * 1792)
        k(f's_cmp_eq_u32 s{sCc}, 7')
        k('s_cbranch_scc1 F_p3b')
        self.out_a()
        k('s_branch F_fin')
        self.flush_late()
        self.out_b()
        k('F_fin:')
        if self.ts:
            self.stamp(12)
            stamp_out(k, True, 13, SWS, sWV, sT, vT, WS_TS)
            if self.opt.get('itprof'):
                k(f's_add_u32 s{sT}, s{sT}, 262144'); k(f'buffer_store_dword v14, v{vT}, s[{SWS}:{SWS+3}], s{sT} offen')
            if self.opt.get('dbg'):
                k(f's_lshl_b32 s{sT}, s2, 2'); k(f's_add_u32 s{sT}, s{sT}, s{sWV}')
                k(f's_cmp_lg_u32 s{sT}, {int(self.opt["dbg"]) * 4 + 3}'); k('s_cbranch_scc1 F_end')
                srd(k, SP, SDBG, 64)
                k('v_subrev_u32 v0, s84, v0'); k(f'v_add_u32 v{vT}, 4, v{vT}')
                k(f'buffer_store_dword v0, v{vT}, s[{SP}:{SP+3}], 0 offen')
        k('F_end:')
        k('s_endpgm')
        self.flush_late()
```

```python
from asmlib import *
from layout import *
import struct

def f32(x): return '0x%08x' % struct.unpack('<I', struct.pack('<f', x))[0]
LOG2E = 1.4426950408889634
OOB = 0x40000000

sH, sP, sROLE, sWV = 26, 27, 28, 29
SX, SW, SWS, SX2, SW2, SP = 32, 36, 40, 44, 48, 52
sXo, sWo, sX2o, sW2o = 56, 57, 58, 59
sA, sB, sC, sWd, sCnt, sSt, sT, sT2, sScale, sXd = 60, 61, 62, 63, 64, 65, 66, 67, 68, 69
sM3, sM28, sSt2, sPF = 70, 72, 74, 75
sF, sFc, sFj, sFc2, sOOB, sRs, sDs, sDiag, sMode, sHook = 4, 5, 6, 7, 8, 9, 10, 11, 12, 13
sRem, sNext, sQT, sHB, sW8, sPO = 16, 17, 18, 19, 20, 21
sFl, sNW, sT0, sSo = 76, 77, 78, 79
sMK = 88
sBig, sN, sHst, sSpin = 96, 97, 98, 99
sStE, sStL = 3, 64
sBH, sBR = 14, 15
sIt, sUs, sW0, sEx = 48, 49, 50, 51
sRT, sCc, sWt, sWp = 46, 47, 44, 45
SDBG = 100

FL_KV, FL_Q, FL_P, FL_B1, FL_CTX, FL_KVR, FL_O = [128 * n for n in (0, 1024, 1536, 2048, 2560, 3584, 4096)]

vL16 = 15

ROT = lambda f: int(f.opt.get('rot', 0))

def nvm(lines):
    return sum(1 for l in lines if l.split()[0].startswith(('buffer_', 'global_')))

class Base:
    def __init__(self, ts, opt):
        self.k = K(); self.ts = ts; self.opt = opt or {}; self.late = []; self.uid = 0

    def stamp(self, idx): stamp(self.k, self.ts, idx)

    def poll_load(self, vdst, vaddr, srd_, so):
        if vaddr is None: return f'buffer_load_dword v{vdst}, off, s[{srd_}:{srd_+3}], {so} sc1'
        return f'buffer_load_dword v{vdst}, v{vaddr}, s[{srd_}:{srd_+3}], {so} offen sc1'

    def poll_check(self, vdst, vaddr, srd_, so, val):
        self.uid += 1; L = f'F_spin{self.uid}'
        cmp_ = [f'v_cmp_gt_u32 vcc, {val}, v{vdst}', 's_nop 0', 's_cmp_lg_u64 vcc, 0']
        self.late += [f'{L}:', f's_mov_b32 s{sSpin}, 0x200000', f'{L}a:', f's_sleep {self.opt.get("slp", 4)}', self.poll_load(vdst, vaddr, srd_, so),
                      's_waitcnt vmcnt(0)', f's_sub_u32 s{sSpin}, s{sSpin}, 1', f's_cbranch_scc1 {L}r'] + cmp_ + \
                     [f's_cbranch_scc1 {L}a', f's_branch {L}r']
        return cmp_ + [f's_cbranch_scc1 {L}', f'{L}r:']

    def lanes(self, v, n):
        return [f'v_lshlrev_b32 v{v}, 3, v{vL16}'] + ([f'v_and_b32 v{v}, {128 * n - 1}, v{v}'] if n < 64 else [])

    def code_pf(self, va, vd):
        return [f's_lshr_b32 s{sT}, s2, 3', f's_lshl_b32 s{sT}, s{sT}, 2', f's_add_u32 s{sT}, s{sT}, s{sWV}', f's_lshl_b32 s{sT}, s{sT}, 10',
                f'v_and_b32 v{va}, 0x380, v{vL16}', f'v_add_u32 v{va}, s{sT}, v{va}', f'global_load_dword v{vd}, v{va}, s[30:31]']

    def gload(self, cls, base, so, n=16):
        k = self.k
        for i in range(n):
            if i % 4 == 0: k(f's_add_u32 s{sT2}, s{so}, {1024 * i}')
            k(f'buffer_load_dwordx4 {R(cls, base + 4*i, 4)}, v{vL16}, s[{SWS}:{SWS+3}], s{sT2} offen offset:{1024 * (i % 4)} sc1')

    def emit(self, ts):
        for t in ts:
            t = t[0] if isinstance(t, tuple) else t
            self.k(t)
            if ' m0,' in t: self.k('s_nop 0')

    def flush_late(self):
        for t in self.late: self.k(t)
        self.late = []
```

```python
MB = 1 << 20
WS_KV = 0
WS_Q = 32 * MB
WS_CTX = 48 * MB
WS_PART = 64 * MB
WS_PHIQ = 72 * MB
WS_OF = 72 * MB
WS_KVP = 76 * MB
WS_KVF = 77 * MB
WS_ML = 78 * MB
WS_FLAG = 79 * MB
WS_WF = 40 * MB
WS_TS = 80 * MB
WS_BYTES = 1 << 28
```

```python
import sys, argparse
from fz_regs import *
from fz1 import P1
from fz2 import P2
from fz3 import P3

class F(Base, P1, P2, P3):
    def build(self):
        k = self.k
        self.ends = []; self.grp = None
        self.PF = [int(x) for x in self.opt.get('pfw', '4').split('.')]
        self.setup()
        k(f's_cmp_eq_u32 s{sROLE}, 1')
        k('s_cbranch_scc1 F_kb')
        self.role = 'B'
        self.role_vq()
        k('s_branch F_att')
        self.flush_late()
        k('F_kb:')
        self.role = 'A'
        self.role_kb()
        self.attention()
        self.phase3()
        return k.text()

if __name__ == '__main__':
    p = argparse.ArgumentParser()
    p.add_argument('out'); p.add_argument('--ts', type=int, default=0); p.add_argument('--opt', default='')
    a = p.parse_args()
    opt = dict(x.split('=') for x in a.opt.split(',') if x)
    label = NAME + '_kernel'
    code, desc = kernel_wrap(label, F(a.ts, opt).build(), 512, 256)
    pad = f'.fill (131072 + 256 - (. - {label})) / 4, 4, 0xbf800000\n'
    open(a.out, 'w').write('; @launch grid=(256,1,1) block=(256,1,1) lds=163840\n.amdgcn_target "amdgcn-amd-amdhsa--gfx950"\n' + code + pad + desc)
```

```python
from fz_regs import *

vXo, vWo, vXb, vXr, vWr, vSt = 1, 5, 9, 11, 13, vL16
vTmp = 16
vXo2, vWo2 = 24, 28
vL = 30
FR = 32
XB = 65536
SG, SF = 88, 92
sPa, sPb, sPc = 76, 77, 78
KV0 = 131072
VBO = 147456

def FX(b, i): return ('a', FR + 64 * b + 4 * i)
def FW(b, j): return ('a', FR + 64 * b + 32 + 4 * j)
def QX(t, i): return ('a', 96 + 16 * (t & 1) + 4 * i)
def QW(t, j):
    n = (16 * (t - 32) + j) % 20
    return ('a', 32 + 4 * n if n < 16 else 128 + 4 * (n - 16))

def acc1(p): return ('v', 32 + 8 * p) if p < 28 else ('a', 8 * (p - 28))
def acc2(p):
    if p < 14: return ('a', 144 + 8 * p)
    if p < 16: return ('v', 32 + 8 * (p - 14))
    return acc1(p)
def qidx(i, jp): return 4 * jp + (i ^ 2 if jp == 3 else i)
JLAST = (3, 4, 5, 6, 7, 0, 1, 2)

def pair_pos(kind, n):
    if kind == 'V':
        a = n >> 3; return a, (n & 7) if a % 2 == 0 else 7 - (n & 7)
    i = n >> 2; return i, (n & 3) if i % 2 == 0 else 3 - (n & 3)

def order(kind):
    o = []
    for n in range(32):
        x, y = pair_pos(kind, n)
        if kind == 'V':
            for hf in ((0, 1) if n % 2 == 0 else (1, 0)): o.append((n, hf, 2 * x + hf, y))
        else:
            for hf in ((0, 1) if x % 2 == 0 else (1, 0)): o.append((n, hf, x, 2 * y + hf))
    return o

AQ = lambda i: 160 + 8 * i
AK = lambda i: 192 + 8 * i
AV = lambda ip, j: 224 + 16 * ip + 8 * j

class P1:
    def vmwait(self): return nvm(self.k.lines[self.ends[-3]:])

    def mark(self):
        self.ends.append(max(i for i, l in enumerate(self.k.lines) if l.rstrip().endswith(' lds')) + 1)

    def last_store(self):
        return max(i for i, l in enumerate(self.k.lines) if 'buffer_store_dwordx4' in l)

    def xdma(self, par, srd_, voff, soff, delta, g0=3, dg=8):
        it = []
        if par == 0:
            it.append((f's_add_u32 s{sT}, s{soff}, {delta}', g0 - 2))
            it.append((f's_add_u32 m0, s{sC}, 16384', g0 - 1)); so = sT
        else:
            it.append((f's_mov_b32 m0, s{sA}', g0 - 1)); so = soff
        for i in range(4):
            it.append((f'buffer_load_dwordx4 v{voff + i}, s[{srd_}:{srd_+3}], s{so} offen offset:{1024*i} {self.opt.get("xflag", "")} lds', g0 + dg * i))
        if par == 0: it.append((f's_add_u32 s{soff}, s{soff}, 128', g0 + dg * 3 + 1))
        return it

    def wdma(self, par, srd_, voff, soff, stride, n=4, g0=35, dg=8):
        it = [(f's_mov_b32 m0, s{sWd}' if par == 0 else f's_add_u32 m0, s{sWd}, 16384', g0 - 1)]
        fl = self.opt.get('wflag', '') if srd_ == SW else ''
        for i in range(n):
            it.append((f'buffer_load_dwordx4 v{voff + i}, s[{srd_}:{srd_+3}], s{soff} offen offset:{1024*i} {fl} lds', g0 + dg * i))
        it.append((f's_add_u32 s{soff}, s{soff}, {32 * stride}', g0 + dg * (n - 1) + 1))
        return it

    def reads(self, t, kind, dg=2):
        par = t & 1; nb = 1 - par
        xr = vXr + (1 if par == 0 else 0)
        wo = 16384 if par == 0 else 0
        tr = lambda reg, rho, j, off: f'ds_read_b64_tr_b16 {R(reg[0], reg[1] + 2*rho, 2)}, v{vWr + (j & 1)} offset:{wo + off}'
        if kind == 'q':
            xs = [f'ds_read_b128 {R(*QX(t + 1, i), 4)}, v{xr} offset:{(i & 1)*2048 + (i >> 1)*16384}' for i in range(4)]
            ws = [[tr(QW(t + 1, j), rho, j, (j >> 3)*8192 + rho*1024 + ((j >> 1) & 3)*256) for rho in range(2)] for j in range(16)]
            it = []
            if t == 31:
                for j in range(16): it += [(ws[j][0], 2 * j), (ws[j][1], 2 * j + 1)]
                it += [(x, 33 + 2 * n) for n, x in enumerate(xs)]
                return it, 42
            g = 0
            for j in range(16):
                g = max(g, 4 * (j - 4) + 4)
                it += [(ws[j][0], g), (ws[j][1], g + 1)]; g += 2
                if 4 <= j < 8: it.append((xs[j - 4], g)); g += 1
            return it, g
        xs = [f'ds_read_b128 {R(*FX(nb, i), 4)}, v{xr} offset:{2048*i}' for i in range(8 if kind == 'main' else 4)]
        if kind == 'main': ws = [tr(FW(nb, j), rho, j, rho*1024 + (j >> 1)*256) for j in range(8) for rho in range(2)]
        else: ws = [tr(FW(nb, j), rho, j, (j >> 1)*4096 + rho*256) for j in range(6) for rho in range(2)]
        seq = []
        while xs or ws:
            if xs: seq.append(xs.pop(0))
            seq += ws[:2]; ws = ws[2:]
        return [(x, int(n * dg)) for n, x in enumerate(seq)], int(len(seq) * dg)

    def book(self, par, g):
        if par == 0:
            return [(f'v_xor_b32 v{vWr}, 0x8000, v{vWr}', g), (f'v_xor_b32 v{vWr+1}, 0x8000, v{vWr+1}', g),
                    (f'v_add_u32 v{vXr}, s{sB}, v{vXb}', g)]
        return [(f'v_add_u32 v{vXr+1}, s{sB}, v{vXb+1}', g)]

    def rot(self, t, g):
        if t % 2 == 0 or t >= 43: return []
        return [(f's_xor_b32 s{sWd}, s{sWd}, 0x8000', g), (f's_mov_b32 s{sT2}, s{sA}', g), (f's_mov_b32 s{sA}, s{sB}', g),
                (f's_mov_b32 s{sB}, s{sC}', g), (f's_mov_b32 s{sC}, s{sT2}', g)]

    def mfmas(self, t, kind, first):
        par = t & 1; mf = []
        if kind in 'KV':
            for (p, hf, i, j) in order(kind):
                c, b = acc1(p); d = (c, b + 4 * hf)
                a_, b_ = (FX(par, i), FW(par, j)) if kind == 'V' else (FW(par, j), FX(par, i))
                mf.append(mfma(d, a_, b_, '0' if first else d))
        elif kind == 'Q':
            groups = [(0, 1, 2, 3)] if t < 45 else [(0, 1), (2, 3)]
            for grp in groups:
                for j in (range(16) if t < 45 else [2 * jp + x for jp in JLAST for x in range(2)]):
                    for i in (grp if j % 2 == 0 else grp[::-1]):
                        c, b = acc2(qidx(i, j >> 1)); d = (c, b + 4 * (j & 1))
                        mf.append(mfma(d, QW(t, j), QX(t, i), '0' if first else d))
        else:
            for i in range(4):
                for j in (range(6) if i % 2 == 0 else range(5, -1, -1)):
                    if j < 4:
                        d = ('v', (AQ(i) if j < 2 else AK(i)) + 4 * (j & 1))
                        mf.append(mfma(d, FW(par, j), FX(par, i), '0' if first else d))
                    else:
                        d = ('v', AV(i >> 1, j & 1) + 4 * (i & 1))
                        mf.append(mfma(d, FX(par, i), FW(par, j), '0' if first else d))
        return mf

    def step(self, t, kind, xd=None, wd=None, rd='main', extra=None, extra2=None, req=None, pre=None, tail=None, flush=True, vm=None, dmx=None, rdg=2, ins=None):
        k = self.k; par = t & 1; start = len(k.lines)
        n = self.vmwait() if vm is None else vm
        assert n <= 63
        prof = self.opt.get('stprof') and (t >= 27 or t < 3)
        if self.opt.get('stprof') == '2':
            prof = t < 3
            if t in (3, 27): k('s_memtime s[82:83]'); k(f's_sub_u32 m0, 44, s{sCnt}'); k('s_waitcnt lgkmcnt(0)'); k('v_writelane_b32 v0, s82, m0')
        if prof: k('s_memtime s[82:83]')
        k(f's_waitcnt vmcnt({n}) lgkmcnt(0)')
        if prof: k(f'v_writelane_b32 v0, s82, {32 + t - 27 if t >= 27 else 56 + t}')
        k('s_barrier')
        for x in (pre or []): k(x)
        mf = self.mfmas(t, kind, t in (0, 32))
        for pos in sorted(ins or {}, reverse=True): mf[pos:pos] = ins[pos]
        small = kind == 'B'
        rs, g = self.reads(t, rd, dg=1 if small else rdg) if rd else ([], 0)
        rs = rs + (self.book(par, g) if rd else [])
        if small: dm = (self.xdma(par, *xd, g0=2, dg=3) if xd else []) + (self.wdma(par, *wd, g0=14, dg=3) if wd else []) + self.rot(t, 21)
        else: dm = (self.xdma(par, *xd) if xd else []) + (self.wdma(par, *wd) if wd else []) + self.rot(t, 61)
        if dmx: dm = dmx + self.rot(t, 61)
        VMCOST[0] = 1 if small else int(self.opt.get('vmc', 2))
        left = sched(k, mf, [rs, dm + (tail or []), extra or [], extra2 or []], req=req, flush=False, prio=None if small else [1, 3, 2, 0])
        VMCOST[0] = 1
        for st in (left[0], left[1], left[3]): self.emit(st)
        if flush: self.emit(left[2])
        if self.rot(t, 0) and rd:
            body = [l.strip() for l in k.lines[start:]]
            assert body.index(f'v_add_u32 v{vXr+1}, s{sB}, v{vXb+1}') < body.index(f's_mov_b32 s{sB}, s{sC}')
        if xd or wd: self.mark()
        elif not dmx: self.ends.append(self.ends[-1])
        return n, left[2]

    def pack(self, src, dst, scale=None, g=0):
        it = []; c, b = src
        if c == 'a':
            for e in range(8): it.append((f'v_accvgpr_read_b32 v{vTmp + e}, a{b + e}', g))
            b = vTmp
        if scale is not None:
            if g <= 20: it += [(f'v_mul_f32 v{b + e}, s{scale}, v{b + e}', g) for e in range(8)]
            else: it += [(f'v_pk_mul_f32 v[{b + e}:{b + e + 1}], v[{b + e}:{b + e + 1}], s[{scale}:{scale + 1}]', g) for e in range(0, 8, 2)]
        for e in range(4): it.append((f'v_cvt_pk_bf16_f32 v{dst + e}, v{b + 2*e}, v{b + 2*e + 1}', g))
        return it

    def store(self, reg, off, g=0, base=sSt):
        it = []
        if off // 4096 != self.grp:
            self.grp = off // 4096
            it.append((f's_add_u32 s{sSt2}, s{base}, {self.grp * 4096}', g))
        it.append((f'buffer_store_dwordx4 v[{reg}:{reg+3}], v{vSt}, s[{SWS}:{SWS+3}], s{sSt2} offen offset:{off % 4096} sc1', g))
        return it

    def kvprep(self):
        return [f's_lshl_b32 s{sXo}, s{sH}, 11', f's_add_u32 s{sPF}, s{sXo}, {WS_FLAG + FL_KV}', f's_lshl_b32 s{sXo}, s{sROLE}, 3', f's_add_u32 s{sXo}, s{sXo}, s{sP}',
                f's_lshl_b32 s{sXo}, s{sXo}, 7', f's_add_u32 s{sXo}, s{sXo}, s{sPF}', f's_cmp_eq_u32 s{sWV}, 0\ns_cselect_b32 s{sXo}, s{sXo}, {OOB}',
                f'v_mov_b32 v{vXo+1}, 1', f'v_bfe_u32 v{vXo+2}, v{vL16}, 2, 7'] + self.lanes(vXo + 3, 16)

    def plan(self, ta, tc):
        pl = {t: [] for t in range(ta, tc)}
        for n in range(28): pl[ta + n * (tc - ta) // 28].append(4 + n)
        return pl, min(t for t in pl if 7 in pl[t])

    def planned(self, lst, off, g0, span):
        ex = []
        for q, n in enumerate(lst): ex += self.store(32 + 4 * n, off(n), g=g0 + span * q // len(lst))
        return ex

    def flag1(self):
        return [(self.flagstore(sXo), 0), (f'v_mov_b32 v{vXo+1}, 2', 2)]

    def flagstore(self, so):
        return f'buffer_store_dword v{vXo+1}, v{vXo+2}, s[{SWS}:{SWS+3}], s{so} offen sc1'

    def setup(self):
        k = self.k
        k('s_cmp_ge_u32 s2, 256')
        k('s_cbranch_scc1 F_end')
        self.stamp(0)
        k('s_load_dwordx16 s[4:19], s[0:1], 0')
        k('s_load_dwordx4 s[20:23], s[0:1], 64')
        k('s_load_dwordx2 s[24:25], s[0:1], 96')
        k(f's_load_dwordx2 s[{SDBG}:{SDBG+1}], s[0:1], 88')
        k('s_getpc_b64 s[30:31]')
        k('F_pc:')
        k(f'v_lshrrev_b32 v{vTmp+3}, 6, v0')
        k(f'v_and_b32 v{vL}, 63, v0')
        k(f'v_readfirstlane_b32 s{sWV}, v{vTmp+3}')
        k(f'v_lshlrev_b32 v{vSt}, 4, v{vL}')
        self.emit(self.code_pf(vTmp, vTmp + 1))
        k(f's_and_b32 s{sH}, s2, 7')
        k(f's_lshl_b32 s{sH}, s{sH}, 1')
        k(f's_lshr_b32 s{sT}, s2, 7')
        k(f's_add_u32 s{sH}, s{sH}, s{sT}')
        k(f's_lshr_b32 s{sP}, s2, 3')
        k(f's_and_b32 s{sP}, s{sP}, 7')
        k(f's_lshr_b32 s{sROLE}, s2, 6')
        k(f's_and_b32 s{sROLE}, s{sROLE}, 1')
        t0, t1, t2, t3 = vTmp + 4, vTmp + 5, vTmp + 6, vTmp + 7
        k(f'v_lshrrev_b32 v{t0}, 3, v{vL}')
        k(f's_lshl_b32 s{sT}, s{sWV}, 5')
        k(f'v_add_u32 v{t0}, s{sT}, v{t0}')
        k(f'v_lshrrev_b32 v{t1}, 4, v{vL}')
        k(f'v_and_b32 v{t2}, 7, v{vL}')
        k(f'v_xor_b32 v{t1}, v{t1}, v{t2}')
        k(f'v_lshlrev_b32 v{t1}, 4, v{t1}')
        k(f'v_xor_b32 v{t2}, 64, v{t1}')
        for base, stride in ((vXo, 2048), (vXo2, 896)):
            k(f'v_mul_u32_u24 v{t3}, {stride}, v{t0}')
            if base == vXo:
                k(f's_mul_i32 s{sT}, s{sWV}, {224 * 2048}')
                k(f'v_add_u32 v{t3}, s{sT}, v{t3}')
            for i in range(4):
                k(f'v_add_u32 v{base + i}, v{t3}, v{t1 if i % 2 == 0 else t2}')
                if i: k(f'v_add_u32 v{base + i}, {i * (8 * stride - 1024)}, v{base + i}')
        k(f'v_lshrrev_b32 v{t0}, 2, v{vL}')
        k(f'v_and_b32 v{t0}, 3, v{t0}')
        k(f's_and_b32 s{sT}, s{sWV}, 1')
        k(f's_lshl_b32 s{sT}, s{sT}, 17')
        k(f's_lshr_b32 s{sT2}, s{sWV}, 1')
        k(f's_lshl_b32 s{sT2}, s{sT2}, 8')
        k(f's_add_u32 s{sT}, s{sT}, s{sT2}')
        k(f'v_lshlrev_b32 v{t1}, 13, v{t0}')
        k(f'v_add_u32 v{t1}, s{sT}, v{t1}')
        k(f'v_lshrrev_b32 v{t2}, 4, v{vL}')
        k(f'v_lshl_add_u32 v{t1}, v{t2}, 6, v{t1}')
        k(f'v_and_b32 v{t3}, 3, v{vL}')
        k(f'v_lshl_add_u32 v{vWo}, v{t3}, 4, v{t1}')
        k(f'v_add_u32 v{vWo+1}, {4*8192 - 1024}, v{vWo}')
        k(f'v_xor_b32 v{vWo+2}, 32, v{vWo}')
        k(f'v_add_u32 v{vWo+2}, {8*8192 - 2048}, v{vWo+2}')
        k(f'v_add_u32 v{vWo+3}, {4*8192 - 1024}, v{vWo+2}')
        k(f's_lshl_b32 s{sWd}, s{sWV}, 12')
        k(f's_add_u32 s{sA}, s{sWd}, {XB}')
        k(f's_add_u32 s{sB}, s{sWd}, {XB + 32768}')
        k(f's_add_u32 s{sC}, s{sWd}, {XB + 65536}')
        k(f'v_min_u32 v{t0}, 17, v{vL}')
        k(f'v_lshlrev_b32 v{t0}, 7, v{t0}')
        k(f'v_mov_b32 v{t1}, 0')
        k(f's_mul_i32 s{sT2}, s2, {18 * 128}')
        k(f's_add_u32 s{sT2}, s{sT2}, {WS_FLAG}')
        k(f's_cmp_eq_u32 s{sWV}, 0')
        k(f's_cselect_b32 s{sT2}, s{sT2}, {OOB}')
        k('s_waitcnt lgkmcnt(0)')
        srd(k, SX, 6, 2048 * 2048)
        k(f's_cmp_eq_u32 s{sROLE}, 0')
        k(f's_cselect_b32 s10, s12, s10')
        k(f's_cselect_b32 s11, s13, s11')
        srd(k, SW, 10, 1024 * 8192)
        srd(k, SWS, 24, WS_BYTES)
        k(f's_lshl_b32 s{sXo}, s{sP}, 16')
        k(f's_lshl_b32 s{sWo}, s{sH}, 9')
        k(f'buffer_store_dword v{t1}, v{t0}, s[{SWS}:{SWS+3}], s{sT2} offen sc1')
        self.emit(self.wblk(0) + self.xblk(sA, 0) + self.xblk(sA, 1) + self.wblk(16384) + self.xblk(sB, 0))
        if self.PF[0]: self.emit(self.xpf() + self.wpf(64, self.PF[0], vTmp + 6))
        srd(k, SG, SDBG, 256)
        self.ntlb = int(self.opt.get('tlb', 0))
        if self.ntlb >= 1: k(f'buffer_load_dword a194, off, s[{SG}:{SG+3}], 0')
        if self.ntlb >= 2:
            k(f'v_min_u32 v{vTmp+4}, 39, v{vL}'); k(f'v_lshlrev_b32 v{vTmp+4}, 21, v{vTmp+4}')
            k(f's_lshr_b32 s{sT}, s2, 3'); k(f's_add_u32 s{sT}, s{sT}, s{sWV}'); k(f's_cmp_eq_u32 s{sT}, 0'); k(f's_cselect_b32 s{sT}, 0, {OOB}')
            k(f'buffer_load_dword a195, v{vTmp+4}, s[{SWS}:{SWS+3}], s{sT} offen')
        self.wtile_addr()
        k(f's_cmp_eq_u32 s{sROLE}, 0')
        k(f's_cselect_b32 s4, s4, s16')
        k(f's_cselect_b32 s5, s5, s17')
        k(f's_cselect_b32 s8, s8, s18')
        k(f's_cselect_b32 s9, s9, s19')
        k(f's_mov_b32 s{sT}, {448 * 2688}')
        k(f's_cselect_b32 s{sT}, {448 * 8192}, s{sT}')
        srd(k, SX2, 4, 2048 * 896)
        srd(k, SW2, 8, 0)
        k(f's_mov_b32 s{SW2+2}, s{sT}')
        k(f'v_and_b32 v{t0}, 15, v{vL}')
        k(f'v_lshrrev_b32 v{t1}, 4, v{vL}')
        k(f'v_lshrrev_b32 v{t2}, 1, v{t0}')
        k(f'v_xor_b32 v{t2}, v{t2}, v{t1}')
        k(f'v_lshlrev_b32 v{t2}, 4, v{t2}')
        k(f'v_lshl_add_u32 v{t2}, v{t0}, 7, v{t2}')
        k(f's_lshr_b32 s{sT}, s{sWV}, 1')
        k(f's_lshl_b32 s{sT}, s{sT}, 14')
        k(f's_sub_u32 s{sT}, s{sT}, s{sWd}')
        k(f'v_add_u32 v{vXb}, s{sT}, v{t2}')
        k(f'v_xor_b32 v{t2}, 64, v{t2}')
        k(f'v_add_u32 v{vXb+1}, s{sT}, v{t2}')
        k(f'v_lshrrev_b32 v{t2}, 2, v{t0}')
        k(f'v_lshlrev_b32 v{t2}, 6, v{t2}')
        k(f'v_and_b32 v{t3}, 3, v{t0}')
        k(f'v_lshl_add_u32 v{t2}, v{t3}, 3, v{t2}')
        k(f'v_and_b32 v{t3}, 1, v{t1}')
        k(f'v_lshl_add_u32 v{t2}, v{t3}, 5, v{t2}')
        k(f'v_mov_b32 v{vL+1}, v{t2}')
        k(f'v_lshl_add_u32 v{t2}, v{t1}, 11, v{t2}')
        k(f's_and_b32 s{sT}, s{sWV}, 1')
        k(f's_lshl_b32 s{sT}, s{sT}, 13')
        k(f'v_add_u32 v{vWr}, s{sT}, v{t2}')
        k(f'v_xor_b32 v{vWr+1}, 32, v{vWr}')
        k(f'v_add_u32 v{vXr}, s{sA}, v{vXb}')
        k(f'v_add_u32 v{vXr+1}, s{sA}, v{vXb+1}')

    def selmat(self):
        k = self.k
        k(f'v_bfe_u32 v{vTmp+4}, v{vL}, 1, 3')
        k(f'v_lshrrev_b32 v{vTmp+5}, 4, v{vL}')
        k(f'v_lshlrev_b32 v{vTmp+5}, 2, v{vTmp+5}')
        k(f'v_sub_u32 v{vTmp+4}, v{vTmp+4}, v{vTmp+5}')
        k(f'v_and_b32 v{vTmp+5}, 1, v{vL}')
        k(f'v_lshlrev_b32 v{vTmp+5}, 4, v{vTmp+5}')
        k(f'v_mov_b32 v{vTmp+6}, 0x3f80')
        k(f'v_lshlrev_b32 v{vTmp+5}, v{vTmp+5}, v{vTmp+6}')
        for n in range(8):
            k(f'v_cmp_eq_i32 vcc, {(n & 3) - 8 * (n >> 2)}, v{vTmp+4}')
            k('s_nop 1')
            k(f'v_cndmask_b32 v{vTmp+6}, 0, v{vTmp+5}, vcc')
            k(f'v_accvgpr_write_b32 a{196 + n}, v{vTmp+6}')
        k('s_nop 1')

    def xpf(self):
        return [f's_lshl_b32 s{sT}, s2, 2', f's_add_u32 s{sT}, s{sT}, s{sWV}', f's_lshl_b32 s{sT}, s{sT}, 12', f'v_lshlrev_b32 v{vTmp+4}, 2, v{vL16}',
                f'v_and_b32 v{vTmp+4}, {0x800 | (int(self.opt.get("xl", 4)) * 128 - 1)}, v{vTmp+4}',
                f'buffer_load_dword a192, v{vTmp+4}, s[{SX}:{SX+3}], s{sT} offen']

    def wpf(self, row0, per, v):
        return [f's_lshl_b32 s{sT2}, s{sP}, 2', f's_add_u32 s{sT2}, s{sT2}, s{sWV}', f's_mul_i32 s{sT2}, s{sT2}, {per * 8192}', f's_lshl_b32 s{sSpin}, s{sH}, 9',
                f's_add_u32 s{sT2}, s{sT2}, s{sSpin}', f's_add_u32 s{sT2}, s{sT2}, {row0 * 8192}',
                f'v_lshrrev_b32 v{v}, 2, v{vL}', f'v_min_u32 v{v}, {per - 1}, v{v}', f'v_lshlrev_b32 v{v}, 6, v{v}', f'v_and_or_b32 v{v}, v{vL}, 3, v{v}',
                f'v_lshlrev_b32 v{v}, 7, v{v}', f'buffer_load_dword a193, v{v}, s[{SW}:{SW+3}], s{sT2} offen']

    def xblk(self, slot, hf):
        return [f's_add_u32 s{sT}, s{sXo}, {hf * 1024 * 2048}', f's_add_u32 m0, s{slot}, {hf * 16384}'] + \
               [f'buffer_load_dwordx4 v{vXo + i}, s[{SX}:{SX+3}], s{sT} offen offset:{1024*i} lds' for i in range(4)] + \
               ([f's_add_u32 s{sXo}, s{sXo}, 128'] if hf else [])

    def wblk(self, off):
        return [f's_add_u32 m0, s{sWd}, {off & 0xffffffff}'] + \
               [f'buffer_load_dwordx4 v{vWo + i}, s[{SW}:{SW+3}], s{sWo} offen offset:{1024*i} lds' for i in range(4)] + [f's_add_u32 s{sWo}, s{sWo}, {32 * 8192}']

    def wtile_addr(self):
        k = self.k
        k(f's_lshl_b32 s{sSt2}, s{sH}, 1'); k(f's_add_u32 s{sSt2}, s{sSt2}, s{sROLE}'); k(f's_lshl_b32 s{sSt2}, s{sSt2}, 3'); k(f's_add_u32 s{sSt2}, s{sSt2}, s{sP}')
        k(f's_lshl_b32 s{sSt2}, s{sSt2}, 2'); k(f's_add_u32 s{sSt2}, s{sSt2}, s{sWV}')
        k(f's_cmp_lt_u32 s{sSt2}, 896')
        k('s_cbranch_scc0 F_wtb')
        srd(k, SP, 14, 4096 * 896)
        k(f's_and_b32 s{sT}, s{sSt2}, 127'); k(f's_mul_i32 s{sT}, s{sT}, {32 * 896}'); k(f's_lshr_b32 s{sT2}, s{sSt2}, 7')
        if ROT(self): k(f's_and_b32 s{sCnt}, s{sT2}, 1'); k(f's_lshl_b32 s{sCnt}, s{sCnt}, 4'); k(f's_xor_b32 s{sSt2}, s{sSt2}, s{sCnt}')
        k('s_branch F_wtc')
        k('F_wtb:')
        srd(k, SP, 22, 448 * 896)
        k(f's_bfe_u32 s{sT}, s{sSt2}, 0x40001'); k(f's_mul_i32 s{sT}, s{sT}, {28 * 896}')
        k(f's_bfe_u32 s{sT2}, s{sSt2}, 0x20005'); k(f's_lshl_b32 s{sT2}, s{sT2}, 1'); k(f's_and_b32 s{sCnt}, s{sSt2}, 1'); k(f's_add_u32 s{sT2}, s{sT2}, s{sCnt}')
        k('F_wtc:')
        k(f's_lshl_b32 s{sT2}, s{sT2}, 7'); k(f's_add_u32 s3, s{sT2}, s{sT}')
        k(f's_lshl_b32 s{sSt2}, s{sSt2}, 12'); k(f's_add_u32 s{sSt2}, s{sSt2}, {WS_WF}')

    def gemm1(self, kind, lbl, X2, W2):
        k = self.k
        X1 = (SX, vXo, sXo, 1024 * 2048); W1 = (SW, vWo, sWo, 8192)
        e = (2 if self.PF[0] else 0) + self.ntlb
        nx, nw = 3, (6 if kind == 'V' else 2)
        k(f's_lshr_b32 s{sT}, s2, 7'); k(f's_lshl_b32 s{sT}, s{sT}, 6'); k(f's_and_b32 s{sT2}, s2, 63'); k(f's_add_u32 s{sT}, s{sT}, s{sT2}')
        k(f's_lshl_b32 s{sT}, s{sT}, 2'); k(f's_add_u32 s{sT}, s{sT}, s{sWV}')
        k(f's_mul_i32 s{sPa}, s{sT}, {28 * 128}')
        k(f's_mul_i32 s{sPb}, s{sT}, {(56 if kind == "V" else 19) * 128}')
        k(f's_mov_b32 s{sPc}, s3')
        self.selmat()
        k(f'v_min_u32 v{vTmp}, {nx - 1}, v{vL}'); k(f'v_lshlrev_b32 v{vTmp}, 7, v{vTmp}')
        k(f'v_min_u32 v{vTmp+2}, {nw - 1}, v{vL}'); k(f'v_lshlrev_b32 v{vTmp+2}, 7, v{vTmp+2}')
        k(f'v_min_u32 v{vTmp+3}, 2, v{vL}'); k(f'v_mul_u32_u24 v{vTmp+3}, 896, v{vTmp+3}')
        k(f's_lshr_b32 s{sT}, s2, 7'); k(f's_lshl_b32 s{sT}, s{sT}, 3'); k(f's_add_u32 s{sT}, s{sT}, s{sP}'); k(f's_lshl_b32 s{sT}, s{sT}, 2')
        k(f's_add_u32 s{sT}, s{sT}, s{sWV}'); k(f's_lshl_b32 s{sT}, s{sT}, 9'); k(f's_add_u32 s{sT}, s{sT}, {lbl}_x-F_pc')
        k(f'v_min_u32 v{vTmp+4}, 3, v{vL}'); k(f'v_lshlrev_b32 v{vTmp+4}, 7, v{vTmp+4}'); k(f'v_add_u32 v{vTmp+4}, s{sT}, v{vTmp+4}')
        k(f'v_lshlrev_b32 v{vTmp+5}, 8, v{vL}'); k(f'v_mov_b32 v{vTmp+6}, 1'); k(f's_lshl_b32 s{sPF}, s{sWV}, 8'); k(f's_add_u32 s{sPF}, s{sPF}, s2'); k(f's_add_u32 s{sHst}, s{sP}, 5')
        def touch(v, srd_, so, d, g):
            return [(f'buffer_load_dword a{192 + (v & 3)}, v{v}, s[{srd_}:{srd_+3}], s{so} offen', g), (f's_add_u32 s{so}, s{so}, {d}', g + 1)]
        k(f's_waitcnt vmcnt({8 + e})')
        k('s_barrier')
        self.stamp(1)
        self.emit(self.reads(-1, 'main')[0])
        self.step(0, kind, dmx=self.spread(self.xblk(sB, 1) + self.wblk(32768) + self.wblk(49152), 1, 5), vm=4 + e)
        self.step(1, kind, dmx=self.spread(self.xblk(sC, 0) + self.wblk(0) + self.xblk(sC, 1), 1, 5), vm=4)
        self.step(2, kind, dmx=self.spread(self.xblk(sC, 0) + self.wblk(-16384) + self.xblk(sC, 1) + self.wblk(0), 1, 4), vm=12)
        self.ends = [None, None, len(k.lines)]
        k(f's_mov_b32 s{sCnt}, 12')
        k('.p2align 5'); k('s_nop 0'); k('s_nop 0'); k('s_nop 0'); k('s_nop 0')
        k(f'{lbl}:')
        self.step(3, kind, xd=X1, wd=W1, vm=16, extra=touch(vTmp, SX2, sPa, nx * 128, 7) + touch(vTmp + 3, SP, sPc, 3 * 896, 39))
        self.step(4, kind, xd=X1, wd=W1, vm=18, extra=touch(vTmp + 2, SW2, sPb, nw * 128, 7) + [(f'global_load_dword a193, v{vTmp+4}, s[30:31]', 39),
                  (f's_cmp_eq_u32 s{sCnt}, s{sHst}\ns_cselect_b32 s{sSpin}, s{sPF}, {OOB}', 52), (f'buffer_store_byte v{vTmp+6}, v{vTmp+5}, s[{SG}:{SG+3}], s{sSpin} offen sc1', 55)],
                  tail=[(f's_sub_u32 s{sCnt}, s{sCnt}, 1', 61), (f's_cmp_lg_u32 s{sCnt}, 0', 62)])
        k(f's_cbranch_scc1 {lbl}')
        k(f'{lbl}_x:')
        pl = (vXo, vXo + 3, SG, '0')
        raw = [f'v_lshlrev_b32 v{vXo+3}, 2, v{vL}', f'v_and_b32 v{vTmp}, 15, v{vL}', f'v_mul_u32_u24 v{vTmp}, 896, v{vTmp}', f'v_and_or_b32 v{vTmp}, v{vL}, 48, v{vTmp}', self.poll_load(*pl)]
        for rho in range(2):
            raw += [f'buffer_load_dwordx4 a[{176 + 8*rho + 4*cp}:{179 + 8*rho + 4*cp}], v{vTmp}, s[{SP}:{SP+3}], s3 offen offset:{64*cp}' for cp in range(2)]
            raw.append(f's_add_u32 s3, s3, {16 * 896}')
        self.step(27, kind, xd=X2, wd=W1, extra=self.spread(raw, 7, 8))
        self.step(28, kind, xd=X2, wd=W2)
        self.step(29, kind, xd=X2, wd=W2, extra=self.spread(self.wphi(), 13, 2) if kind == 'K' else None)
        ins = {}; ex = []
        for j in range(4):
            ins[1 + 13 * j] = [mfma(('v', vTmp + 4 * rho), ('a', 176 + 8 * rho + 4 * (j >> 1)), ('a', 196 + 4 * (j & 1)), '0') for rho in range(2)]
            ex += self.pack(('v', vTmp), vTmp, g=8 + 15 * j)
            ex.append((f'buffer_store_dwordx4 v[{vTmp}:{vTmp+3}], v{vSt}, s[{SWS}:{SWS+3}], s{sSt2} offen offset:{1024*j} sc1', 8 + 15 * j))
        self.step(30, kind, xd=X2, wd=W2, pre=self.poll_check(*pl, 0x01010101), ins=ins, extra=ex, extra2=[(x, 56) for x in self.kvprep()], req={15 * j - 1: [(2, 5 * j)] for j in (1, 2, 3)})

    def wphi(self):
        k = K()
        t0, t1, t2, t3 = vTmp + 4, vTmp + 5, vTmp + 6, vTmp + 7
        srd(k, SF, 20, 16 * 28 * 28 * 2)
        k(f'v_and_b32 v{t0}, 15, v{vL}')
        k(f'v_lshrrev_b32 v{t1}, 4, v{vL}')
        k(f'v_cmp_eq_u32 s[{sM3}:{sM3+1}], 3, v{t1}')
        k(f'v_cmp_eq_u32 s[{sM28}:{sM28+1}], 12, v{t0}')
        k(f'v_cmp_lt_u32 vcc, 11, v{t0}')
        k(f'v_mul_u32_u24 v{t1}, 224, v{t1}')
        k(f'v_lshl_add_u32 v{t0}, v{t0}, 1, v{t1}')
        k(f'v_mov_b32 v{vTmp+3}, {OOB}')
        k(f'v_add_u32 v{t1}, 32, v{t0}')
        k(f'v_cndmask_b32 v{t1}, v{t1}, v{t0}, vcc')
        k(f'v_cndmask_b32 v{t2}, v{t0}, v{vTmp+3}, s[{sM3}:{sM3+1}]')
        k(f'v_cndmask_b32 v{t3}, v{t1}, v{vTmp+3}, s[{sM3}:{sM3+1}]')
        k(f's_mul_i32 s{sPa}, s{sBH}, 1568')
        for fs in range(2):
            for e in range(8):
                v = [[t0, t2], [t1, t3]][fs][e >> 2]
                k(f'buffer_load_ushort a{160 + 8*fs + e}, v{v}, s[{SF}:{SF+3}], s{sPa} offen offset:{(e >> 2)*896 + (e & 3)*56}')
        return [l.strip() for l in k.lines]

    def kv_base(self, wcshift, add):
        k = self.k
        k(f's_lshl_b32 s{sSt}, s{sH}, 21')
        k(f's_lshl_b32 s{sT}, s{sP}, 15')
        k(f's_add_u32 s{sSt}, s{sSt}, s{sT}')
        k(f's_lshr_b32 s{sT}, s{sWV}, 1')
        k(f's_lshl_b32 s{sT}, s{sT}, 20')
        k(f's_add_u32 s{sSt}, s{sSt}, s{sT}')
        k(f's_and_b32 s{sT}, s{sWV}, 1')
        k(f's_lshl_b32 s{sT}, s{sT}, {wcshift}')
        k(f's_add_u32 s{sSt}, s{sSt}, s{sT}')
        if add: k(f's_add_u32 s{sSt}, s{sSt}, {add}')

    def role_vq(self):
        k = self.k
        X2 = (SX2, vXo2, sX2o, f's{sXd}'); W2 = (SW2, vWo, sW2o, 8192)
        k(f's_lshl_b32 s{sW2o}, s{sH}, 9')
        k(f's_sub_u32 s{sT}, 15, s{sP}')
        k(f's_mul_i32 s{sX2o}, s{sT}, {128 * 896}')
        k(f's_mul_i32 s{sXd}, s{sP}, {128 * 896}')
        k(f's_sub_u32 s{sXd}, s{sXd}, s{sX2o}')
        self.kv_base(13, WS_KV + 16384)
        self.gemm1('V', 'F_vloop', X2, W2)
        voff = lambda p: pair_pos('V', p)[0] * 262144 + pair_pos('V', p)[1] * 1024
        self.grp = None
        pre = [f's_lshr_b32 s{sT}, s{sWV}, 1', f's_lshl_b32 s{sT}, s{sT}, 14', f's_lshl_b32 s{sSt2}, s{sWV}, 12', f's_sub_u32 s{sT}, s{sSt2}, s{sT}',
               f'v_add_u32 v{vXb}, s{sT}, v{vXb}', f'v_add_u32 v{vXb+1}, s{sT}, v{vXb+1}', f'v_add_u32 v{vXr}, s{sT}, v{vXr}',
               f'v_and_b32 v{vWr}, 0x1fff, v{vWr}', f'v_and_b32 v{vWr+1}, 0x1fff, v{vWr+1}']
        ex = []; cnt = []
        for p in range(32):
            ex += self.pack(acc1(p), 32 + 4 * p, g=2 * p + 6)
            if p % 4 == 3 and p < 16: ex += self.store(32 + 4 * (p >> 2), voff(p >> 2), g=2 * p + 6)
            cnt.append(len(ex))
        _, left = self.step(31, 'V', xd=X2, wd=W2, rd='q', extra=ex, pre=pre, flush=False)
        done = len(ex) - len(left)
        self.stamp(2)
        req = {}
        for jp in range(8):
            top = max(qidx(i, jp) for i in range(4))
            need_ = cnt[top]
            if top >= 12 and need_ > done: req[8 * jp] = [(2, need_ - done)]
        self.step(32, 'Q', xd=X2, wd=W2, rd='q', extra=[(x, 3) for x, _ in left], req=req)
        plan, te = self.plan(int(self.opt.get('tab', 33)), 44)
        pl = (vTmp, vXo + 3, SWS, f's{sPF}')
        for t in range(33, 45):
            ex = []; ex2 = []; pre = None; vm = None
            if t == 42: ex.append((self.poll_load(*pl), 0))
            if plan.get(t): ex += self.planned(plan[t], voff, 6, 48)
            if t == te + 3:
                assert elast < self.ends[-3]
                ex = self.flag1() + ex
            if t == 42: ex2 = [(x, 2) for x in self.att_setup() + self.code_pf(vTmp + 4, vTmp + 5)]
            if t == 43:
                vm = min(self.vmwait(), nvm(k.lines[ppos:])); pre = self.poll_check(*pl, 1)
                ex2 = self.spread(self.k0_dma() + self.unit_dma(1), 2, 5)
            if t == 44: ex2 = self.spread(self.unit_dma(2), 3, 7)
            self.step(t, 'Q', xd=X2 if t <= 40 else None, wd=W2 if t <= 41 else None, rd='q', extra=ex, extra2=ex2, pre=pre, vm=vm)
            if t == te: elast = self.last_store()
            if t == 42: ppos = k.lines.index('    ' + self.poll_load(*pl)) + 1
            if t == 43: u0 = len(k.lines)
            if t in (38, 43, 44): self.stamp({38: 4, 43: 14, 44: 15}[t])
        pre = [f's_lshl_b32 s{sSt}, s{sPO}, 14', f's_add_u32 s{sSt}, s{sSt}, {WS_Q}'] + self.ring_rd()
        ex = []; self.grp = None
        q1 = {}; na = 0
        for n, jp in enumerate(JLAST):
            for i in range(2):
                src = acc2(qidx(i, jp))
                if src[0] == 'v': q1[i, jp] = src[1]
                else: q1[i, jp] = 128 + 4 * na; na += 1
                ex += self.pack(src, q1[i, jp], g=4 * n + 8) + self.store(q1[i, jp], i * 8192 + jp * 1024, g=4 * n + 8)
        wl = (vWo, vWo + 1, SWS, f's{sWt}')
        self.step(45, 'Q', rd=None, extra=[(self.flagstore(sXo), 0)] + [(x, 1) for x in self.lanes(vWo + 1, 8) + [self.poll_load(*wl)]] + ex, pre=pre, vm=nvm(k.lines[u0:]))
        q0 = len(k.lines)
        self.emit(self.kreads())
        body = []
        for jp in JLAST:
            for i in range(2, 4): body += [x for x, _ in self.pack(acc2(qidx(i, jp)), 64 + 32 * (i - 2) + 4 * jp)]
        for jp in range(8):
            for i in range(2): body += [f'v_accvgpr_write_b32 a{32*i + 4*jp + e}, v{q1[i, jp] + e}' for e in range(4)]
        sched(k, body, [self.spread(self.unit_dma(3) + self.ring_start(), 20, 20)], vmax=1, tmax=1)
        k(f's_waitcnt vmcnt({nvm(k.lines[q0:]) + 16})')
        self.emit(self.poll_check(*wl, 1))
        self.att_consts()
        k(f's_waitcnt vmcnt({nvm(k.lines[q0:])})')
        k(f'buffer_store_dword v4, v3, s[{SWS}:{SWS+3}], s{sFl} offen sc1')
        self.stamp(3)

    def spread(self, items, g0, dg):
        out = []; g = g0
        for x in items:
            x = x[0] if isinstance(x, tuple) else x
            if x.startswith('buffer'): out.append((x, g)); g += dg
            else: out.append((x, max(0, g - 2)))
        return out

    def role_kb(self):
        k = self.k
        t0, t1, t2, t3 = vTmp + 4, vTmp + 5, vTmp + 6, vTmp + 7
        X2 = (SX2, vXo2, sX2o, 128 * 896); W2 = (SW2, vWo2, sW2o, 2688, 2)
        if int(self.opt.get('bmap', 1)):
            k(f's_and_b32 s{sBH}, s2, 1'); k(f's_lshl_b32 s{sBH}, s{sBH}, 3'); k(f's_add_u32 s{sBH}, s{sBH}, s{sP}')
            k(f's_and_b32 s{sBR}, s2, 6'); k(f's_lshr_b32 s{sT}, s2, 7'); k(f's_add_u32 s{sBR}, s{sBR}, s{sT}')
        else:
            k(f's_mov_b32 s{sBH}, s{sH}'); k(f's_mov_b32 s{sBR}, s{sP}')
        k(f's_mul_i32 s{sX2o}, s{sBR}, {256 * 896}')
        k(f's_mul_i32 s{sW2o}, s{sBH}, 56')
        k(f's_mov_b32 s{sScale}, {f32(LOG2E / 16)}')
        k(f's_mov_b32 s{sScale + 1}, s{sScale}')
        self.kv_base(12, WS_KV)
        k(f'v_lshrrev_b32 v{t0}, 2, v{vL}')
        k(f'v_mul_u32_u24 v{t0}, 2688, v{t0}')
        k(f's_mul_i32 s{sT}, s{sWV}, 896')
        k(f's_cmp_eq_u32 s{sWV}, 3')
        k(f's_cselect_b32 s{sT}, {OOB}, s{sT}')
        k(f'v_add_u32 v{t0}, s{sT}, v{t0}')
        k(f'v_lshrrev_b32 v{t1}, 5, v{vL}')
        k(f'v_lshlrev_b32 v{t1}, 1, v{t1}')
        k(f'v_and_b32 v{t2}, 3, v{vL}')
        k(f'v_xor_b32 v{t1}, v{t1}, v{t2}')
        k(f'v_lshl_add_u32 v{vWo2}, v{t1}, 4, v{t0}')
        k(f'v_add_u32 v{vWo2+1}, {16 * 2688 - 1024}, v{vWo2}')
        self.gemm1('K', 'F_kloop', X2, W2)
        koff = lambda p: (pair_pos('K', p)[0] >> 1) * 262144 + (pair_pos('K', p)[0] & 1) * 8192 + pair_pos('K', p)[1] * 1024
        pre = [f's_and_b32 s{sT}, s{sWV}, 1', f's_lshl_b32 s{sT}, s{sT}, 13',
               f'v_add_u32 v{vXb}, s{sT}, v{vXb}', f'v_add_u32 v{vXb+1}, s{sT}, v{vXb+1}', f'v_add_u32 v{vXr}, s{sT}, v{vXr}',
               f'v_lshrrev_b32 v{t1}, 4, v{vL}', f'v_lshl_add_u32 v{vWr}, v{t1}, 9, v{vL+1}', f'v_xor_b32 v{vWr+1}, 32, v{vWr}']
        ex = []; self.grp = None; nxt = 0
        for p in range(32):
            ex += self.pack(acc1(p), 32 + 4 * p, scale=sScale, g=2 * p + 6)
            if p % 4 == 3 and p >= 16: ex += self.store(32 + 4 * nxt, koff(nxt), g=2 * p + 6); nxt += 1
        self.step(31, 'K', xd=X2, wd=W2, rd='b', extra=ex, pre=pre)
        self.stamp(2)
        plan, te = self.plan(32, int(self.opt.get('tca', 45))); tb = te + 1; tflag = te + 4
        pl = (vTmp, vXo + 3, SWS, f's{sPF}')
        for t in range(32, 46):
            ex = self.planned(plan[t], koff, 1, 12) if plan.get(t) else []
            if t == tb: elast = self.last_store()
            if t == tflag:
                assert elast < self.ends[-3]
                ex = self.flag1() + ex
            if t == 42: ex += [(x, 4) for x in self.code_pf(vTmp + 4, vTmp + 5)]
            if t == 44: ex += [(x, 4) for x in self.att_setup()]
            if t == 45: ex += [(self.poll_load(*pl), 0)]
            self.step(t, 'B', xd=X2 if t <= 40 else None, wd=W2 if t <= 41 else None, rd='b' if t < 45 else None, extra=ex)
            if t == tflag: self.stamp(15)
        assert tflag <= 44
        self.stamp(4)
        self.features(pl)

    def features(self, pl):
        k = self.k
        t0, t1, t2, t3 = vTmp + 4, vTmp + 5, vTmp + 6, vTmp + 7
        WP = 144; BF = 96
        for n in range(16): k(f'v_accvgpr_read_b32 v{128 + n}, a{160 + n}')
        for n in range(8): k(f'v_lshl_or_b32 v{WP + n}, v{128 + 2*n + 1}, 16, v{128 + 2*n}')
        for n in range(8): self.emit(self.pack(('v', 160 + 8 * n), BF + 4 * n))
        k('s_nop 1')
        T = lambda n: 32 + 8 * n
        for n in range(8):
            for fs in range(2): k(mfma(('v', T(n) + 4 * fs), ('v', WP + 4 * fs), ('v', BF + 4 * n), '0'))
        k(f'v_mov_b32 v{t3}, 0x3f803f80')
        k(f's_lshl_b32 s{sT}, s{sWV}, 12')
        k(f's_add_u32 s{sT}, s{sT}, {VBO}')
        k(f'v_add_u32 v{t2}, s{sT}, v{vSt}')
        for ip in range(2):
            for j in range(2):
                b = AV(ip, j)
                self.emit(self.pack(('v', b), b))
                if j == 1:
                    for e in range(4): k(f'v_cndmask_b32 v{b + e}, v{b + e}, v{t3}, s[{sM28}:{sM28+1}]')
                k(f'ds_write_b128 v{t2}, v[{b}:{b+3}] offset:{ip*2048 + j*1024}')
        k('s_waitcnt vmcnt(0)')
        self.emit(self.poll_check(*pl, 1))
        self.stamp(5)
        E = lambda n: 160 + 8 * n
        BP, BN, TS, NI = 96, 104, 112, vTmp + 1
        SC = f's[{sScale}:{sScale+1}]'
        k(f's_mov_b32 s{sScale}, {f32(LOG2E)}')
        k(f's_mov_b32 s{sScale+1}, s{sScale}')
        k(f'v_mov_b32 v{NI}, 0xff800000')
        def reduce4(ops, mids):
            ch = []
            for X, op, mid in zip((BP, BN), ops, mids):
                x = [X + 2 * n for n in range(4)]
                ch.append([[f'v_permlane32_swap_b32 v{x[0]}, v{x[2]}', f'v_permlane32_swap_b32 v{x[1]}, v{x[3]}'],
                           [f'{op} v{x[0]}, v{x[0]}, v{x[2]}', f'{op} v{x[1]}, v{x[1]}, v{x[3]}'], ['s_nop 0'],
                           [f'v_permlane16_swap_b32 v{x[0]}, v{x[1]}'], [f'{op} v{x[0]}, v{x[0]}, v{x[1]}'], [mid(x[0])],
                           [f'v_mov_b32 v{x[1]}, v{x[0]}'], ['s_nop 0'], [f'v_permlane16_swap_b32 v{x[0]}, v{x[1]}'],
                           [f'v_mov_b32 v{x[2]}, v{x[0]}', f'v_mov_b32 v{x[3]}, v{x[1]}'], ['s_nop 0'],
                           [f'v_permlane32_swap_b32 v{x[0]}, v{x[2]}', f'v_permlane32_swap_b32 v{x[1]}, v{x[3]}']])
            out = ['s_nop 1']
            for a_, b_ in zip(*ch): out += a_ + (b_ if a_ != ['s_nop 0'] else [])
            return out
        def group(n0):
            L = []
            for nm, X in (('max', BP), ('min', BN)):
                L += [f'v_{nm}3_f32 v{X + 2*n}, v{T(n0+n)}, v{T(n0+n)+1}, v{T(n0+n)+2}' for n in range(4)]
                for e in (3, 5): L += [f'v_{nm}3_f32 v{X + 2*n}, v{X + 2*n}, v{T(n0+n)+e}, v{T(n0+n)+e+1}' for n in range(4)]
                L += [f'v_{nm}_f32 v{X + 2*n}, v{X + 2*n}, v{T(n0+n)+7}' for n in range(4)]
            L += reduce4(('v_max_f32', 'v_min_f32'), (lambda x: f'v_mul_f32 v{x}, s{sScale}, -v{x}', lambda x: f'v_mul_f32 v{x}, s{sScale}, v{x}'))
            L += [f'v_cndmask_b32 v{X + 2*n + 1}, v{X + 2*n}, v{NI}, s[{sM3}:{sM3+1}]' for X in (BP, BN) for n in range(4)]
            for n in range(4):
                t, e_ = T(n0 + n), E(n0 + n)
                for X, d, ng in ((BN, e_, 1), (BP, t, 0)):
                    for e in range(0, 8, 2):
                        h = e >> 2
                        L.append(f'v_pk_fma_f32 v[{d+e}:{d+e+1}], v[{t+e}:{t+e+1}], {SC}, v[{X + 2*n}:{X + 2*n + 1}] op_sel:[0,0,{h}] op_sel_hi:[1,1,{h}] neg_lo:[{ng},0,0] neg_hi:[{ng},0,0]')
                L += [f'v_exp_f32 v{d+e}, v{d+e}' for d in (e_, t) for e in range(8)]
            pairs = [(X, Y, n) for X, Y in ((BN, E), (BP, T)) for n in range(4)]
            L += [f'v_pk_add_f32 v[{X + 2*n}:{X + 2*n + 1}], v[{Y(n0+n)}:{Y(n0+n)+1}], v[{Y(n0+n)+2}:{Y(n0+n)+3}]' for X, Y, n in pairs]
            for e in (4, 6): L += [f'v_pk_add_f32 v[{X + 2*n}:{X + 2*n + 1}], v[{X + 2*n}:{X + 2*n + 1}], v[{Y(n0+n)+e}:{Y(n0+n)+e+1}]' for X, Y, n in pairs]
            L += [f'v_add_f32 v{X + 2*n}, v{X + 2*n}, v{X + 2*n + 1}' for X, Y, n in pairs]
            L += reduce4(('v_add_f32', 'v_add_f32'), (lambda x: f'v_rcp_f32 v{x}, v{x}',) * 2)
            for n in range(4):
                for sg, (X, Y) in enumerate(((BP, T), (BN, E))):
                    y = Y(n0 + n)
                    L += [f'v_pk_mul_f32 v[{y+e}:{y+e+1}], v[{y+e}:{y+e+1}], v[{X + 2*n}:{X + 2*n + 1}] op_sel_hi:[1,0]' for e in range(0, 8, 2)]
                    d = y if n0 else 64 + 8 * n + 4 * sg
                    L += [x for x, _ in self.pack(('v', y), d)]
                    if n0: L += [f'ds_write_b64 v{t0 + 2*sg + fs}, v[{y+2*fs}:{y+2*fs+1}] offset:{n*2048}' for fs in range(2)]
            return L
        k(f'v_and_b32 v{t0}, 15, v{vL}')
        k(f'v_bfe_u32 v{t1}, v{vL}, 1, 2')
        k(f'v_lshlrev_b32 v{t1}, 5, v{t1}')
        k(f'v_lshl_add_u32 v{t0}, v{t0}, 7, v{t1}')
        k(f'v_lshrrev_b32 v{t1}, 4, v{vL}')
        k(f'v_lshl_add_u32 v{t0}, v{t1}, 3, v{t0}')
        k(f'v_add_u32 v{t0}, s{sW8}, v{t0}')
        for un in range(1, 4): k(f'v_xor_b32 v{t0 + un}, {32 * un}, v{t0}')
        ql = (vTmp + 3, vXo + 2, SWS, f's{sWo}')
        k(f's_lshl_b32 s{sWo}, s{sPO}, 7')
        k(f's_add_u32 s{sWo}, s{sWo}, {WS_FLAG + FL_Q}')
        k(f's_lshl_b32 s{sSo}, s{sPO}, 14')
        k(f's_add_u32 s{sSo}, s{sSo}, {WS_Q}')
        wl = (vWo, vWo + 1, SWS, f's{sWt}')
        self.emit(self.lanes(vWo + 1, 8))
        fill = self.spread(self.k0_dma() + self.unit_dma(1) + self.unit_dma(2) + [self.poll_load(*wl)] + self.ring_rd(), 2, 12)
        sched(k, group(4), [fill], vmax=1, tmax=1)
        k(f'v_lshrrev_b32 v{vTmp}, 2, v{vL}')
        k(f'v_bfe_u32 v{vTmp+2}, v{vL}, 3, 2')
        k(f'v_xor_b32 v{vTmp+2}, s{sWV}, v{vTmp+2}')
        k(f'v_lshlrev_b32 v{vTmp+2}, 5, v{vTmp+2}')
        k(f'v_lshl_add_u32 v{vTmp}, v{vTmp}, 7, v{vTmp+2}')
        k(f'v_and_b32 v{vTmp+2}, 3, v{vL}')
        k(f'v_lshl_add_u32 v{vTmp}, v{vTmp+2}, 3, v{vTmp}')
        k(f'v_add_u32 v{vTmp+2}, {VBO}, v{vSt}')
        k('s_waitcnt vmcnt(9) lgkmcnt(0)')
        k('s_barrier')
        k(self.flagstore(sXo))
        for kb in range(8):
            for rho in range(2): k(f'ds_read_b64_tr_b16 a[{128 + 4*kb + 2*rho}:{129 + 4*kb + 2*rho}], v{vTmp} offset:{kb*4096 + rho*2048}')
            for j in range(2): k(f'ds_read_b128 a[{176 + 8*kb + 4*j}:{179 + 8*kb + 4*j}], v{vTmp+2} offset:{kb*2048 + j*1024}')
        self.emit(self.kreads())
        g0 = group(0); cut = int(len(g0) * float(self.opt.get('qpos', 0.8)))
        fill = self.spread(self.unit_dma(3) + self.ring_start(), 2, 8) + [(self.poll_load(*ql), max(0, cut - 100))]
        sched(k, g0[:cut], [fill], vmax=1, tmax=1)
        self.stamp(6)
        k('s_waitcnt vmcnt(0)')
        self.emit(self.poll_check(*wl, 1))
        self.emit(self.poll_check(*ql, 1))
        self.stamp(14)
        qk_ = K(); save = self.k; self.k = qk_; self.gload('a', 0, sSo); self.k = save
        sched(k, g0[cut:], [self.spread([l.strip() for l in qk_.lines], 1, 6)], vmax=1, tmax=1)
        k(f's_lshl_b32 s{sSt}, s{sBH}, 16')
        k(f's_lshl_b32 s{sT}, s{sBR}, 13')
        k(f's_add_u32 s{sSt}, s{sSt}, s{sT}')
        k(f's_lshl_b32 s{sT}, s{sWV}, 10')
        k(f's_add_u32 s{sSt}, s{sSt}, s{sT}')
        k(f's_add_u32 s{sSt}, s{sSt}, {WS_KVP}')
        k('s_waitcnt lgkmcnt(0)')
        k('s_barrier')
        for kb in range(8):
            for j in range(2):
                d = ('v', 112 + 4 * j)
                k(mfma(d, ('a', 128 + 4 * kb), ('a', 176 + 8 * kb + 4 * j), '0' if kb == 0 else d))
        self.att_consts()
        self.grp = None
        for j in range(2): self.emit(self.store(112 + 4 * j, j * 4096))
        k('s_waitcnt vmcnt(2)')
        self.stamp(3)
```

```python
from fz_regs import *

BIAS = 24.0
vRd, vL4, vZ, vNinf = 1, 2, 3, 4
v1 = vNinf
vPl, vH = 5, 6
vDump = 14
vOne, vLse = 8, 12
vS, vP, vNM, vLs, vT = 16, 32, 40, 48, 56
vB, vO = 64, 128
aQ, aK, aV = 0, 64, 128
S = lambda kt, u: vS + 8 * u + 4 * kt
O = lambda dt, u: vO + 64 * u + 4 * dt

class P2:
    def att_setup(self):
        split = int(self.opt.get('split', 33))
        L = [f's_lshl_b32 s{sHB}, s{sH}, 21', f's_lshl_b32 s{sW8}, s{sWV}, 13', f's_mov_b32 s{sOOB}, {OOB}', f's_mov_b32 s{sBig}, {f32(2.0 ** 100)}',
             f's_sub_u32 s{sQT}, 15, s{sP}', f's_lshl_b32 s{sT}, s{sQT}, 2', f's_min_u32 s{sT2}, s{sT}, {split}',
             f's_lshl_b32 s{sPO}, s{sH}, 3', f's_add_u32 s{sPO}, s{sPO}, s{sP}', f's_lshl_b32 s{sPO}, s{sPO}, 2', f's_add_u32 s{sPO}, s{sPO}, s{sWV}',
             f's_lshl_b32 s{sFl}, s{sPO}, 7']
        if self.role == 'A':
            L += [f's_mov_b32 s{sN}, s{sT2}', f's_mov_b32 s{sT0}, 0', f's_mov_b32 s{sDiag}, 0', f's_mov_b32 s{sMode}, 2', f's_mov_b32 s{sNext}, 0',
                  f's_mov_b32 s{sFj}, s{sOOB}', f's_mov_b32 s{sFc2}, 64', f's_lshl_b32 s{sFl}, s{sBH}, 3', f's_add_u32 s{sFl}, s{sFl}, s{sBR}', f's_lshl_b32 s{sFl}, s{sFl}, 2',
                  f's_add_u32 s{sFl}, s{sFl}, s{sWV}', f's_lshl_b32 s{sFl}, s{sFl}, 7', f's_add_u32 s{sFl}, s{sFl}, {WS_FLAG + FL_B1}']
        else:
            L += [f's_add_u32 s{sN}, s{sT}, 4', f's_sub_u32 s{sN}, s{sN}, s{sT2}', f's_mov_b32 s{sT0}, s{sT2}', f's_mov_b32 s{sDiag}, 1',
                  f's_mov_b32 s{sMode}, 1', f's_mov_b32 s{sNext}, 1', f's_lshl_b32 s{sFc2}, s{sP}, 2', f's_add_u32 s{sFc2}, s{sFc2}, 4',
                  f's_add_u32 s{sFj}, s{sHB}, s{sW8}', f's_add_u32 s{sFj}, s{sFj}, 16384', f's_lshr_b32 s{sT}, s{sWV}, 1', f's_lshl_b32 s{sT}, s{sT}, 15',
                  f's_sub_u32 s{sFj}, s{sFj}, s{sT}', f's_add_u32 s{sFl}, s{sFl}, {WS_FLAG + FL_Q}']
        L += [f's_lshr_b32 s{sT}, s{sWV}, 1', f's_sub_u32 s{sFc}, s{sN}, s{sT}', f's_lshl_b32 s{sF}, s{sT0}, 15', f's_add_u32 s{sF}, s{sF}, s{sHB}']
        L += [f's_lshl_b32 s{sT}, s{sROLE}, 3', f's_add_u32 s{sT}, s{sT}, s{sP}', f's_lshl_b32 s{sT}, s{sT}, 1', f's_lshr_b32 s{sRT}, s2, 7',
              f's_add_u32 s{sT}, s{sT}, s{sRT}', f's_lshr_b32 s{sCc}, s{sT}, 2', f's_and_b32 s{sT}, s{sT}, 3', f's_and_b32 s{sRT}, s2, 7',
              f's_lshl_b32 s{sRT}, s{sRT}, 2', f's_add_u32 s{sRT}, s{sRT}, s{sT}', f's_lshl_b32 s{sT}, s{sCc}, 2', f's_add_u32 s{sT}, s{sT}, s{sWV}',
              f's_lshl_b32 s{sWp}, s{sT}, 17', f's_add_u32 s{sWp}, s{sWp}, {WS_WF}', f's_lshl_b32 s{sWt}, s{sT}, 10', f's_add_u32 s{sWt}, s{sWt}, {WS_FLAG + FL_KV}']
        return L

    def k0_dma(self):
        return [f's_lshr_b32 s{sT}, s{sW8}, 1', f's_add_u32 s{sT2}, s{sF}, s{sT}', f's_add_u32 m0, s{sT}, 131072'] + \
               [f'buffer_load_dwordx4 v{vL16}, s[{SWS}:{SWS+3}], s{sT2} offen offset:{1024*i} sc1 lds' for i in range(4)] + \
               [f's_add_u32 s{sF}, s{sF}, s{sW8}', f's_add_u32 s{sF}, s{sF}, 16384']

    def unit_dma(self, slot):
        return [f's_add_u32 s{sDs}, s{sW8}, {32768 * slot}'] + [x for x, _ in self.dma([1] * 8)] + [f's_add_u32 s{sF}, s{sF}, 32768', f's_sub_u32 s{sFc}, s{sFc}, 1',
                f's_cmp_eq_u32 s{sFc}, 0\ns_cselect_b32 s{sF}, s{sFj}, s{sF}\ns_cselect_b32 s{sFc}, s{sFc2}, s{sFc}\ns_cselect_b32 s{sFj}, s{sOOB}, s{sFj}']

    def ring_start(self):
        return [f's_mov_b32 s{sDs}, s{sW8}', f's_mov_b32 s{sRs}, 32768']

    def ring_rd(self): return [f'v_add_u32 v{vRd}, {131072 - 16384}, v{vL16}']

    def qk(self, u, c0):
        return [mfma(('v', S(kt, u)), ('a', aK + 32 * kt + 4 * ds), ('a', aQ + 32 * u + 4 * ds),
                     (c0 if c0 else ('v', vNM + 4 * u)) if ds == 0 else ('v', S(kt, u)))
                for ds in range(8) for kt in range(2)]

    def pv(self, u, first):
        m = [mfma(('v', O(dt, u)), ('a', aV + 4 * dt), ('v', vP + 4 * u), '0' if first else ('v', O(dt, u))) for dt in range(16)]
        return m + [mfma(('v', vLs + 4 * u), ('v', vOne), ('v', vP + 4 * u), '0' if first else ('v', vLs + 4 * u))]

    def soft(self, u, g):
        b = vS + 8 * u
        return [(f'v_exp_f32 v{b + e}, v{b + e}', g) for e in range(8)] + \
               [(f'v_cvt_pk_bf16_f32 v{vP + 4*u + e}, v{b + 2*e}, v{b + 2*e + 1}', g) for e in range(4)]

    def vreads(self): return [f'ds_read_b128 a[{aV + 4*n}:{aV + 4*n + 3}], v{vRd} offset:{1024*n}' for n in range(16)]
    def kreads(self):
        return [f'ds_read_b128 a[{aK + 32*kt + 4*ds}:{aK + 32*kt + 4*ds + 3}], v{vRd} offset:{16384 + 8192*kt + 1024*ds}' for ds in range(8) for kt in range(2)]

    def dma(self, gaps):
        it = []
        for grp in range(2):
            g0 = gaps[4 * grp]
            if grp == 0: it.append((f's_mov_b32 m0, s{sDs}', g0 - 1)); so = sF
            else:
                it.append((f's_add_u32 s{sT2}, s{sF}, 4096', g0 - 1)); it.append((f's_add_u32 m0, s{sDs}, 4096', g0 - 1)); so = sT2
            for i in range(4):
                it.append((f'buffer_load_dwordx4 v{vL16}, s[{SWS}:{SWS+3}], s{so} offen offset:{1024*i} {self.opt.get("kvf", "sc1").replace("_", " ")} lds', gaps[4 * grp + i]))
        return it

    def adv(self, g):
        self.uid += 1; L = f'F_sw{self.uid}'
        self.late += [f'{L}:', f's_mov_b32 s{sF}, s{sFj}', f's_mov_b32 s{sFc}, s{sFc2}', f's_mov_b32 s{sFj}, s{sOOB}', f's_cmp_eq_u32 s{sF}, s{sOOB}',
                      f's_cbranch_scc0 {L}r', f's_add_u32 s{sF}, s{sWp}, {4 * 4096}', f's_mov_b32 s{sW0}, s{sRs}', f's_mov_b32 s{sUs}, 8192',
                      f's_mov_b32 s{sFc}, 4096', f's_branch {L}r']
        return [(t, g) for t in (f's_add_u32 s{sF}, s{sF}, s{sUs}', f's_sub_u32 s{sFc}, s{sFc}, 1', f's_cmp_eq_u32 s{sFc}, 0',
                f's_cbranch_scc1 {L}\n{L}r:')]

    def slot_s(self, g):
        return [(t, g) for t in (f's_add_u32 s{sDs}, s{sRs}, s{sW8}', f's_add_u32 s{sRs}, s{sRs}, 32768', f's_and_b32 s{sRs}, s{sRs}, 0x1ffff',
                f's_add_u32 s{sIt}, s{sIt}, 1')]

    def ahead(self):
        k = self.k
        if self.opt.get('itprof'): k('s_memtime s[82:83]')
        if self.opt.get('vfirst'): k(f'v_add_u32 v{vRd}, s{sRs}, v{vL16}')
        k('s_waitcnt vmcnt(16) lgkmcnt(0)')
        if not self.opt.get('vfirst'): k(f'v_add_u32 v{vRd}, s{sRs}, v{vL16}')
        if self.opt.get('itprof'): k(f's_mov_b32 m0, s{sIt}'); k('s_nop 0'); k(f'v_writelane_b32 v{vDump}, s82, m0')
        if not self.opt.get('nobar'): k('s_barrier')

    def mask(self):
        k = self.k
        for u in range(2):
            for r in range(4): k(f'v_cndmask_b32 v{S(u, u) + r}, v{S(u, u) + r}, v{vNinf}, s[{sMK + 2*r}:{sMK + 2*r + 1}]')
        for r in range(4): k(f'v_mov_b32 v{S(1, 0) + r}, v{vNinf}')

    def rowmax(self, dst):
        k = self.k
        for u in range(2): k(f'v_max3_f32 v{dst + u}, v{vS + 8*u}, v{vS + 8*u + 1}, v{vS + 8*u + 2}')
        for e in (3, 5):
            for u in range(2): k(f'v_max3_f32 v{dst + u}, v{dst + u}, v{vS + 8*u + e}, v{vS + 8*u + e + 1}')
        for u in range(2): k(f'v_max_f32 v{dst + u}, v{dst + u}, v{vS + 8*u + 7}')

    def setmax(self, m):
        k = self.k
        for sw in ('v_permlane32_swap_b32', 'v_permlane16_swap_b32'):
            for u in range(2): k(f'v_mov_b32 v{m + 2 + u}, v{m + u}')
            k('s_nop 1')
            for u in range(2): k(f'{sw} v{m + u}, v{m + 2 + u}')
            for u in range(2): k(f'v_max_f32 v{m + u}, v{m + u}, v{m + 2 + u}')
        for u in range(2):
            for r in range(4): k(f'v_sub_f32 v{vNM + 4*u + r}, {f32(-BIAS)}, v{m + u}')

    def tail_streams(self):
        kg = [32, 33, 44, 45, 46, 47, 48] + list(range(49, 58))
        return [(t, g - 32) for t, g in zip(self.kreads(), kg)]

    def it_mid(self):
        k = self.k; o = self.opt
        L = lambda key, d: [int(x) for x in o[key].split('.')] if key in o else d
        self.ahead()
        mf = self.qk(0, None) + self.qk(1, None) + self.pv(0, False) + self.pv(1, False)
        k(mf[0])
        if not o.get('nohook'):
            k(f's_cmp_ge_u32 s{sIt}, s{sHook}')
            k('s_cbranch_scc1 F_hook')
        k('F_hookret:')
        mf = mf[1:]
        if o.get('noones'): mf = [m if f'v[{vOne}:' not in m else 's_nop 0' for m in mf]
        vg = L('vg', [0, 1, 2, 3, 5, 6, 7, 8, 9, 10, 11, 13, 14, 15, 16, 16]); kg = L('kg', [31, 32, 33, 45, 46, 47, 48, 49, 50, 51, 53, 54, 55, 56, 57, 58]); dg = L('dg', [4, 12, 20, 28, 36, 44, 52, 60])
        rd = list(zip(self.vreads(), vg)) + [('s_waitcnt lgkmcnt(0)', 29)] + list(zip(self.kreads(), kg))
        if o.get('nords'): rd = [('s_nop 0', 0)] * 17
        sm = self.soft(0, int(o.get('s0', 17))) + self.soft(1, int(o.get('s1', 34)))
        dm = self.dma(dg)
        if o.get('nodma'): dm = []
        ag = int(o.get('ag', 60))
        dm += self.adv(ag) + self.slot_s(ag + 2) + [(f's_sub_u32 s{sCnt}, s{sCnt}, 1', 62), (f's_cmp_gt_u32 s{sCnt}, s{sEx}', 62)]
        if o.get('dp', 1):
            VMCOST[0] = 2
            sched(k, mf, [dm, rd, sm], req={31: [(1, 17), (2, 12)], 48: [(2, 24)]})
            VMCOST[0] = 1
        else: sched(k, mf, [rd, sm, dm], req={31: [(0, 17), (1, 12)], 48: [(1, 24)]})

    def it_tail(self, n):
        k = self.k
        if n == 0: k('s_waitcnt vmcnt(8)')
        self.ahead()
        mf = self.qk(0, None) + self.qk(1, None) + self.pv(0, False) + self.pv(1, False)
        pl = []
        if n == 0:
            k(mf[0]); self.emit(self.poll_check(vPl, vZ, SWS, f's{sWt}', 1))
            pl += [f's_lshl_b32 s{sT}, s{sPO}, 10', f's_add_u32 s{sT}, s{sT}, {WS_ML}']
            pl += [f'buffer_load_dword v{vLse + u}, v{vL4}, s[{SWS}:{SWS+3}], s{sT} offen offset:{256*u} sc1' for u in range(2)]
            pl += [f's_lshl_b32 s{sSo}, s{sPO}, 14']
        else: k(mf[0])
        mf = mf[1:]
        for i in range(8 * n, 8 * n + 8):
            if i % 4 == 0: pl.append(f's_add_u32 s{sT}, s{sSo}, {WS_PART + 1024 * i}')
            pl.append(f'buffer_load_dwordx4 v[{vB + 4*i}:{vB + 4*i + 3}], v{vL16}, s[{SWS}:{SWS+3}], s{sT} offen offset:{1024 * (i % 4)} sc1')
        pg = [[2, 6, 10, 14, 30, 48, 54, 58, 62, 64], [2, 6, 10, 14, 18, 22, 30, 32]][n]; pq = []; g = 0
        for x in pl:
            pq.append((x, pg[g] if x.startswith('buffer') else max(0, pg[g] - 2)))
            if x.startswith('buffer'): g += 1
        vg = [0, 0, 1, 3, 3, 5, 7, 7, 8, 9, 11, 11, 13, 15, 15, 16]
        rd = list(zip(self.vreads(), vg)) + [('s_waitcnt lgkmcnt(0)', 29)]
        if n == 0: rd += list(zip(self.kreads(), [31, 32, 33, 45, 46, 47, 49, 49, 50, 51, 51, 53, 55, 55, 56, 57]))
        dg = [[4, 12, 20, 28, 36, 44, 52, 60], [4, 12, 33, 45, 49, 53, 57, 61]][n]
        dm = self.dma(dg) + [(f's_add_u32 s{sF}, s{sF}, s{sUs}', 61)] + self.slot_s(62)
        VMCOST[0] = 2
        sched(k, mf, [dm, pq, rd, self.soft(0, 17) + self.soft(1, 34)], req={29: [(3, 12)], 31: [(2, 17)], 46: [(3, 24)]})
        VMCOST[0] = 1
        last = max(i for i, l in enumerate(k.lines) if l.strip() == pl[-1])
        return last + 1

    def wl(self):
        it = []
        for n in range(16):
            if n % 4 == 0: it.append(f's_add_u32 s{sSo}, s{sWt}, {1024 * n}')
            it.append(f'buffer_load_dwordx4 a[{192 + 4*n}:{195 + 4*n}], v{vL16}, s[{SWS}:{SWS+3}], s{sSo} offen offset:{1024 * (n % 4)} sc1')
        return it

    def first_end(self):
        self.k('s_waitcnt vmcnt(24)')
        self.k(f'buffer_store_dword v{v1}, v{vZ}, s[{SWS}:{SWS+3}], s{sFl} offen sc1')

    def it_only(self):
        k = self.k
        k('F_only:')
        mf = self.qk(0, '0') + self.qk(1, '0')
        sched(k, mf, [[(t, 2 * n) for n, t in enumerate(self.vreads())], self.dma([1, 5, 9, 13, 17, 21, 25, 29])])
        self.emit(self.adv(0) + self.slot_s(0))
        k(f's_sub_u32 s{sCnt}, s{sCnt}, 1')
        self.mask(); self.rowmax(vT); self.setmax(vT)
        for u in range(2):
            for e in range(8): k(f'v_add_f32 v{vS + 8*u + e}, v{vS + 8*u + e}, v{vNM + 4*u}')
        self.emit(self.soft(0, 0) + self.soft(1, 0))
        k('s_waitcnt lgkmcnt(0)')
        sched(k, self.pv(0, True) + self.pv(1, True), [self.tail_streams(), self.spread(self.wl(), 1, 2)])
        self.first_end()
        k('s_branch F_done')

    def it_first(self):
        k = self.k
        self.ahead()
        k('F_first:')
        k(f's_cmp_eq_u32 s{sCnt}, s{sDiag}')
        k('s_cbranch_scc1 F_only')
        mf = self.qk(0, '0') + self.qk(1, '0') + self.pv(0, True) + self.pv(1, True)
        def chain(u, g):
            b = vS + 8 * u; m = vT + 2 * u
            L = [f'v_max3_f32 v{m}, v{b}, v{b+1}, v{b+2}', f'v_max3_f32 v{m}, v{m}, v{b+3}, v{b+4}', f'v_max3_f32 v{m}, v{m}, v{b+5}, v{b+6}', f'v_max_f32 v{m}, v{m}, v{b+7}']
            for sw in ('v_permlane32_swap_b32', 'v_permlane16_swap_b32'):
                L += [f'v_mov_b32 v{m+1}, v{m}', 's_nop 1', f'{sw} v{m}, v{m+1}', f'v_max_f32 v{m}, v{m}, v{m+1}']
            L.append(f'v_sub_f32 v{vNM + 4*u}, {f32(-BIAS)}, v{m}')
            L += [f'v_add_f32 v{b + e}, v{b + e}, v{vNM + 4*u}' for e in range(8)]
            return [(x, g) for x in L] + self.soft(u, g) + [('s_nop 1', g)]
        c0, c1 = chain(0, 18), chain(1, 34)
        nm = [(f'v_mov_b32 v{vNM + 4*u + r}, v{vNM + 4*u}', 50) for u in range(2) for r in range(1, 4)]
        w = self.wl()
        vg = [0, 0, 2, 2, 4, 4, 6, 6, 8, 8, 10, 10, 12, 12, 14, 14]
        rd = list(zip(self.vreads(), vg)) + [('s_waitcnt lgkmcnt(0)', 30)] + list(zip(self.kreads(), [32, 32, 33, 33] + [49 + n // 2 * 2 for n in range(12)]))
        dm = self.dma([1, 3, 5, 7, 9, 11, 13, 15]) + self.adv(15) + self.slot_s(16) + [(f's_sub_u32 s{sCnt}, s{sCnt}, 1', 17)]
        wq = self.spread(w[:5], 16, 4) + self.spread(w[5:10], 35, 4) + self.spread(w[10:], 50, 2)
        VMCOST[0] = 2
        sched(k, mf, [dm, rd, wq, c0 + c1 + nm], req={32: [(3, len(c0)), (1, 17)], 49: [(3, len(c0 + c1))]})
        VMCOST[0] = 1
        self.first_end()

    def it_last(self):
        k = self.k
        self.ahead()
        mf = self.qk(0, None)[0::2] + self.qk(1, None) + self.pv(0, False) + self.pv(1, False)
        cm = lambda u: [f'v_cndmask_b32 v{S(u, u) + r}, v{S(u, u) + r}, v{vNinf}, s[{sMK + 2*r}:{sMK + 2*r + 1}]' for r in range(4)]
        s0 = [(f'v_mov_b32 v{vP + e}, 0', 2) for e in (2, 3)] + [(x, 11) for x in cm(0)] + [x for n, x in enumerate(self.soft(0, 11)) if n in (0, 1, 2, 3, 8, 9)]
        sf = self.soft(1, 27)
        s1 = sf[:4] + [(x, 27) for x in cm(1)] + sf[4:]
        rd = list(zip(self.vreads(), [0, 0, 1, 1, 2, 3, 5, 5, 6, 6, 7, 7, 8, 8, 9, 9])) + [('s_waitcnt lgkmcnt(0)', 22)] + \
            list(zip(self.kreads(), [24, 24, 25, 25, 26, 26, 40, 41, 42, 43, 45, 46, 47, 48, 49, 50]))
        dm = self.dma([4, 10, 20, 23, 39, 44, 51, 54]) + self.adv(54) + self.slot_s(55) + [(f's_sub_u32 s{sCnt}, s{sCnt}, 1', 56)]
        VMCOST[0] = 2
        sched(k, mf, [dm, rd, s0 + s1], req={22: [(2, len(s0))], 24: [(1, 17)], 39: [(2, len(s0 + s1))]})
        VMCOST[0] = 1

    def it_idle(self, lbl):
        k = self.k
        self.ahead()
        self.emit(self.dma([1] * 8) + self.adv(0) + self.slot_s(0))
        k(f's_sub_u32 s{sRem}, s{sRem}, 1')
        k(f's_cmp_lg_u32 s{sRem}, 0')
        k(f's_cbranch_scc1 {lbl}')
        self.emit(self.kreads())
        k(f'{lbl}:')

    def out_store(self, ustride, merge, fill=None):
        k = self.k
        for u in range(2):
            for ds in range(8):
                b = O(2 * ds, u)
                for e in range(0, 8, 2):
                    k(f'v_pk_mul_f32 v[{b+e}:{b+e+1}], v[{b+e}:{b+e+1}], v[{vT + 2*u}:{vT + 2*u + 1}]')
                if merge:
                    for e in range(4):
                        src = vB + 32 * u + 4 * ds + e
                        k(f'v_lshlrev_b32 v{vS + 2*e}, 16, v{src}')
                        k(f'v_and_b32 v{vS + 2*e + 1}, 0xffff0000, v{src}')
                    for e in range(0, 8, 2):
                        k(f'v_pk_fma_f32 v[{b+e}:{b+e+1}], v[{vS+e}:{vS+e+1}], v[{vT + 4 + 2*u}:{vT + 5 + 2*u}], v[{b+e}:{b+e+1}]')
                for e in range(4): k(f'v_cvt_pk_bf16_f32 v{b + e}, v{b + 2*e}, v{b + 2*e + 1}')
                if ds % 4 == 0: k(f's_add_u32 s{sT2}, s{sSo}, {ustride(u, ds)}')
                k(f'buffer_store_dwordx4 v[{b}:{b+3}], v{vL16}, s[{SWS}:{SWS+3}], s{sT2} offen offset:{1024 * (ds % 4)} {self.opt.get("ctxsc", "sc1")}')
                if fill: self.emit(fill[8 * u + ds])

    def ctx_base(self):
        k = self.k
        k(f's_lshl_b32 s{sSo}, s{sQT}, 20')
        k(f's_lshl_b32 s{sT}, s{sWV}, 18')
        k(f's_add_u32 s{sSo}, s{sSo}, s{sT}')
        k(f's_lshl_b32 s{sT}, s{sH}, 13')
        k(f's_add_u32 s{sSo}, s{sSo}, s{sT}')
        k(f's_add_u32 s{sSo}, s{sSo}, {WS_CTX}')

    def slow(self):
        k = self.k
        k('F_slow:')
        k('s_waitcnt vmcnt(0) lgkmcnt(0)')
        for ps in range(2):
            k(f's_lshl_b32 s{sSo}, s{sT0}, 15')
            k(f's_add_u32 s{sSo}, s{sSo}, s{sHB}')
            k(f's_mov_b32 s{sCnt}, s{sNW}')
            if ps == 0:
                for u in range(2): k(f'v_mov_b32 v{vT + 4 + u}, v{vNinf}')
            else:
                for r in range(128): k(f'v_mov_b32 v{vO + r}, 0')
                for r in range(8): k(f'v_mov_b32 v{vLs + r}, 0')
            k(f'F_slow{ps}:')
            self.gload('a', aK, sSo, n=16 * (1 + ps))
            k(f's_add_u32 s{sSo}, s{sSo}, 32768')
            k(f's_sub_u32 s{sCnt}, s{sCnt}, 1')
            k('s_waitcnt vmcnt(0)')
            for m in self.qk(0, None if ps else '0') + self.qk(1, None if ps else '0'): k(m)
            k('s_nop 7')
            k(f's_cmp_ge_u32 s{sCnt}, s{sDiag}')
            k(f's_cbranch_scc1 F_slown{ps}')
            self.mask()
            k(f'F_slown{ps}:')
            if ps == 0:
                self.rowmax(vT)
                for u in range(2): k(f'v_max_f32 v{vT + 4 + u}, v{vT + 4 + u}, v{vT + u}')
            else:
                self.emit(self.soft(0, 0) + self.soft(1, 0))
                k('s_nop 1')
                for m in self.pv(0, False) + self.pv(1, False): k(m)
            k(f's_cmp_lg_u32 s{sCnt}, 0')
            k(f's_cbranch_scc1 F_slow{ps}')
            if ps == 0: self.setmax(vT + 4)
        self.emit(self.kreads())
        k('s_branch F_checked')

    def segcount(self):
        k = self.k
        k(f's_sub_u32 s{sRem}, 3, s{sWV}')
        k(f's_mul_i32 s{sRem}, s{sRem}, s{sDiag}')
        k(f's_sub_u32 s{sCnt}, s{sN}, s{sRem}')
        k(f's_mov_b32 s{sNW}, s{sCnt}')
        k(f's_cmp_eq_u32 s{sNext}, 0')
        k(f's_cselect_b32 s{sWt}, s{sWp}, s{sOOB}')

    def hooks(self):
        k = self.k
        k('F_hook:')
        for n in (1, 6, 7, 8, 9, 2, 3, 4, 5):
            k(f's_cmp_eq_u32 s{sHst}, {n}'); k(f's_cbranch_scc1 F_hook{n}')
        def done(d):
            k(f's_add_u32 s{sHook}, s{sIt}, {d}'); k(f's_add_u32 s{sHst}, s{sHst}, 1'); k('s_branch F_hookret')
        flag = lambda so: k(f'buffer_store_dword v{v1}, v{vZ}, s[{SWS}:{SWS+3}], s{so} offen sc1')
        kv = (vPl, vH, SWS, f's{sPF}')
        self.emit(self.lanes(vH, 16))
        k(self.poll_load(*kv))
        done(1)
        k('F_hook1:')
        k('s_waitcnt vmcnt(8)')
        self.emit(self.poll_check(*kv, 2))
        k(f's_cmp_eq_u32 s{sP}, 7')
        k(f's_cselect_b32 s{sHst}, 2, 6')
        k(f's_cselect_b32 s{sHook}, 8, 20')
        k(f's_cmp_eq_u32 s{sROLE}, 1')
        k(f's_cselect_b32 s{sHook}, s{sHook}, -1')
        k('s_branch F_hookret')
        PB = 96
        def pload(r0):
            k(f's_lshl_b32 s{sSo}, s{sH}, 16')
            k(f's_lshl_b32 s{sT}, s{sWV}, 11')
            k(f's_add_u32 s{sSo}, s{sSo}, s{sT}')
            k(f's_add_u32 s{sSo}, s{sSo}, {WS_KVP + 8192 * r0}')
            for r in range(4):
                for hf in range(2): k(f'buffer_load_dwordx4 v[{PB + 8*r + 4*hf}:{PB + 8*r + 4*hf + 3}], v{vL16}, s[{SWS}:{SWS+3}], s{sSo} offen offset:{1024*hf} sc1')
                k(f's_add_u32 s{sSo}, s{sSo}, 8192')
        k('F_hook2:')
        k(f's_lshl_b32 s{sSo}, s{sH}, 12')
        k(f's_add_u32 s{sSo}, s{sSo}, {WS_FLAG + FL_B1}')
        self.emit(self.lanes(vH, 32))
        pl = (vPl, vH, SWS, f's{sSo}')
        k(self.poll_load(*pl)); k('s_waitcnt vmcnt(0)')
        self.emit(self.poll_check(*pl, 1))
        pload(0)
        done(2)
        k('F_hook3:')
        for e in range(0, 8, 2): k(f'v_pk_add_f32 v[{vT+e}:{vT+e+1}], v[{PB+e}:{PB+e+1}], v[{PB+8+e}:{PB+9+e}]')
        for r in (2, 3):
            for e in range(0, 8, 2): k(f'v_pk_add_f32 v[{vT+e}:{vT+e+1}], v[{vT+e}:{vT+e+1}], v[{PB+8*r+e}:{PB+8*r+e+1}]')
        pload(4)
        done(2)
        k('F_hook4:')
        k(f's_lshl_b32 s{sSo}, s{sH}, 12')
        k(f's_lshl_b32 s{sT}, s{sWV}, 10')
        k(f's_add_u32 s{sSo}, s{sSo}, s{sT}')
        k(f's_add_u32 s{sSo}, s{sSo}, {WS_KVF}')
        for r in range(4):
            for e in range(0, 8, 2): k(f'v_pk_add_f32 v[{vT+e}:{vT+e+1}], v[{vT+e}:{vT+e+1}], v[{PB+8*r+e}:{PB+8*r+e+1}]')
        for e in range(4): k(f'v_cvt_pk_bf16_f32 v{vT + e}, v{vT + 2*e}, v{vT + 2*e + 1}')
        k(f'buffer_store_dwordx4 v[{vT}:{vT+3}], v{vL16}, s[{SWS}:{SWS+3}], s{sSo} offen sc1')
        done(2)
        k('F_hook5:')
        k(f's_lshl_b32 s{sSo}, s{sH}, 2')
        k(f's_add_u32 s{sSo}, s{sSo}, s{sWV}')
        k(f's_lshl_b32 s{sSo}, s{sSo}, 7')
        k(f's_add_u32 s{sSo}, s{sSo}, {WS_FLAG + FL_KVR}')
        flag(sSo)
        done(6)
        pl = (vPl, vH, SWS, f's{sWt}')
        k('F_hook6:')
        k(f's_lshl_b32 s{sWt}, s{sBH}, 9')
        k(f's_add_u32 s{sWt}, s{sWt}, {WS_FLAG + FL_KVR}')
        self.emit(self.lanes(vH, 4))
        k(self.poll_load(*pl))
        done(1)
        k('F_hook7:')
        k('s_waitcnt vmcnt(8)')
        self.emit(self.poll_check(*pl, 1))
        k(f's_lshl_b32 s{sSo}, s{sBH}, 12')
        k(f's_add_u32 s{sSo}, s{sSo}, {WS_KVF}')
        self.gload('v', PB, sSo, n=4)
        done(2)
        k('F_hook8:')
        k(f's_lshl_b32 s{sSo}, s{sBR}, 2')
        k(f's_add_u32 s{sSo}, s{sSo}, s{sWV}')
        k(f's_lshl_b32 s{sSo}, s{sSo}, 4')
        k(f's_add_u32 s{sSo}, s{sSo}, s{sBH}')
        k(f's_lshl_b32 s{sWt}, s{sSo}, 7')
        k(f's_add_u32 s{sWt}, s{sWt}, {WS_FLAG + FL_O}')
        k(f's_lshl_b32 s{sSo}, s{sSo}, 12')
        k(f's_add_u32 s{sSo}, s{sSo}, {WS_OF}')
        k(f'v_and_b32 v{vH}, 0x3c, v{vL4}')
        k(f'v_add_u32 v{vH}, 192, v{vH}')
        NB = lambda i: (112, 120, 64, 72)[i]
        for i in range(4):
            for j in (1, 0):
                d = ('v', NB(i) + 4 * j)
                for sg in range(2): k(mfma(d, ('v', PB + 8 * j + 4 * sg), ('v', vB + 8 * i + 4 * sg), d if sg else '0'))
        k('s_nop 4')
        for i in range(4): k(f'ds_bpermute_b32 v{vT + 2*i}, v{vH}, v{NB(i) + 4}')
        k('s_waitcnt lgkmcnt(0)')
        for i in range(4): k(f'v_add_f32 v{vT + 2*i}, {f32(1e-6)}, v{vT + 2*i}')
        for i in range(4): k(f'v_rcp_f32 v{vT + 2*i}, v{vT + 2*i}')
        for i in range(4):
            b_ = NB(i)
            for e in range(0, 8, 2): k(f'v_pk_mul_f32 v[{b_+e}:{b_+e+1}], v[{b_+e}:{b_+e+1}], v[{vT + 2*i}:{vT + 2*i + 1}] op_sel_hi:[1,0]')
            for e in range(4): k(f'v_cvt_pk_bf16_f32 v{b_ + e}, v{b_ + 2*e}, v{b_ + 2*e + 1}')
            for e in (2, 3): k(f'v_cndmask_b32 v{b_ + e}, v{b_ + e}, 0, s[{sM3}:{sM3+1}]')
            k(f'buffer_store_dwordx4 v[{b_}:{b_+3}], v{vL16}, s[{SWS}:{SWS+3}], s{sSo} offen offset:{1024*i} sc1')
        k(f's_sub_u32 s{sHook}, s{sN}, 3')
        k(f's_mov_b32 s{sHst}, 9')
        k('s_branch F_hookret')
        pl = (vPl, vZ, SWS, f's{sWt}')
        k('F_hook9:')
        flag(sWt)
        k(f's_lshl_b32 s{sWt}, s{sPO}, 7')
        k(f's_add_u32 s{sWt}, s{sWt}, {WS_FLAG + FL_P}')
        k(self.poll_load(*pl))
        self.emit(self.code_pf(vH, vH + 1))
        k(f'v_xor_b32 v{vH}, 0x8000, v{vH}')
        k(f'global_load_dword v{vH+1}, v{vH}, s[30:31]')
        k(f's_mov_b32 s{sHook}, -1')
        k('s_branch F_hookret')

    def att_consts(self):
        k = self.k
        k(f'v_lshrrev_b32 v{vL4}, 2, v{vL16}')
        k(f'v_bfe_u32 v{vZ}, v{vL16}, 2, 7')
        k(f'v_mov_b32 v{vNinf}, 0xff800000')
        for r in range(4): k(f'v_mov_b32 v{vOne + r}, 0x3f803f80')
        k(f'v_bfe_u32 v{vLse}, v{vL16}, 4, 4')
        k(f'v_lshrrev_b32 v{vLse+1}, 8, v{vL16}')
        k(f'v_lshlrev_b32 v{vLse+1}, 2, v{vLse+1}')
        for r in range(4):
            k(f'v_cmp_gt_u32 s[{sMK + 2*r}:{sMK + 2*r + 1}], v{vLse+1}, v{vLse}')
            k(f'v_add_u32 v{vLse+1}, 1, v{vLse+1}')
        k(f's_mov_b32 s{sUs}, 32768')
        k(f's_mov_b32 s{sIt}, 0')
        k(f's_add_u32 s{sEx}, s{sROLE}, 1')
        k(f's_mov_b32 s{sHook}, 1')
        k(f's_mov_b32 s{sHst}, 0')
        self.segcount()

    def attention(self):
        k = self.k
        k('F_att:')
        k('s_waitcnt lgkmcnt(0)')
        k(f'v_add_u32 v{vRd}, s{sRs}, v{vL16}')
        k('s_branch F_first')
        k('F_seg:')
        self.segcount()
        self.it_first()
        k(f's_cmp_gt_u32 s{sCnt}, s{sDiag}')
        k('s_cbranch_scc0 F_loopend')
        k('.p2align 6')
        for _ in range(int(self.opt.get('al', 4))): k('s_nop 0')
        k('F_loop:')
        self.it_mid()
        k('s_cbranch_scc1 F_loop')
        k('F_loopend:')
        k(f's_cmp_eq_u32 s{sDiag}, 1')
        k('s_cbranch_scc1 F_last')
        p0 = self.it_tail(0); p1 = self.it_tail(1)
        self.pw = (nvm(k.lines[p0:]), nvm(k.lines[p1:]))
        k('F_done:')
        k('s_nop 7')
        k(f'v_cmp_ngt_f32 vcc, s{sBig}, v{vLs}')
        k(f'v_cmp_ngt_f32 s[{sM28}:{sM28+1}], s{sBig}, v{vLs + 4}')
        k('s_nop 0')
        k(f's_or_b64 vcc, vcc, s[{sM28}:{sM28+1}]')
        k('s_cbranch_scc1 F_slow')
        k('F_checked:')
        if self.ts:
            k(f's_cmp_eq_u32 s{sNext}, 0'); k('s_cbranch_scc1 F_ts2'); self.stamp(5); k('F_ts2:'); self.stamp(7)
        k(f's_cmp_eq_u32 s{sRem}, 0')
        k('s_cbranch_scc1 F_epi')
        self.it_idle('F_epi')
        for u in range(2): k(f'v_rcp_f32 v{vT + 2*u}, v{vLs + 4*u}')
        for u in range(2): k(f'v_log_f32 v{vT + 4 + 2*u}, v{vLs + 4*u}')
        k(f's_cmp_eq_u32 s{sMode}, 2')
        k('s_cbranch_scc1 F_merge')
        for u in range(2): k(f'v_mov_b32 v{vT + 2*u + 1}, v{vT + 2*u}')
        for u in range(2): k(f'v_sub_f32 v{vT + 4 + 2*u}, v{vT + 4 + 2*u}, v{vNM + 4*u}')
        self.ctx_base()
        k(f's_lshl_b32 s{sT}, s{sPO}, 10')
        k(f's_add_u32 s{sT}, s{sT}, {WS_ML}')
        k(f's_lshl_b32 s{sT2}, s{sPO}, 14')
        k(f's_add_u32 s{sT2}, s{sT2}, {WS_PART}')
        k(f's_cmp_eq_u32 s{sMode}, 1')
        k(f's_cselect_b32 s{sT}, s{sT}, s{sOOB}')
        k(f's_cselect_b32 s{sSo}, s{sT2}, s{sSo}')
        k(f's_mov_b32 s{sSt}, 131072')
        k(f's_cselect_b32 s{sSt}, 8192, s{sSt}')
        k(f's_add_u32 s{sSt2}, s{sSt}, 4096')
        for u in range(2): k(f'buffer_store_dword v{vT + 4 + 2*u}, v{vL4}, s[{SWS}:{SWS+3}], s{sT} offen offset:{256*u} sc1')
        self.out_store(lambda u, ds: (ds * 1024 if u == 0 else f's{sSt2 if ds else sSt}'), False)
        k('F_post:')
        k(f's_cmp_eq_u32 s{sRem}, 0')
        k('s_cbranch_scc1 F_post2')
        self.it_idle('F_post1')
        k('s_branch F_post')
        k('F_post2:')
        k(f's_cmp_eq_u32 s{sNext}, 0')
        k('s_cbranch_scc1 F_p3')
        for r in range(64): k(f'v_accvgpr_write_b32 a{aQ + r}, v{vB + r}')
        self.stamp(6)
        k(f's_mov_b32 s{sNext}, 0')
        k(f's_mov_b32 s{sMode}, 0')
        k(f's_mov_b32 s{sT0}, 0')
        k(f's_mov_b32 s{sQT}, s{sP}')
        k(f's_lshl_b32 s{sN}, s{sP}, 2')
        k(f's_add_u32 s{sN}, s{sN}, 4')
        k(f's_add_u32 s{sFl}, s{sFl}, {FL_P - FL_Q}')
        k('s_branch F_seg')
        k('F_last:')
        self.it_last()
        k('s_branch F_done')
        self.it_only()
        self.hooks()
        self.slow()
        self.flush_late()
        k('F_merge:')
        k(f's_waitcnt vmcnt({self.pw[0]})')
        for u in range(2): k(f'v_sub_f32 v{vT + 4 + 2*u}, v{vT + 4 + 2*u}, v{vNM + 4*u}')
        for u in range(2): k(f'v_sub_f32 v{vT + 4 + 2*u}, v{vT + 4 + 2*u}, v{vLse + u}')
        for u in range(2): k(f'v_exp_f32 v{vT + 1 + 2*u}, -v{vT + 4 + 2*u}')
        for u in range(2): k(f'v_exp_f32 v{vT + 4 + 2*u}, v{vT + 4 + 2*u}')
        for u in range(2): k(f'v_add_f32 v{vT + 1 + 2*u}, 1.0, v{vT + 1 + 2*u}')
        for u in range(2): k(f'v_add_f32 v{vT + 4 + 2*u}, 1.0, v{vT + 4 + 2*u}')
        for u in range(2): k(f'v_rcp_f32 v{vT + 1 + 2*u}, v{vT + 1 + 2*u}')
        for u in range(2): k(f'v_rcp_f32 v{vT + 4 + 2*u}, v{vT + 4 + 2*u}')
        for u in range(2): k(f'v_mul_f32 v{vT + 2*u}, v{vT + 2*u}, v{vT + 1 + 2*u}')
        for u in range(2): k(f'v_mov_b32 v{vT + 5 + 2*u}, v{vT + 4 + 2*u}')
        for u in range(2): k(f'v_mov_b32 v{vT + 1 + 2*u}, v{vT + 2*u}')
        self.ctx_base()
        self.out_store(lambda u, ds: u * 131072 + ds * 1024, True, [[f's_waitcnt vmcnt({self.pw[1] + 8})'] if n == 7 else [] for n in range(16)])
```

```python
from fz_regs import *
from fz2 import vZ, v1, vL4

SO = SX
sXq, sOo, sCf = 58, 61, 62
sM = (63, 65, 74, 75, 69)
vL, vXo, vWr, vOut, vT = 1, 8, 32, 42, 24
AR = lambda s: 16 * ((s + 12) % 16)

class P3:
    def wd3(self, s):
        return [f's_add_u32 m0, s{sM[((s + 6) % 10) >> 1]}, {4096 * (s & 1)}', f's_add_u32 s{sT2}, s{sWp}, {4096 * s}'] + \
               [f'buffer_load_dwordx4 v{vL16}, s[{SWS}:{SWS+3}], s{sT2} offen offset:{1024*n} sc1 lds' for n in range(4)]

    def wr3(self, s):
        return [f'ds_read_b128 a[{AR(s) + 4*j}:{AR(s) + 4*j + 3}], v{vWr + (((s + 6) % 10) >> 1)} offset:{4096 * (s & 1) + 1024*j}' for j in range(4)]

    def wg3(self, s):
        return [f's_add_u32 s{sT2}, s{sWp}, {4096 * s}'] + \
               [f'buffer_load_dwordx4 a[{AR(s) + 4*j}:{AR(s) + 4*j + 3}], v{vL16}, s[{SWS}:{SWS+3}], s{sT2} offen offset:{1024*j} sc1' for j in range(4)]

    def ctxflag(self):
        return f'buffer_store_dword v{v1}, v{vZ}, s[{SWS}:{SWS+3}], s{sCf} offen sc1'

    def p3_setup(self):
        k = self.k
        k(f's_load_dwordx2 s[{SW}:{SW+1}], s[0:1], 80')
        k(f's_lshl_b32 s{sCf}, s{sQT}, 1')
        k(f's_lshr_b32 s{sT}, s{sWV}, 1')
        k(f's_add_u32 s{sCf}, s{sCf}, s{sT}')
        k(f's_lshl_b32 s{sCf}, s{sCf}, 4')
        k(f's_add_u32 s{sCf}, s{sCf}, s{sH}')
        k(f's_lshl_b32 s{sCf}, s{sCf}, 1')
        k(f's_and_b32 s{sT}, s{sWV}, 1')
        k(f's_add_u32 s{sCf}, s{sCf}, s{sT}')
        k(f's_lshl_b32 s{sCf}, s{sCf}, 7')
        k(f's_add_u32 s{sCf}, s{sCf}, {WS_FLAG + FL_CTX}')
        for n in range(4):
            k(f's_add_u32 s{sM[n]}, s{sW0}, {32768 * n}')
            k(f's_and_b32 s{sM[n]}, s{sM[n]}, 0x1ffff')
            k(f's_add_u32 s{sM[n]}, s{sM[n]}, s{sW8}')
        k(f's_add_u32 s{sM[4]}, s{sW8}, 131072')
        k(f'v_lshrrev_b32 v{vL}, 4, v{vL16}')
        for n in range(5): k(f'v_add_u32 v{vWr + n}, s{sM[n]}, v{vL16}')

    def out_a(self):
        k = self.k
        pos = {}
        since = lambda key: nvm(k.lines[pos[key]:])
        def wd(s):
            for x in self.wd3(s): k(x)
            pos['w', s] = len(k.lines)
        nl = 16 + int(self.opt.get('nlds', 10))
        k(f's_lshl_b32 s{sXq}, s{sRT}, 19')
        k(f's_lshl_b32 s{sT}, s{sWV}, 15')
        k(f's_add_u32 s{sXq}, s{sXq}, s{sT}')
        k(f's_add_u32 s{sXq}, s{sXq}, {WS_CTX}')
        k(f's_and_b32 s{sOo}, s{sCc}, {ROT(self)}')
        k(f's_lshl_b32 s{sOo}, s{sOo}, 14')
        k(f's_add_u32 s{sXq}, s{sXq}, s{sOo}')
        k(f's_lshl_b32 s{sOo}, s{sOo}, 1')
        k(f's_sub_u32 s{sOo}, 1024, s{sOo}')
        for i in range(4): k(f'v_add_u32 v{vXo + i}, {131072 * i}, v{vL16}')
        k(f's_lshl_b32 s{sSo}, s{sRT}, 12')
        k(f's_lshl_b32 s{sT}, s{sWV}, 10')
        k(f's_add_u32 s{sSo}, s{sSo}, s{sT}')
        k(f's_add_u32 s{sSo}, s{sSo}, {WS_FLAG + FL_CTX}')
        self.emit(self.lanes(vT + 1, 8))
        pl = (vT, vT + 1, SWS, f's{sSo}')
        RR = int(self.opt.get('xr', 3)); LA = RR - int(self.opt.get('xs', 0)); nv = min(8 - RR, int(self.opt.get('nv', 8)))
        WR = lambda s: ('a', AR(s)) if s < 32 - nv else ('v', 128 + 16 * (s - 24))
        for s in range(16, nl):
            if s == nl - 2 and not nv:
                k(self.poll_load(*pl)); pos['poll'] = len(k.lines)
            wd(s)
        for s in range(32 - nv, 32):
            if s == max(30, 32 - nv):
                k(self.poll_load(*pl)); pos['poll'] = len(k.lines)
            k(f's_add_u32 s{sT2}, s{sWp}, {4096 * s}')
            for j in range(4): k(f'buffer_load_dwordx4 {R("v", WR(s)[1] + 4*j, 4)}, v{vL16}, s[{SWS}:{SWS+3}], s{sT2} offen offset:{1024*j} sc1')
        k(f's_waitcnt vmcnt({since("poll")})')
        self.stamp(14)
        self.emit(self.poll_check(*pl, 1))
        self.stamp(10)
        xl = lambda s, i: f'buffer_load_dwordx4 v[{128 + 16*(s % RR) + 4*i}:{131 + 16*(s % RR) + 4*i}], v{vXo + i}, s[{SWS}:{SWS+3}], s{sXq} offen sc1'
        xadv = lambda s: f's_add_u32 s{sXq}, s{sXq}, ' + ('0' if self.opt.get('xfix') else '1024' if s != 15 else f's{sOo}')
        for s in range(LA):
            for i in range(4): k(xl(s, i))
            k(xadv(s)); pos['x', s] = len(k.lines)
        k(f'v_add_u32 v{vT}, s{sW8}, v{vL16}')
        k(f'v_and_b32 v{vT+1}, 15, v{vL}')
        k(f'v_lshrrev_b32 v{vT+2}, 4, v{vL}')
        k(f'v_lshlrev_b32 v{vT+3}, 9, v{vT+2}')
        k(f'v_lshl_add_u32 v{vT+3}, v{vT+1}, 4, v{vT+3}')
        k(f's_and_b32 s{sT}, s{sWV}, 1')
        k(f's_lshl_b32 s{sT}, s{sT}, 12')
        k(f's_lshr_b32 s{sT2}, s{sWV}, 1')
        k(f's_lshl_b32 s{sT2}, s{sT2}, 15')
        k(f's_add_u32 s{sT}, s{sT}, s{sT2}')
        k(f'v_add_u32 v{vT+3}, s{sT}, v{vT+3}')
        VMCOST[0] = 2
        for s in range(32):
            wn = s + 15 if 1 <= s < 17 - nv else None
            n = since(('x', s))
            if nl <= s < 32 - nv: n = min(n, since(('w', s)))
            k(f's_waitcnt vmcnt({n}) lgkmcnt(0)')
            mf = []
            for i in range(4):
                for j in (range(4) if i % 2 == 0 else range(3, -1, -1)):
                    d = ('v', 64 + 16 * i + 4 * j)
                    mf.append(mfma(d, (WR(s)[0], WR(s)[1] + 4 * j), ('v', 128 + 16 * (s % RR) + 4 * i), d if s else '0'))
            rd = []
            if wn is not None: rd = [(t, 4 * g + 1) for g, t in enumerate(self.wr3(wn))] if wn < nl else self.spread(self.wg3(wn), 2, 4)
            ld = [(xl(s + LA, i), 4 * i + (3 if LA == RR else 0)) for i in range(4)] + [(xadv(s + LA), 15)] if s + LA <= 31 else []
            if s == 31: rd = [(f'ds_write_b128 v{vT}, v[{64 + 4*n}:{67 + 4*n}] offset:{1024*(n & 7) + 32768*(n >> 3)}', 11 + (m >> 1)) for m, n in enumerate([0, 1, 2, 3, 7, 6, 5, 4, 8, 9, 10, 11, 15, 14, 13, 12])]; rd.insert(12, ('s_nop 0', 99))
            sched(k, mf, [ld, rd])
            if wn is not None and wn >= nl: pos['w', wn] = len(k.lines)
            if ld: pos['x', s + LA] = max(i for i, l in enumerate(k.lines) if l.strip() == xl(s + LA, 3)) + 1
        VMCOST[0] = 1
        self.stamp(11)
        k(f'v_mul_u32_u24 v{vOut}, 1792, v{vT+1}')
        k(f'v_lshl_add_u32 v{vOut}, v{vT+2}, 4, v{vOut}')
        k(f's_lshl_b32 s{sT}, s{sRT}, 2')
        k(f's_add_u32 s{sT}, s{sT}, s{sWV}')
        k(f's_mul_i32 s{sOo}, s{sT}, {16 * 1792}')
        k(f's_lshl_b32 s{sT}, s{sCc}, 7')
        k(f's_add_u32 s{sOo}, s{sOo}, s{sT}')
        k('s_waitcnt lgkmcnt(0)')
        k('s_barrier')
        for w in range(4):
            for hf in range(2):
                for c in range(2):
                    d = 128 + 16 * w + 8 * hf + 4 * c
                    k(f'ds_read_b128 v[{d}:{d+3}], v{vT + 3} offset:{w*8192 + hf*2048 + c*256}')
        for w in range(1, 4):
            k(f's_waitcnt lgkmcnt({12 - 4 * w})')
            for e in range(16): k(f'v_add_f32 v{128 + e}, v{128 + e}, v{128 + 16*w + e}')
        for e in range(8): k(f'v_cvt_pk_bf16_f32 v{128 + e}, v{128 + 2*e}, v{129 + 2*e}')
        for hf in range(2): k(f'buffer_store_dwordx4 v[{128 + 4*hf}:{131 + 4*hf}], v{vOut}, s[{SO}:{SO+3}], s{sOo} offen offset:{64*hf} {self.opt.get("of", "")}')

    def out_b(self):
        k = self.k
        k('F_p3b:')
        k(f's_lshl_b32 s{sSo}, s{sRT}, 11')
        k(f's_add_u32 s{sSo}, s{sSo}, {WS_FLAG + FL_O}')
        self.emit(self.lanes(vT + 1, 16))
        pl = (vT, vT + 1, SWS, f's{sSo}')
        k(self.poll_load(*pl))
        k(f'v_and_b32 v{vT+3}, 15, v{vL}')
        k(f'v_lshrrev_b32 v{vT+2}, 4, v{vL}')
        k(f'v_mul_u32_u24 v{vOut}, 1792, v{vT+3}')
        k(f'v_and_b32 v{vT+6}, 1, v{vT+2}')
        k(f'v_lshl_add_u32 v{vOut}, v{vT+6}, 5, v{vOut}')
        k(f'v_lshrrev_b32 v{vT+6}, 1, v{vT+2}')
        k(f'v_lshl_add_u32 v{vOut}, v{vT+6}, 4, v{vOut}')
        k(f's_lshl_b32 s{sXq}, s{sRT}, 16')
        k(f's_lshl_b32 s{sT}, s{sWV}, 14')
        k(f's_add_u32 s{sXq}, s{sXq}, s{sT}')
        k(f's_add_u32 s{sXq}, s{sXq}, {WS_OF}')
        k('s_waitcnt vmcnt(0)')
        self.emit(self.poll_check(*pl, 1))
        for hh in range(4):
            k(f's_add_u32 m0, s{sW8}, {32768*(hh >> 1) + 4096*(hh & 1)}')
            k(f's_add_u32 s{sT2}, s{sXq}, {4096 * hh}')
            for n in range(4): k(f'buffer_load_dwordx4 v{vL16}, s[{SWS}:{SWS+3}], s{sT2} offen offset:{1024*n} sc1 lds')
        k('s_waitcnt vmcnt(0)')
        k('s_barrier')
        self.stamp(10)
        oread = lambda s: [f'ds_read_b128 v[{64 + 16*(s & 1) + 4*i}:{67 + 16*(s & 1) + 4*i}], v{vL16} offset:{8192*(s >> 2) + 32768*((s >> 1) & 1) + 4096*(s & 1) + 1024*i}' for i in range(4)]
        self.emit(oread(0))
        k(f's_mul_i32 s{sOo}, s{sRT}, {64 * 1792}')
        k(f's_lshl_b32 s{sT}, s{sWV}, 8')
        k(f's_add_u32 s{sOo}, s{sOo}, s{sT}')
        k(f's_add_u32 s{sOo}, s{sOo}, 896')
        k(f's_cmp_eq_u32 s{sWV}, 3')
        k(f's_cselect_b32 s{sT}, s{sOOB}, s{sOo}')
        pos = {}
        def outp(i):
            it = []
            for jp in range(4):
                b = 128 + 32 * i + 8 * jp
                it += [f'v_cvt_pk_bf16_f32 v{b + e}, v{b + 2*e}, v{b + 2*e + 1}' for e in range(4)]
            it.append('s_nop 0')
            for jp in range(4):
                b = 128 + 32 * i + 8 * jp
                it += [f'v_permlane16_swap_b32 v{b + e}, v{b + 2 + e}' for e in range(2)]
            for jp in range(4):
                b = 128 + 32 * i + 8 * jp
                it.append(f'buffer_store_dwordx4 v[{b}:{b+3}], v{vOut}, s[{SO}:{SO+3}], s{sOo if jp < 2 else sT} offen offset:{64*jp} {self.opt.get("of", "")}')
            return it + [f's_add_u32 s{sOo}, s{sOo}, {16 * 1792}', f's_add_u32 s{sT}, s{sT}, {16 * 1792}']
        for s in range(16):
            k(f's_waitcnt vmcnt({nvm(k.lines[pos[s]:])}) lgkmcnt(0)' if s >= 8 else 's_waitcnt lgkmcnt(0)')
            mf = []
            for i in range(4):
                for j in (range(8) if i % 2 == 0 else range(7, -1, -1)):
                    d = ('v', 128 + 32 * i + 4 * j)
                    mf.append(mfma(d, ('a', AR(2 * s + (j >> 2)) + 4 * (j & 3)), ('v', 64 + 16 * (s & 1) + 4 * i), d if s else '0'))
            rd = [(t, 2 * n) for n, t in enumerate(oread(s + 1))] if s < 15 else []
            ld = [(t, 3 * n) for n, t in enumerate(self.wg3(2 * s + 14) + self.wg3(2 * s + 15))] if 1 <= s <= 8 else []
            if s == 15: ld = [(t, 8 * i + 15) for i in range(4) for t in outp(i)]
            sched(k, mf, [rd, ld])
            pos[s + 7] = len(k.lines)
        self.stamp(11)

    def phase3(self):
        k = self.k
        k('F_p3:')
        self.stamp(8)
        k('s_waitcnt lgkmcnt(0)')
        self.emit(self.wg3(12) + self.wg3(13) + self.wg3(14) + self.wg3(15))
        self.p3_setup()
        k('s_waitcnt vmcnt(16)')
        k(self.ctxflag())
        self.stamp(9)
        for s in range(4, 10): self.emit(self.wr3(s))
        k(f's_cmp_lt_u32 s{sWV}, 2')
        k('s_cbranch_scc1 F_p3v')
        self.emit(self.wr3(10) + self.wr3(11))
        k('s_branch F_p3k')
        k('F_p3v:')
        self.emit(self.wg3(10) + self.wg3(11))
        k('F_p3k:')
        k('s_waitcnt lgkmcnt(0)')
        k('s_barrier')
        srd(k, SO, SW, 2048 * 1792)
        k(f's_cmp_eq_u32 s{sCc}, 7')
        k('s_cbranch_scc1 F_p3b')
        self.out_a()
        k('s_branch F_fin')
        self.flush_late()
        self.out_b()
        k('F_fin:')
        if self.ts:
            self.stamp(12)
            stamp_out(k, True, 13, SWS, sWV, sT, vT, WS_TS)
            if self.opt.get('itprof'):
                k(f's_add_u32 s{sT}, s{sT}, 262144'); k(f'buffer_store_dword v14, v{vT}, s[{SWS}:{SWS+3}], s{sT} offen')
            if self.opt.get('dbg'):
                k(f's_lshl_b32 s{sT}, s2, 2'); k(f's_add_u32 s{sT}, s{sT}, s{sWV}')
                k(f's_cmp_lg_u32 s{sT}, {int(self.opt["dbg"]) * 4 + 3}'); k('s_cbranch_scc1 F_end')
                srd(k, SP, SDBG, 64)
                k('v_subrev_u32 v0, s84, v0'); k(f'v_add_u32 v{vT}, 4, v{vT}')
                k(f'buffer_store_dword v0, v{vT}, s[{SP}:{SP+3}], 0 offen')
        k('F_end:')
        k('s_endpgm')
        self.flush_late()
```

```python
from fz_regs import *

vXo, vWo, vXb, vXr, vWr, vSt = 1, 5, 9, 11, 13, vL16
vTmp = 16
vXo2, vWo2 = 24, 28
vL = 30
FR = 32
XB = 65536
SG, SF = 88, 92
sPa, sPb, sPc = 76, 77, 78
KV0 = 131072
VBO = 147456

def FX(b, i): return ('a', FR + 64 * b + 4 * i)
def FW(b, j): return ('a', FR + 64 * b + 32 + 4 * j)
def MW(t, j): return ('a', (32, 64, 160, 192)[t % 4] + 4 * j)
def MX(i, kk): return ('a', 96 + 8 * i + 4 * kk)
ARAW, ASEL, ADUM = 224, 240, 248
def QX(t, i): return ('a', 96 + 16 * (t & 1) + 4 * i)
def QW(t, j):
    n = (16 * (t - 32) + j) % 20
    return ('a', 32 + 4 * n if n < 16 else 128 + 4 * (n - 16))

def acc1(p): return ('v', 32 + 8 * p) if p < 28 else ('a', 8 * (p - 28))
def acc2(p):
    if p < 14: return ('a', 144 + 8 * p)
    if p < 16: return ('v', 32 + 8 * (p - 14))
    return acc1(p)
def qidx(i, jp): return 4 * jp + (i ^ 2 if jp == 3 else i)
JLAST = (3, 4, 5, 6, 7, 0, 1, 2)

def pair_pos(kind, n):
    if kind == 'V':
        a = n >> 3; return a, (n & 7) if a % 2 == 0 else 7 - (n & 7)
    i = n >> 2; return i, (n & 3) if i % 2 == 0 else 3 - (n & 3)

def order(kind):
    o = []
    for n in range(32):
        x, y = pair_pos(kind, n)
        if kind == 'V':
            for hf in ((0, 1) if n % 2 == 0 else (1, 0)): o.append((n, hf, 2 * x + hf, y))
        else:
            for hf in ((0, 1) if x % 2 == 0 else (1, 0)): o.append((n, hf, x, 2 * y + hf))
    return o

AQ = lambda i: 160 + 8 * i
AK = lambda i: 192 + 8 * i
AV = lambda ip, j: 224 + 16 * ip + 8 * j

class P1:
    def vmwait(self): return nvm(self.k.lines[self.ends[-3]:])

    def mark(self):
        self.ends.append(max(i for i, l in enumerate(self.k.lines) if l.rstrip().endswith(' lds')) + 1)

    def last_store(self):
        return max(i for i, l in enumerate(self.k.lines) if 'buffer_store_dwordx4' in l)

    def xdma(self, par, srd_, voff, soff, delta, g0=3, dg=8):
        it = []
        if par == 0:
            it.append((f's_add_u32 s{sT}, s{soff}, {delta}', g0 - 2))
            it.append((f's_add_u32 m0, s{sC}, 16384', g0 - 1)); so = sT
        else:
            it.append((f's_mov_b32 m0, s{sA}', g0 - 1)); so = soff
        for i in range(4):
            it.append((f'buffer_load_dwordx4 v{voff + i}, s[{srd_}:{srd_+3}], s{so} offen offset:{1024*i} {self.opt.get("xflag", "")} lds', g0 + dg * i))
        if par == 0: it.append((f's_add_u32 s{soff}, s{soff}, 128', g0 + dg * 3 + 1))
        return it

    def wdma(self, t, srd_, voff, soff, stride, n=4, g0=35, dg=8):
        it = [(f's_add_u32 m0, s{sWd}, {16384 * ((t + 1) % 4 if t < 32 else t & 1)}', g0 - 1)]
        fl = self.opt.get('wflag', '') if srd_ == SW else ''
        for i in range(n):
            it.append((f'buffer_load_dwordx4 v{voff + i}, s[{srd_}:{srd_+3}], s{soff} offen offset:{1024*i} {fl} lds', g0 + dg * i))
        it.append((f's_add_u32 s{soff}, s{soff}, {32 * stride}', g0 + dg * (n - 1) + 1))
        return it

    def reads(self, t, kind, dg=2):
        par = t & 1; nb = 1 - par
        xr = vXr + (1 if par == 0 else 0)
        wo = 16384 if par == 0 else 0
        tr = lambda reg, rho, j, off: f'ds_read_b64_tr_b16 {R(reg[0], reg[1] + 2*rho, 2)}, v{vWr + (j & 1)} offset:{wo + off}'
        if kind == 'q':
            xs = [f'ds_read_b128 {R(*QX(t + 1, i), 4)}, v{xr} offset:{(i & 1)*2048 + (i >> 1)*16384}' for i in range(4)]
            ws = [[tr(QW(t + 1, j), rho, j, (j >> 3)*8192 + rho*1024 + ((j >> 1) & 3)*256) for rho in range(2)] for j in range(16)]
            it = []
            if t == 31:
                for j in range(16): it += [(ws[j][0], 2 * j), (ws[j][1], 2 * j + 1)]
                it += [(x, 32 + n) for n, x in enumerate(xs)]
                return it, 37
            g = 0
            for j in range(16):
                g = max(g, 4 * (j - 4) + 4)
                it += [(ws[j][0], g), (ws[j][1], g + 1)]; g += 2
                if 4 <= j < 8: it.append((xs[j - 4], g)); g += 1
            return it, g
        if kind == 'main':
            xs = [f'ds_read_b128 {R(*MX(i, kk), 4)}, v{vXr + kk} offset:{2048*i}' for i in range(4 * nb, 4 * nb + 4) for kk in range(2)]
            ws = []
            for w in ([0, 1] if t < 0 else [t + 2] if t < 30 else []):
                wo = 16384 * (w % 4)
                ws += [tr(MW(w, j), rho, j, rho*1024 + (j >> 1)*256) for j in range(8) for rho in range(2)]
        else:
            xs = [f'ds_read_b128 {R(*FX(nb, i), 4)}, v{xr} offset:{2048*i}' for i in range(4)]
            ws = [tr(FW(nb, j), rho, j, (j >> 1)*4096 + rho*256) for j in range(6) for rho in range(2)]
        seq = []
        while xs or ws:
            if xs: seq.append(xs.pop(0))
            seq += ws[:2]; ws = ws[2:]
        return [(x, int(n * dg)) for n, x in enumerate(seq)], int(len(seq) * dg)

    def book(self, t, g):
        par = t & 1
        if t < 31: return [(f'v_add_u32 v{vXr + n}, s{sB}, v{vXb + n}', g) for n in range(2)] if par == 0 else []
        if par == 0:
            return [(f'v_xor_b32 v{vWr}, 0x8000, v{vWr}', g), (f'v_xor_b32 v{vWr+1}, 0x8000, v{vWr+1}', g),
                    (f'v_add_u32 v{vXr}, s{sB}, v{vXb}', g)]
        return [(f'v_add_u32 v{vXr+1}, s{sB}, v{vXb+1}', g)]

    def rot(self, t, g):
        if t % 2 == 0 or t >= 43: return []
        return [(f's_xor_b32 s{sWd}, s{sWd}, 0x8000', g)] * (t > 31) + [(f's_mov_b32 s{sT2}, s{sA}', g), (f's_mov_b32 s{sA}, s{sB}', g),
                (f's_mov_b32 s{sB}, s{sC}', g), (f's_mov_b32 s{sC}, s{sT2}', g)]

    def mfmas(self, t, kind, first):
        par = t & 1; mf = []
        if kind in 'KV':
            for n, (p, hf, i, j) in enumerate(order(kind)[32 * par:32 * par + 32]):
                c, b = acc1(p); d = (c, b + 4 * hf)
                for m, kk in enumerate((0, 1) if n % 2 == 0 else (1, 0)):
                    x, w = MX(i, kk), MW(t - par + kk, j)
                    mf.append(mfma(d, *((x, w) if kind == 'V' else (w, x)), '0' if t < 2 and m == 0 else d))
        elif kind == 'Q':
            groups = [(0, 1, 2, 3)] if t < 45 else [(0, 1), (2, 3)]
            for grp in groups:
                for j in (range(16) if t < 45 else [2 * jp + x for jp in JLAST for x in range(2)]):
                    for i in (grp if j % 2 == 0 else grp[::-1]):
                        c, b = acc2(qidx(i, j >> 1)); d = (c, b + 4 * (j & 1))
                        mf.append(mfma(d, QW(t, j), QX(t, i), '0' if first else d))
        else:
            for i in range(4):
                for j in (range(6) if i % 2 == 0 else range(5, -1, -1)):
                    if j < 4:
                        d = ('v', (AQ(i) if j < 2 else AK(i)) + 4 * (j & 1))
                        mf.append(mfma(d, FW(par, j), FX(par, i), '0' if first else d))
                    else:
                        d = ('v', AV(i >> 1, j & 1) + 4 * (i & 1))
                        mf.append(mfma(d, FX(par, i), FW(par, j), '0' if first else d))
        return mf

    def step(self, t, kind, xd=None, wd=None, rd='main', extra=None, extra2=None, req=None, pre=None, tail=None, flush=True, vm=None, dmx=None, rdg=2, ins=None):
        k = self.k; par = t & 1; start = len(k.lines)
        n = self.vmwait() if vm is None else vm
        assert n <= 63
        prof = self.opt.get('stprof') and (t >= 27 or t < 3)
        if self.opt.get('stprof') == '2':
            prof = t < 3
            if t in (3, 27): k('s_memtime s[82:83]'); k(f's_sub_u32 m0, 44, s{sCnt}'); k('s_waitcnt lgkmcnt(0)'); k('v_writelane_b32 v0, s82, m0')
        if prof: k('s_memtime s[82:83]')
        k(f's_waitcnt vmcnt({n}) lgkmcnt(0)')
        if prof: k(f'v_writelane_b32 v0, s82, {32 + t - 27 if t >= 27 else 56 + t}')
        k('s_barrier')
        for x in (pre or []): k(x)
        mf = self.mfmas(t, kind, t in (0, 32))
        for pos in sorted(ins or {}, reverse=True): mf[pos:pos] = ins[pos]
        small = kind == 'B'
        rs, g = self.reads(t, rd, dg=1 if small else rdg) if rd else ([], 0)
        rs = rs + (self.book(t, g) if rd else [])
        if small: dm = (self.xdma(par, *xd, g0=2, dg=3) if xd else []) + (self.wdma(t, *wd, g0=14, dg=3) if wd else []) + self.rot(t, 21)
        else: dm = (self.xdma(par, *xd) if xd else []) + (self.wdma(t, *wd) if wd else []) + self.rot(t, 61)
        if dmx: dm = dmx + self.rot(t, 61)
        VMCOST[0] = 1 if small else int(self.opt.get('vmc', 2))
        left = sched(k, mf, [rs, dm + (tail or []), extra or [], extra2 or []], req=req, flush=False, prio=None if small else [1, 3, 2, 0])
        VMCOST[0] = 1
        for st in (left[0], left[1], left[3]): self.emit(st)
        if flush: self.emit(left[2])
        if self.rot(t, 0) and rd and t >= 31:
            body = [l.strip() for l in k.lines[start:]]
            assert body.index(f'v_add_u32 v{vXr+1}, s{sB}, v{vXb+1}') < body.index(f's_mov_b32 s{sB}, s{sC}')
        if xd or wd: self.mark()
        elif not dmx: self.ends.append(self.ends[-1])
        return n, left[2]

    def pack(self, src, dst, scale=None, g=0, pk=False):
        it = []; c, b = src
        if c == 'a':
            for e in range(8): it.append((f'v_accvgpr_read_b32 v{vTmp + e}, a{b + e}', g))
            b = vTmp
        if scale is not None:
            if not pk: it += [(f'v_mul_f32 v{b + e}, s{scale}, v{b + e}', g) for e in range(8)]
            else: it += [(f'v_pk_mul_f32 v[{b + e}:{b + e + 1}], v[{b + e}:{b + e + 1}], s[{scale}:{scale + 1}]', g) for e in range(0, 8, 2)]
        for e in range(4): it.append((f'v_cvt_pk_bf16_f32 v{dst + e}, v{b + 2*e}, v{b + 2*e + 1}', g))
        return it

    def store(self, reg, off, g=0, base=sSt):
        it = []
        if off // 4096 != self.grp:
            self.grp = off // 4096
            it.append((f's_add_u32 s{sSt2}, s{base}, {self.grp * 4096}', g))
        it.append((f'buffer_store_dwordx4 v[{reg}:{reg+3}], v{vSt}, s[{SWS}:{SWS+3}], s{sSt2} offen offset:{off % 4096} sc1', g))
        return it

    def kvprep(self):
        return [f's_lshl_b32 s{sXo}, s{sH}, 11', f's_add_u32 s{sPF}, s{sXo}, {WS_FLAG + FL_KV}', f's_lshl_b32 s{sXo}, s{sROLE}, 3', f's_add_u32 s{sXo}, s{sXo}, s{sP}',
                f's_lshl_b32 s{sXo}, s{sXo}, 7', f's_add_u32 s{sXo}, s{sXo}, s{sPF}', f's_cmp_eq_u32 s{sWV}, 0\ns_cselect_b32 s{sXo}, s{sXo}, {OOB}',
                f'v_mov_b32 v{vXo+1}, 1', f'v_bfe_u32 v{vXo+2}, v{vL16}, 2, 7'] + self.lanes(vXo + 3, 16)

    def plan(self, ta, tc):
        pl = {t: [] for t in range(ta, tc)}
        for n in range(28): pl[ta + n * (tc - ta) // 28].append(4 + n)
        return pl, min(t for t in pl if 7 in pl[t])

    def planned(self, lst, off, g0, span):
        ex = []
        for q, n in enumerate(lst): ex += self.store(32 + 4 * n, off(n), g=g0 + span * q // len(lst))
        return ex

    def flag1(self):
        return [(self.flagstore(sXo), 0), (f'v_mov_b32 v{vXo+1}, 2', 2)]

    def flagstore(self, so):
        return f'buffer_store_dword v{vXo+1}, v{vXo+2}, s[{SWS}:{SWS+3}], s{so} offen sc1'

    def setup(self):
        k = self.k
        k('s_cmp_ge_u32 s2, 256')
        k('s_cbranch_scc1 F_end')
        self.stamp(0)
        k('s_load_dwordx16 s[4:19], s[0:1], 0')
        k('s_load_dwordx4 s[20:23], s[0:1], 64')
        k('s_load_dwordx2 s[24:25], s[0:1], 96')
        k(f's_load_dwordx2 s[{SDBG}:{SDBG+1}], s[0:1], 88')
        k('s_getpc_b64 s[30:31]')
        k('F_pc:')
        k(f'v_lshrrev_b32 v{vTmp+3}, 6, v0')
        k(f'v_and_b32 v{vL}, 63, v0')
        k(f'v_readfirstlane_b32 s{sWV}, v{vTmp+3}')
        k(f'v_lshlrev_b32 v{vSt}, 4, v{vL}')
        self.emit(self.code_pf(vTmp, vTmp + 1))
        k(f's_and_b32 s{sH}, s2, 7')
        k(f's_lshl_b32 s{sH}, s{sH}, 1')
        k(f's_lshr_b32 s{sT}, s2, 7')
        k(f's_add_u32 s{sH}, s{sH}, s{sT}')
        k(f's_lshr_b32 s{sP}, s2, 3')
        k(f's_and_b32 s{sP}, s{sP}, 7')
        k(f's_lshr_b32 s{sROLE}, s2, 6')
        k(f's_and_b32 s{sROLE}, s{sROLE}, 1')
        t0, t1, t2, t3 = vTmp + 4, vTmp + 5, vTmp + 6, vTmp + 7
        k(f'v_lshrrev_b32 v{t0}, 3, v{vL}')
        k(f's_lshl_b32 s{sT}, s{sWV}, 5')
        k(f'v_add_u32 v{t0}, s{sT}, v{t0}')
        k(f'v_lshrrev_b32 v{t1}, 4, v{vL}')
        k(f'v_and_b32 v{t2}, 7, v{vL}')
        k(f'v_xor_b32 v{t1}, v{t1}, v{t2}')
        k(f'v_lshlrev_b32 v{t1}, 4, v{t1}')
        k(f'v_xor_b32 v{t2}, 64, v{t1}')
        for base, stride in ((vXo, 2048), (vXo2, 896)):
            k(f'v_mul_u32_u24 v{t3}, {stride}, v{t0}')
            if base == vXo:
                k(f's_mul_i32 s{sT}, s{sWV}, {224 * 2048}')
                k(f'v_add_u32 v{t3}, s{sT}, v{t3}')
            for i in range(4):
                k(f'v_add_u32 v{base + i}, v{t3}, v{t1 if i % 2 == 0 else t2}')
                if i: k(f'v_add_u32 v{base + i}, {i * (8 * stride - 1024)}, v{base + i}')
        k(f'v_lshrrev_b32 v{t0}, 2, v{vL}')
        k(f'v_and_b32 v{t0}, 3, v{t0}')
        k(f's_and_b32 s{sT}, s{sWV}, 1')
        k(f's_lshl_b32 s{sT}, s{sT}, 17')
        k(f's_lshr_b32 s{sT2}, s{sWV}, 1')
        k(f's_lshl_b32 s{sT2}, s{sT2}, 8')
        k(f's_add_u32 s{sT}, s{sT}, s{sT2}')
        k(f'v_lshlrev_b32 v{t1}, 13, v{t0}')
        k(f'v_add_u32 v{t1}, s{sT}, v{t1}')
        k(f'v_lshrrev_b32 v{t2}, 4, v{vL}')
        k(f'v_lshl_add_u32 v{t1}, v{t2}, 6, v{t1}')
        k(f'v_and_b32 v{t3}, 3, v{vL}')
        k(f'v_lshl_add_u32 v{vWo}, v{t3}, 4, v{t1}')
        k(f'v_add_u32 v{vWo+1}, {4*8192 - 1024}, v{vWo}')
        k(f'v_xor_b32 v{vWo+2}, 32, v{vWo}')
        k(f'v_add_u32 v{vWo+2}, {8*8192 - 2048}, v{vWo+2}')
        k(f'v_add_u32 v{vWo+3}, {4*8192 - 1024}, v{vWo+2}')
        k(f's_lshl_b32 s{sWd}, s{sWV}, 12')
        k(f's_add_u32 s{sA}, s{sWd}, {XB}')
        k(f's_add_u32 s{sB}, s{sWd}, {XB + 32768}')
        k(f's_add_u32 s{sC}, s{sWd}, {XB + 65536}')
        k(f'v_min_u32 v{t0}, 17, v{vL}')
        k(f'v_lshlrev_b32 v{t0}, 7, v{t0}')
        k(f'v_mov_b32 v{t1}, 0')
        k(f's_mul_i32 s{sT2}, s2, {18 * 128}')
        k(f's_add_u32 s{sT2}, s{sT2}, {WS_FLAG}')
        k(f's_cmp_eq_u32 s{sWV}, 0')
        k(f's_cselect_b32 s{sT2}, s{sT2}, {OOB}')
        k('s_waitcnt lgkmcnt(0)')
        srd(k, SX, 6, 2048 * 2048)
        k(f's_cmp_eq_u32 s{sROLE}, 0')
        k(f's_cselect_b32 s10, s12, s10')
        k(f's_cselect_b32 s11, s13, s11')
        srd(k, SW, 10, 1024 * 8192)
        srd(k, SWS, 24, WS_BYTES)
        k(f's_lshl_b32 s{sXo}, s{sP}, 16')
        k(f's_lshl_b32 s{sWo}, s{sH}, 9')
        k(f'buffer_store_dword v{t1}, v{t0}, s[{SWS}:{SWS+3}], s{sT2} offen sc1')
        blocks = [self.wblk(0), self.xblk(sA, 0), self.xblk(sA, 1), self.wblk(16384), self.wblk(32768), self.xblk(sB, 0)]
        so = int(self.opt.get('so', 2))
        if self.PF[0]: blocks.append([x.replace(f'v{vTmp+4}', f'v{vTmp+7}') for x in self.xpf()] + self.wpf(96, self.PF[0], vTmp + 7))
        self.emit(sum(blocks[:so], [])); self.blocks = sum(blocks[so:], [])
        srd(k, SG, SDBG, 256)
        self.ntlb = int(self.opt.get('tlb', 0))
        if self.ntlb >= 1: k(f'buffer_load_dword a194, off, s[{SG}:{SG+3}], 0')
        if self.ntlb >= 2:
            k(f'v_min_u32 v{vTmp+4}, 39, v{vL}'); k(f'v_lshlrev_b32 v{vTmp+4}, 21, v{vTmp+4}')
            k(f's_lshr_b32 s{sT}, s2, 3'); k(f's_add_u32 s{sT}, s{sT}, s{sWV}'); k(f's_cmp_eq_u32 s{sT}, 0'); k(f's_cselect_b32 s{sT}, 0, {OOB}')
            k(f'buffer_load_dword a195, v{vTmp+4}, s[{SWS}:{SWS+3}], s{sT} offen')
        self.wtile_addr()
        k(f's_cmp_eq_u32 s{sROLE}, 0')
        k(f's_cselect_b32 s4, s4, s16')
        k(f's_cselect_b32 s5, s5, s17')
        k(f's_cselect_b32 s8, s8, s18')
        k(f's_cselect_b32 s9, s9, s19')
        k(f's_mov_b32 s{sT}, {448 * 2688}')
        k(f's_cselect_b32 s{sT}, {448 * 8192}, s{sT}')
        srd(k, SX2, 4, 2048 * 896)
        srd(k, SW2, 8, 0)
        k(f's_mov_b32 s{SW2+2}, s{sT}')
        k(f'v_and_b32 v{t0}, 15, v{vL}')
        k(f'v_lshrrev_b32 v{t1}, 4, v{vL}')
        k(f'v_lshrrev_b32 v{t2}, 1, v{t0}')
        k(f'v_xor_b32 v{t2}, v{t2}, v{t1}')
        k(f'v_lshlrev_b32 v{t2}, 4, v{t2}')
        k(f'v_lshl_add_u32 v{t2}, v{t0}, 7, v{t2}')
        k(f's_lshr_b32 s{sT}, s{sWV}, 1')
        k(f's_lshl_b32 s{sT}, s{sT}, 14')
        k(f's_sub_u32 s{sT}, s{sT}, s{sWd}')
        k(f'v_add_u32 v{vXb}, s{sT}, v{t2}')
        k(f'v_xor_b32 v{t2}, 64, v{t2}')
        k(f'v_add_u32 v{vXb+1}, s{sT}, v{t2}')
        k(f'v_lshrrev_b32 v{t2}, 2, v{t0}')
        k(f'v_lshlrev_b32 v{t2}, 6, v{t2}')
        k(f'v_and_b32 v{t3}, 3, v{t0}')
        k(f'v_lshl_add_u32 v{t2}, v{t3}, 3, v{t2}')
        k(f'v_and_b32 v{t3}, 1, v{t1}')
        k(f'v_lshl_add_u32 v{t2}, v{t3}, 5, v{t2}')
        k(f'v_mov_b32 v{vL+1}, v{t2}')
        k(f'v_lshl_add_u32 v{t2}, v{t1}, 11, v{t2}')
        k(f's_and_b32 s{sT}, s{sWV}, 1')
        k(f's_lshl_b32 s{sT}, s{sT}, 13')
        k(f'v_add_u32 v{vWr}, s{sT}, v{t2}')
        k(f'v_xor_b32 v{vWr+1}, 32, v{vWr}')
        k(f'v_add_u32 v{vXr}, s{sA}, v{vXb}')
        k(f'v_add_u32 v{vXr+1}, s{sA}, v{vXb+1}')

    def selmat(self):
        k = self.k
        k(f'v_bfe_u32 v{vTmp+4}, v{vL}, 1, 3')
        k(f'v_lshrrev_b32 v{vTmp+5}, 4, v{vL}')
        k(f'v_lshlrev_b32 v{vTmp+5}, 2, v{vTmp+5}')
        k(f'v_sub_u32 v{vTmp+4}, v{vTmp+4}, v{vTmp+5}')
        k(f'v_and_b32 v{vTmp+5}, 1, v{vL}')
        k(f'v_lshlrev_b32 v{vTmp+5}, 4, v{vTmp+5}')
        k(f'v_mov_b32 v{vTmp+6}, 0x3f80')
        k(f'v_lshlrev_b32 v{vTmp+5}, v{vTmp+5}, v{vTmp+6}')
        for n in range(8):
            k(f'v_cmp_eq_i32 vcc, {(n & 3) - 8 * (n >> 2)}, v{vTmp+4}')
            k('s_nop 1')
            k(f'v_cndmask_b32 v{vTmp+6}, 0, v{vTmp+5}, vcc')
            k(f'v_accvgpr_write_b32 a{ASEL + n}, v{vTmp+6}')
        k('s_nop 1')

    def xpf(self):
        return [f's_lshl_b32 s{sT}, s2, 2', f's_add_u32 s{sT}, s{sT}, s{sWV}', f's_lshl_b32 s{sT}, s{sT}, 12', f'v_lshlrev_b32 v{vTmp+4}, 2, v{vL16}',
                f'v_and_b32 v{vTmp+4}, {0x800 | (int(self.opt.get("xl", 4)) * 128 - 1)}, v{vTmp+4}',
                f'buffer_load_dword a{ADUM}, v{vTmp+4}, s[{SX}:{SX+3}], s{sT} offen']

    def wpf(self, row0, per, v):
        return [f's_lshl_b32 s{sT2}, s{sP}, 2', f's_add_u32 s{sT2}, s{sT2}, s{sWV}', f's_mul_i32 s{sT2}, s{sT2}, {per * 8192}', f's_lshl_b32 s{sSpin}, s{sH}, 9',
                f's_add_u32 s{sT2}, s{sT2}, s{sSpin}', f's_add_u32 s{sT2}, s{sT2}, {row0 * 8192}',
                f'v_lshrrev_b32 v{v}, 2, v{vL}', f'v_min_u32 v{v}, {per - 1}, v{v}', f'v_lshlrev_b32 v{v}, 6, v{v}', f'v_and_or_b32 v{v}, v{vL}, 3, v{v}',
                f'v_lshlrev_b32 v{v}, 7, v{v}', f'buffer_load_dword a{ADUM+1}, v{v}, s[{SW}:{SW+3}], s{sT2} offen']

    def xblk(self, slot, hf):
        return [f's_add_u32 s{sT}, s{sXo}, {hf * 1024 * 2048}', f's_add_u32 m0, s{slot}, {hf * 16384}'] + \
               [f'buffer_load_dwordx4 v{vXo + i}, s[{SX}:{SX+3}], s{sT} offen offset:{1024*i} lds' for i in range(4)] + \
               ([f's_add_u32 s{sXo}, s{sXo}, 128'] if hf else [])

    def wblk(self, off):
        return [f's_add_u32 m0, s{sWd}, {off & 0xffffffff}'] + \
               [f'buffer_load_dwordx4 v{vWo + i}, s[{SW}:{SW+3}], s{sWo} offen offset:{1024*i} lds' for i in range(4)] + [f's_add_u32 s{sWo}, s{sWo}, {32 * 8192}']

    def wtile_addr(self):
        k = self.k
        k(f's_lshl_b32 s{sSt2}, s{sH}, 1'); k(f's_add_u32 s{sSt2}, s{sSt2}, s{sROLE}'); k(f's_lshl_b32 s{sSt2}, s{sSt2}, 3'); k(f's_add_u32 s{sSt2}, s{sSt2}, s{sP}')
        k(f's_lshl_b32 s{sSt2}, s{sSt2}, 2'); k(f's_add_u32 s{sSt2}, s{sSt2}, s{sWV}')
        k(f's_cmp_lt_u32 s{sSt2}, 896')
        k('s_cbranch_scc0 F_wtb')
        srd(k, SP, 14, 4096 * 896)
        k(f's_and_b32 s{sT}, s{sSt2}, 127'); k(f's_mul_i32 s{sT}, s{sT}, {32 * 896}'); k(f's_lshr_b32 s{sT2}, s{sSt2}, 7')
        k('s_branch F_wtc')
        k('F_wtb:')
        srd(k, SP, 22, 448 * 896)
        k(f's_bfe_u32 s{sT}, s{sSt2}, 0x40001'); k(f's_mul_i32 s{sT}, s{sT}, {28 * 896}')
        k(f's_bfe_u32 s{sT2}, s{sSt2}, 0x20005'); k(f's_lshl_b32 s{sT2}, s{sT2}, 1'); k(f's_and_b32 s{sCnt}, s{sSt2}, 1'); k(f's_add_u32 s{sT2}, s{sT2}, s{sCnt}')
        k('F_wtc:')
        k(f's_lshl_b32 s{sT2}, s{sT2}, 7'); k(f's_add_u32 s3, s{sT2}, s{sT}')
        k(f's_lshl_b32 s{sSt2}, s{sSt2}, 12'); k(f's_add_u32 s{sSt2}, s{sSt2}, {WS_WF}')

    def gemm1(self, kind, lbl, X2, W2):
        k = self.k
        X1 = (SX, vXo, sXo, 1024 * 2048); W1 = (SW, vWo, sWo, 8192)
        e = (2 if self.PF[0] else 0) + self.ntlb
        nx, nw = 3, (6 if kind == 'V' else 2)
        k(f's_lshr_b32 s{sT}, s2, 7'); k(f's_lshl_b32 s{sT}, s{sT}, 6'); k(f's_and_b32 s{sT2}, s2, 63'); k(f's_add_u32 s{sT}, s{sT}, s{sT2}')
        k(f's_lshl_b32 s{sT}, s{sT}, 2'); k(f's_add_u32 s{sT}, s{sT}, s{sWV}')
        k(f's_mul_i32 s{sPa}, s{sT}, {28 * 128}')
        k(f's_mul_i32 s{sPb}, s{sT}, {(56 if kind == "V" else 19) * 128}')
        k(f's_mov_b32 s{sPc}, s3')
        self.selmat()
        k(f'v_min_u32 v{vTmp}, {nx - 1}, v{vL}'); k(f'v_lshlrev_b32 v{vTmp}, 7, v{vTmp}')
        k(f'v_min_u32 v{vTmp+2}, {nw - 1}, v{vL}'); k(f'v_lshlrev_b32 v{vTmp+2}, 7, v{vTmp+2}')
        k(f'v_min_u32 v{vTmp+3}, 2, v{vL}'); k(f'v_mul_u32_u24 v{vTmp+3}, 896, v{vTmp+3}')
        k(f's_lshr_b32 s{sT}, s2, 7'); k(f's_lshl_b32 s{sT}, s{sT}, 3'); k(f's_add_u32 s{sT}, s{sT}, s{sP}'); k(f's_lshl_b32 s{sT}, s{sT}, 2')
        k(f's_add_u32 s{sT}, s{sT}, s{sWV}'); k(f's_lshl_b32 s{sT}, s{sT}, 9'); k(f's_add_u32 s{sT}, s{sT}, {lbl}_x-F_pc')
        k(f'v_min_u32 v{vTmp+4}, 3, v{vL}'); k(f'v_lshlrev_b32 v{vTmp+4}, 7, v{vTmp+4}'); k(f'v_add_u32 v{vTmp+4}, s{sT}, v{vTmp+4}')
        k(f'v_lshlrev_b32 v{vTmp+5}, 8, v{vL}'); k(f'v_mov_b32 v{vTmp+6}, 1'); k(f's_lshl_b32 s{sPF}, s{sWV}, 8'); k(f's_add_u32 s{sPF}, s{sPF}, s2'); k(f's_add_u32 s{sHst}, s{sP}, 5')
        def touch(v, srd_, so, d, g):
            return [(f'buffer_load_dword a{ADUM + (v & 3)}, v{v}, s[{srd_}:{srd_+3}], s{so} offen', g), (f's_add_u32 s{so}, s{so}, {d}', g + 1)]
        self.visit(self.role, self.role)
        self.emit(self.blocks)
        k(f's_waitcnt vmcnt({8 + e})')
        k('s_barrier')
        self.stamp(1)
        self.emit(self.reads(-1, 'main')[0])
        self.step(0, kind, dmx=self.spread(self.xblk(sB, 1) + self.wblk(49152) + self.wblk(0), 1, 5), vm=4 + e)
        self.step(1, kind, dmx=self.spread(self.xblk(sC, 0) + self.xblk(sC, 1) + self.wblk(16384), 1, 5), vm=4)
        self.step(2, kind, dmx=self.spread(self.wblk(32768) + self.xblk(sC, 0) + self.xblk(sC, 1) + self.wblk(49152), 1, 4), vm=12)
        k(f's_mov_b32 s{sCnt}, 12')
        k('.p2align 5'); k('s_nop 0'); k('s_nop 0'); k('s_nop 0'); k('s_nop 0')
        k(f'{lbl}:')
        arr = [(f's_cmp_eq_u32 s{sCnt}, s{sHst}\ns_cselect_b32 s{sSpin}, s{sPF}, {OOB}', 52), (f'buffer_store_byte v{vTmp+6}, v{vTmp+5}, s[{SG}:{SG+3}], s{sSpin} offen sc1', 55)]
        for t in (3, 5):
            self.step(t, kind, xd=X1, wd=W1, vm=16 if t == 3 else 18, extra=touch(vTmp, SX2, sPa, nx * 128, 7) + touch(vTmp + 3, SP, sPc, 3 * 896, 39))
            self.step(t + 1, kind, xd=X1, wd=W1, vm=18, extra=touch(vTmp + 2, SW2, sPb, nw * 128, 7) + [(f'global_load_dword a{ADUM+1}, v{vTmp+4}, s[30:31]', 39)] * (t == 3) + arr,
                      tail=[(f's_sub_u32 s{sCnt}, s{sCnt}, 1', 61), (f's_cmp_lg_u32 s{sCnt}, 0', 62)])
        k(f's_cbranch_scc1 {lbl}')
        k(f'{lbl}_x:')
        pl = (vXo, vXo + 3, SG, '0')
        raw = [f'v_lshlrev_b32 v{vXo+3}, 2, v{vL}', f'v_and_b32 v{vTmp}, 15, v{vL}', f'v_mul_u32_u24 v{vTmp}, 896, v{vTmp}', f'v_and_or_b32 v{vTmp}, v{vL}, 48, v{vTmp}', self.poll_load(*pl)]
        for rho in range(2):
            raw += [f'buffer_load_dwordx4 a[{ARAW + 8*rho + 4*cp}:{ARAW + 3 + 8*rho + 4*cp}], v{vTmp}, s[{SP}:{SP+3}], s3 offen offset:{64*cp}' for cp in range(2)]
            raw.append(f's_add_u32 s3, s3, {16 * 896}')
        self.step(27, kind, xd=X2, wd=W2, extra=self.spread(raw, 5, 4))
        r0 = max(i for i, l in enumerate(k.lines) if l.strip() == raw[-2]) + 1
        self.step(28, kind, xd=X2, wd=W2)
        ins = {}; ex = []
        for j in range(4):
            ins[1 + 13 * j] = [mfma(('v', vTmp + 4 * rho), ('a', ARAW + 8 * rho + 4 * (j >> 1)), ('a', ASEL + 4 * (j & 1)), '0') for rho in range(2)]
            ex += self.pack(('v', vTmp), vTmp, g=8 + 15 * j)
            ex.append((f'buffer_store_dwordx4 v[{vTmp}:{vTmp+3}], v{vSt}, s[{SWS}:{SWS+3}], s{sSt2} offen offset:{1024*j} sc1', 8 + 15 * j))
        self.step(29, kind, xd=X2, wd=W2, vm=nvm(k.lines[r0:]), pre=self.poll_check(*pl, 0x01010101), ins=ins, extra=ex, extra2=[(x, 56) for x in self.kvprep()],
                  req={15 * j - 1: [(2, 5 * j)] for j in (1, 2, 3)})

    def wphi(self):
        k = K()
        t0, t1, t2, t3 = vTmp + 4, vTmp + 5, vTmp + 6, vTmp + 7
        srd(k, SF, 20, 16 * 28 * 28 * 2)
        k(f'v_and_b32 v{t0}, 15, v{vL}')
        k(f'v_lshrrev_b32 v{t1}, 4, v{vL}')
        k(f'v_cmp_eq_u32 s[{sM3}:{sM3+1}], 3, v{t1}')
        k(f'v_cmp_eq_u32 s[{sM28}:{sM28+1}], 12, v{t0}')
        k(f'v_cmp_lt_u32 vcc, 11, v{t0}')
        k(f'v_mul_u32_u24 v{t1}, 224, v{t1}')
        k(f'v_lshl_add_u32 v{t0}, v{t0}, 1, v{t1}')
        k(f'v_mov_b32 v{vTmp+3}, {OOB}')
        k(f'v_add_u32 v{t1}, 32, v{t0}')
        k(f'v_cndmask_b32 v{t1}, v{t1}, v{t0}, vcc')
        k(f'v_cndmask_b32 v{t2}, v{t0}, v{vTmp+3}, s[{sM3}:{sM3+1}]')
        k(f'v_cndmask_b32 v{t3}, v{t1}, v{vTmp+3}, s[{sM3}:{sM3+1}]')
        k(f's_mul_i32 s{sPa}, s{sBH}, 1568')
        for fs in range(2):
            for e in range(8):
                v = [[t0, t2], [t1, t3]][fs][e >> 2]
                k(f'buffer_load_ushort a{ARAW + 8*fs + e}, v{v}, s[{SF}:{SF+3}], s{sPa} offen offset:{(e >> 2)*896 + (e & 3)*56}')
        return [l.strip() for l in k.lines]

    def kv_base(self, wcshift, add):
        k = self.k
        k(f's_lshl_b32 s{sSt}, s{sH}, 21')
        k(f's_lshl_b32 s{sT}, s{sP}, 15')
        k(f's_add_u32 s{sSt}, s{sSt}, s{sT}')
        k(f's_lshr_b32 s{sT}, s{sWV}, 1')
        k(f's_lshl_b32 s{sT}, s{sT}, 20')
        k(f's_add_u32 s{sSt}, s{sSt}, s{sT}')
        k(f's_and_b32 s{sT}, s{sWV}, 1')
        k(f's_lshl_b32 s{sT}, s{sT}, {wcshift}')
        k(f's_add_u32 s{sSt}, s{sSt}, s{sT}')
        if add: k(f's_add_u32 s{sSt}, s{sSt}, {add}')

    def role_vq(self):
        k = self.k
        X2 = (SX2, vXo2, sX2o, f's{sXd}'); W2 = (SW2, vWo, sW2o, 8192)
        k(f's_lshl_b32 s{sW2o}, s{sH}, 9')
        k(f's_sub_u32 s{sT}, 15, s{sP}')
        k(f's_mul_i32 s{sX2o}, s{sT}, {128 * 896}')
        k(f's_mul_i32 s{sXd}, s{sP}, {128 * 896}')
        k(f's_sub_u32 s{sXd}, s{sXd}, s{sX2o}')
        self.kv_base(13, WS_KV + 16384)
        self.gemm1('V', 'F_vloop', X2, W2)
        voff = lambda p: pair_pos('V', p)[0] * 262144 + pair_pos('V', p)[1] * 1024
        self.grp = None
        pre = [f's_lshr_b32 s{sT}, s{sWV}, 1', f's_lshl_b32 s{sT}, s{sT}, 14', f's_lshl_b32 s{sT2}, s{sWV}, 12', f's_sub_u32 s{sT}, s{sT2}, s{sT}',
               f'v_add_u32 v{vXb}, s{sT}, v{vXb}', f'v_add_u32 v{vXb+1}, s{sT}, v{vXb+1}', f'v_add_u32 v{vXr}, s{sT}, v{vXr}',
               f'v_and_b32 v{vWr}, 0x1fff, v{vWr}', f'v_and_b32 v{vWr+1}, 0x1fff, v{vWr+1}']
        ex = []; cnt = []
        for p in range(32):
            ex += self.pack(acc1(p), 32 + 4 * p, g=4 * p + 9)
            if p % 8 == 3: ex += self.store(32 + 4 * (p >> 3), voff(p >> 3), g=4 * p + 9)
            cnt.append(len(ex))
        _, left = self.step(30, 'V', xd=X2, wd=W2, extra=ex, flush=False)
        _, left = self.step(31, 'V', xd=X2, rd='q', extra=[(x, max(3, g - 64)) for x, g in left], pre=pre, flush=False)
        done = len(ex) - len(left)
        self.stamp(2)
        req = {}
        for jp in range(8):
            top = max(qidx(i, jp) for i in range(4))
            need_ = cnt[top if top > 15 else 27]
            if top >= 12 and need_ > done: req[8 * jp] = [(2, need_ - done)]
        self.step(32, 'Q', xd=X2, wd=W2, rd='q', extra=[(x, 3) for x, _ in left], req=req)
        plan, te = self.plan(int(self.opt.get('tab', 33)), 44)
        pl = (vTmp, vXo + 3, SWS, f's{sPF}')
        for t in range(33, 45):
            ex = []; ex2 = []; pre = None; vm = None
            if t == 42: ex.append((self.poll_load(*pl), 0))
            if plan.get(t): ex += self.planned(plan[t], voff, 6, 48)
            if t == te + 3:
                assert elast < self.ends[-3]
                ex = self.flag1() + ex
            if t == 42: ex2 = [(x, 2) for x in self.att_setup() + self.code_pf(vTmp + 4, vTmp + 5)]
            if t == 43:
                vm = min(self.vmwait(), nvm(k.lines[ppos:])); pre = self.poll_check(*pl, 1)
                ex2 = self.spread(self.k0_dma() + self.unit_dma(1), 2, 5)
            if t == 44: ex2 = self.spread(self.unit_dma(2), 3, 7)
            self.step(t, 'Q', xd=X2 if t <= 40 else None, wd=W2 if t <= 41 else None, rd='q', extra=ex, extra2=ex2, pre=pre, vm=vm)
            if t == te: elast = self.last_store()
            if t == 42: ppos = k.lines.index('    ' + self.poll_load(*pl)) + 1
            if t == 43: u0 = len(k.lines)
            if t in (38, 43, 44): self.stamp({38: 4, 43: 14, 44: 15}[t])
        pre = [f's_lshl_b32 s{sSt}, s{sPO}, 14', f's_add_u32 s{sSt}, s{sSt}, {WS_Q}'] + self.ring_rd()
        ex = []; self.grp = None
        q1 = {}; na = 0
        for n, jp in enumerate(JLAST):
            for i in range(2):
                src = acc2(qidx(i, jp))
                if src[0] == 'v': q1[i, jp] = src[1]
                else: q1[i, jp] = 128 + 4 * na; na += 1
                ex += self.pack(src, q1[i, jp], g=4 * n + 8) + self.store(q1[i, jp], i * 8192 + jp * 1024, g=4 * n + 8)
        wl = (vWo, vWo + 1, SWS, f's{sWt}')
        self.step(45, 'Q', rd=None, extra=[(self.flagstore(sXo), 0)] + [(x, 1) for x in self.lanes(vWo + 1, 8) + [self.poll_load(*wl)]] + ex, pre=pre, vm=nvm(k.lines[u0:]))
        q0 = len(k.lines)
        self.emit(self.kreads())
        body = []
        for jp in JLAST:
            for i in range(2, 4): body += [x for x, _ in self.pack(acc2(qidx(i, jp)), 64 + 32 * (i - 2) + 4 * jp)]
        for jp in range(8):
            for i in range(2): body += [f'v_accvgpr_write_b32 a{32*i + 4*jp + e}, v{q1[i, jp] + e}' for e in range(4)]
        sched(k, body, [self.spread(self.unit_dma(3) + self.ring_start(), 20, 20)], vmax=1, tmax=1)
        k(f's_waitcnt vmcnt({nvm(k.lines[q0:]) + 16})')
        self.emit(self.poll_check(*wl, 1))
        self.att_consts()
        k(f's_waitcnt vmcnt({nvm(k.lines[q0:])})')
        k(f'buffer_store_dword v4, v3, s[{SWS}:{SWS+3}], s{sFl} offen sc1')
        self.stamp(3)

    def spread(self, items, g0, dg):
        out = []; g = g0
        for x in items:
            x = x[0] if isinstance(x, tuple) else x
            if x.startswith('buffer'): out.append((x, g)); g += dg
            else: out.append((x, max(0, g - 2)))
        return out

    def role_kb(self):
        k = self.k
        t0, t1, t2, t3 = vTmp + 4, vTmp + 5, vTmp + 6, vTmp + 7
        X2 = (SX2, vXo2, sX2o, 128 * 896); W2 = (SW2, vWo2, sW2o, 2688, 2)
        if int(self.opt.get('bmap', 1)):
            k(f's_and_b32 s{sBH}, s2, 1'); k(f's_lshl_b32 s{sBH}, s{sBH}, 3'); k(f's_add_u32 s{sBH}, s{sBH}, s{sP}')
            k(f's_and_b32 s{sBR}, s2, 6'); k(f's_lshr_b32 s{sT}, s2, 7'); k(f's_add_u32 s{sBR}, s{sBR}, s{sT}')
        else:
            k(f's_mov_b32 s{sBH}, s{sH}'); k(f's_mov_b32 s{sBR}, s{sP}')
        k(f's_mul_i32 s{sX2o}, s{sBR}, {256 * 896}')
        k(f's_mul_i32 s{sW2o}, s{sBH}, 56')
        k(f's_mov_b32 s{sScale}, {f32(LOG2E / 16)}')
        k(f's_mov_b32 s{sScale + 1}, s{sScale}')
        self.kv_base(12, WS_KV)
        k(f'v_lshrrev_b32 v{t0}, 2, v{vL}')
        k(f'v_mul_u32_u24 v{t0}, 2688, v{t0}')
        k(f's_mul_i32 s{sT}, s{sWV}, 896')
        k(f's_cmp_eq_u32 s{sWV}, 3')
        k(f's_cselect_b32 s{sT}, {OOB}, s{sT}')
        k(f'v_add_u32 v{t0}, s{sT}, v{t0}')
        k(f'v_lshrrev_b32 v{t1}, 5, v{vL}')
        k(f'v_lshlrev_b32 v{t1}, 1, v{t1}')
        k(f'v_and_b32 v{t2}, 3, v{vL}')
        k(f'v_xor_b32 v{t1}, v{t1}, v{t2}')
        k(f'v_lshl_add_u32 v{vWo2}, v{t1}, 4, v{t0}')
        k(f'v_add_u32 v{vWo2+1}, {16 * 2688 - 1024}, v{vWo2}')
        self.gemm1('K', 'F_kloop', X2, W2)
        koff = lambda p: (pair_pos('K', p)[0] >> 1) * 262144 + (pair_pos('K', p)[0] & 1) * 8192 + pair_pos('K', p)[1] * 1024
        pre = [f's_and_b32 s{sT}, s{sWV}, 1', f's_lshl_b32 s{sT}, s{sT}, 13',
               f'v_add_u32 v{vXb}, s{sT}, v{vXb}', f'v_add_u32 v{vXb+1}, s{sT}, v{vXb+1}', f'v_add_u32 v{vXr}, s{sT}, v{vXr}',
               f'v_lshrrev_b32 v{t1}, 4, v{vL}', f'v_lshl_add_u32 v{vWr}, v{t1}, 9, v{vL+1}', f'v_xor_b32 v{vWr+1}, 32, v{vWr}']
        ex = []; self.grp = None
        for p in range(32):
            ex += self.pack(acc1(p), 32 + 4 * p, scale=sScale, g=4 * p + 9, pk=p >= int(self.opt.get('pkp', 14)))
            if p % 8 == 3: ex += self.store(32 + 4 * (p >> 3), koff(p >> 3), g=4 * p + 9)
        _, left = self.step(30, 'K', xd=X2, wd=W2, extra=ex, extra2=self.spread(self.wphi(), 9, 3), flush=False)
        self.step(31, 'K', xd=X2, rd='b', extra=[(x, max(3, g - 64)) for x, g in left], pre=pre)
        self.stamp(2)
        plan, te = self.plan(32, int(self.opt.get('tca', 45))); tb = te + 1; tflag = te + 4
        pl = (vTmp, vXo + 3, SWS, f's{sPF}')
        for t in range(32, 46):
            ex = self.planned(plan[t], koff, 1, 12) if plan.get(t) else []
            if t == tb: elast = self.last_store()
            if t == tflag:
                assert elast < self.ends[-3]
                ex = self.flag1() + ex
            if t == 42: ex += [(x, 4) for x in self.code_pf(vTmp + 4, vTmp + 5)]
            if t == 44: ex += [(x, 4) for x in self.att_setup()]
            if t == 45: ex += [(self.poll_load(*pl), 0)]
            self.step(t, 'B', xd=X2 if t <= 40 else None, wd=W2 if t <= 41 else None, rd='b' if t < 45 else None, extra=ex)
            if t == tflag: self.stamp(15)
        assert tflag <= 44
        self.stamp(4)
        self.features(pl)

    def features(self, pl):
        k = self.k
        t0, t1, t2, t3 = vTmp + 4, vTmp + 5, vTmp + 6, vTmp + 7
        WP = 144; BF = 96
        for n in range(16): k(f'v_accvgpr_read_b32 v{128 + n}, a{ARAW + n}')
        for n in range(8): k(f'v_lshl_or_b32 v{WP + n}, v{128 + 2*n + 1}, 16, v{128 + 2*n}')
        for n in range(8): self.emit(self.pack(('v', 160 + 8 * n), BF + 4 * n))
        k('s_nop 1')
        T = lambda n: 32 + 8 * n
        for n in range(8):
            for fs in range(2): k(mfma(('v', T(n) + 4 * fs), ('v', WP + 4 * fs), ('v', BF + 4 * n), '0'))
        k(f'v_mov_b32 v{t3}, 0x3f803f80')
        k(f's_lshl_b32 s{sT}, s{sWV}, 12')
        k(f's_add_u32 s{sT}, s{sT}, {VBO}')
        k(f'v_add_u32 v{t2}, s{sT}, v{vSt}')
        for ip in range(2):
            for j in range(2):
                b = AV(ip, j)
                self.emit(self.pack(('v', b), b))
                if j == 1:
                    for e in range(4): k(f'v_cndmask_b32 v{b + e}, v{b + e}, v{t3}, s[{sM28}:{sM28+1}]')
                k(f'ds_write_b128 v{t2}, v[{b}:{b+3}] offset:{ip*2048 + j*1024}')
        k('s_waitcnt vmcnt(0)')
        self.emit(self.poll_check(*pl, 1))
        self.stamp(5)
        E = lambda n: 160 + 8 * n
        BP, BN, TS, NI = 96, 104, 112, vTmp + 1
        SC = f's[{sScale}:{sScale+1}]'
        k(f's_mov_b32 s{sScale}, {f32(LOG2E)}')
        k(f's_mov_b32 s{sScale+1}, s{sScale}')
        k(f'v_mov_b32 v{NI}, 0xff800000')
        def reduce4(ops, mids):
            ch = []
            for X, op, mid in zip((BP, BN), ops, mids):
                x = [X + 2 * n for n in range(4)]
                ch.append([[f'v_permlane32_swap_b32 v{x[0]}, v{x[2]}', f'v_permlane32_swap_b32 v{x[1]}, v{x[3]}'],
                           [f'{op} v{x[0]}, v{x[0]}, v{x[2]}', f'{op} v{x[1]}, v{x[1]}, v{x[3]}'], ['s_nop 0'],
                           [f'v_permlane16_swap_b32 v{x[0]}, v{x[1]}'], [f'{op} v{x[0]}, v{x[0]}, v{x[1]}'], [mid(x[0])],
                           [f'v_mov_b32 v{x[1]}, v{x[0]}'], ['s_nop 0'], [f'v_permlane16_swap_b32 v{x[0]}, v{x[1]}'],
                           [f'v_mov_b32 v{x[2]}, v{x[0]}', f'v_mov_b32 v{x[3]}, v{x[1]}'], ['s_nop 0'],
                           [f'v_permlane32_swap_b32 v{x[0]}, v{x[2]}', f'v_permlane32_swap_b32 v{x[1]}, v{x[3]}']])
            out = ['s_nop 1']
            for a_, b_ in zip(*ch): out += a_ + (b_ if a_ != ['s_nop 0'] else [])
            return out
        def group(n0):
            L = []
            for nm, X in (('max', BP), ('min', BN)):
                L += [f'v_{nm}3_f32 v{X + 2*n}, v{T(n0+n)}, v{T(n0+n)+1}, v{T(n0+n)+2}' for n in range(4)]
                for e in (3, 5): L += [f'v_{nm}3_f32 v{X + 2*n}, v{X + 2*n}, v{T(n0+n)+e}, v{T(n0+n)+e+1}' for n in range(4)]
                L += [f'v_{nm}_f32 v{X + 2*n}, v{X + 2*n}, v{T(n0+n)+7}' for n in range(4)]
            L += reduce4(('v_max_f32', 'v_min_f32'), (lambda x: f'v_mul_f32 v{x}, s{sScale}, -v{x}', lambda x: f'v_mul_f32 v{x}, s{sScale}, v{x}'))
            L += [f'v_cndmask_b32 v{X + 2*n + 1}, v{X + 2*n}, v{NI}, s[{sM3}:{sM3+1}]' for X in (BP, BN) for n in range(4)]
            for n in range(4):
                t, e_ = T(n0 + n), E(n0 + n)
                for X, d, ng in ((BN, e_, 1), (BP, t, 0)):
                    for e in range(0, 8, 2):
                        h = e >> 2
                        L.append(f'v_pk_fma_f32 v[{d+e}:{d+e+1}], v[{t+e}:{t+e+1}], {SC}, v[{X + 2*n}:{X + 2*n + 1}] op_sel:[0,0,{h}] op_sel_hi:[1,1,{h}] neg_lo:[{ng},0,0] neg_hi:[{ng},0,0]')
                L += [f'v_exp_f32 v{d+e}, v{d+e}' for d in (e_, t) for e in range(8)]
            pairs = [(X, Y, n) for X, Y in ((BN, E), (BP, T)) for n in range(4)]
            L += [f'v_pk_add_f32 v[{X + 2*n}:{X + 2*n + 1}], v[{Y(n0+n)}:{Y(n0+n)+1}], v[{Y(n0+n)+2}:{Y(n0+n)+3}]' for X, Y, n in pairs]
            for e in (4, 6): L += [f'v_pk_add_f32 v[{X + 2*n}:{X + 2*n + 1}], v[{X + 2*n}:{X + 2*n + 1}], v[{Y(n0+n)+e}:{Y(n0+n)+e+1}]' for X, Y, n in pairs]
            L += [f'v_add_f32 v{X + 2*n}, v{X + 2*n}, v{X + 2*n + 1}' for X, Y, n in pairs]
            L += reduce4(('v_add_f32', 'v_add_f32'), (lambda x: f'v_rcp_f32 v{x}, v{x}',) * 2)
            for n in range(4):
                for sg, (X, Y) in enumerate(((BP, T), (BN, E))):
                    y = Y(n0 + n)
                    L += [f'v_pk_mul_f32 v[{y+e}:{y+e+1}], v[{y+e}:{y+e+1}], v[{X + 2*n}:{X + 2*n + 1}] op_sel_hi:[1,0]' for e in range(0, 8, 2)]
                    d = y if n0 else 64 + 8 * n + 4 * sg
                    L += [x for x, _ in self.pack(('v', y), d)]
                    if n0: L += [f'ds_write_b64 v{t0 + 2*sg + fs}, v[{y+2*fs}:{y+2*fs+1}] offset:{n*2048}' for fs in range(2)]
            return L
        k(f'v_and_b32 v{t0}, 15, v{vL}')
        k(f'v_bfe_u32 v{t1}, v{vL}, 1, 2')
        k(f'v_lshlrev_b32 v{t1}, 5, v{t1}')
        k(f'v_lshl_add_u32 v{t0}, v{t0}, 7, v{t1}')
        k(f'v_lshrrev_b32 v{t1}, 4, v{vL}')
        k(f'v_lshl_add_u32 v{t0}, v{t1}, 3, v{t0}')
        k(f'v_add_u32 v{t0}, s{sW8}, v{t0}')
        for un in range(1, 4): k(f'v_xor_b32 v{t0 + un}, {32 * un}, v{t0}')
        ql = (vTmp + 3, vXo + 2, SWS, f's{sWo}')
        k(f's_lshl_b32 s{sWo}, s{sPO}, 7')
        k(f's_add_u32 s{sWo}, s{sWo}, {WS_FLAG + FL_Q}')
        k(f's_lshl_b32 s{sSo}, s{sPO}, 14')
        k(f's_add_u32 s{sSo}, s{sSo}, {WS_Q}')
        wl = (vWo, vWo + 1, SWS, f's{sWt}')
        self.emit(self.lanes(vWo + 1, 8))
        fill = self.spread(self.k0_dma() + self.unit_dma(1) + self.unit_dma(2) + [self.poll_load(*wl)] + self.ring_rd(), 2, 12)
        sched(k, group(4), [fill], vmax=1, tmax=1)
        k(f'v_lshrrev_b32 v{vTmp}, 2, v{vL}')
        k(f'v_bfe_u32 v{vTmp+2}, v{vL}, 3, 2')
        k(f'v_xor_b32 v{vTmp+2}, s{sWV}, v{vTmp+2}')
        k(f'v_lshlrev_b32 v{vTmp+2}, 5, v{vTmp+2}')
        k(f'v_lshl_add_u32 v{vTmp}, v{vTmp}, 7, v{vTmp+2}')
        k(f'v_and_b32 v{vTmp+2}, 3, v{vL}')
        k(f'v_lshl_add_u32 v{vTmp}, v{vTmp+2}, 3, v{vTmp}')
        k(f'v_add_u32 v{vTmp+2}, {VBO}, v{vSt}')
        k('s_waitcnt vmcnt(9) lgkmcnt(0)')
        k('s_barrier')
        k(self.flagstore(sXo))
        for kb in range(8):
            for rho in range(2): k(f'ds_read_b64_tr_b16 a[{128 + 4*kb + 2*rho}:{129 + 4*kb + 2*rho}], v{vTmp} offset:{kb*4096 + rho*2048}')
            for j in range(2): k(f'ds_read_b128 a[{176 + 8*kb + 4*j}:{179 + 8*kb + 4*j}], v{vTmp+2} offset:{kb*2048 + j*1024}')
        self.emit(self.kreads())
        g0 = group(0); cut = int(len(g0) * float(self.opt.get('qpos', 0.8)))
        fill = self.spread(self.unit_dma(3) + self.ring_start(), 2, 8) + [(self.poll_load(*ql), max(0, cut - 100))]
        sched(k, g0[:cut], [fill], vmax=1, tmax=1)
        self.stamp(6)
        k('s_waitcnt vmcnt(0)')
        self.emit(self.poll_check(*wl, 1))
        self.emit(self.poll_check(*ql, 1))
        self.stamp(14)
        qk_ = K(); save = self.k; self.k = qk_; self.gload('a', 0, sSo); self.k = save
        sched(k, g0[cut:], [self.spread([l.strip() for l in qk_.lines], 1, 6)], vmax=1, tmax=1)
        k(f's_lshl_b32 s{sSt}, s{sBH}, 16')
        k(f's_lshl_b32 s{sT}, s{sBR}, 13')
        k(f's_add_u32 s{sSt}, s{sSt}, s{sT}')
        k(f's_lshl_b32 s{sT}, s{sWV}, 10')
        k(f's_add_u32 s{sSt}, s{sSt}, s{sT}')
        k(f's_add_u32 s{sSt}, s{sSt}, {WS_KVP}')
        k('s_waitcnt lgkmcnt(0)')
        k('s_barrier')
        for kb in range(8):
            for j in range(2):
                d = ('v', 112 + 4 * j)
                k(mfma(d, ('a', 128 + 4 * kb), ('a', 176 + 8 * kb + 4 * j), '0' if kb == 0 else d))
        self.att_consts()
        self.grp = None
        for j in range(2): self.emit(self.store(112 + 4 * j, j * 4096))
        k('s_waitcnt vmcnt(2)')
        self.stamp(3)
```

```python
from fz_regs import *

BIAS = 100.0
vRd, vL4, vZ, vNinf = 1, 2, 3, 4
v1 = vNinf
vPl, vH = 5, 6
vDump = 14
vCp = 14
vOne, vLse = 8, 12
vS, vP, vNM, vLs, vT = 16, 32, 40, 48, 56
vB, vO = 64, 128
aQ, aK, aV = 0, 64, 128
S = lambda kt, u: vS + 8 * u + 4 * kt
O = lambda dt, u: vO + 64 * u + 4 * dt

class P2:
    @property
    def bias(self): return float(self.opt.get('bias', BIAS))

    def att_setup(self):
        sp = [int(c) for c in self.opt.get('sp', '00000000')]; tab = sum(v << (2 * p) for p, v in enumerate(sp))
        L = [f's_lshl_b32 s{sHB}, s{sH}, 21', f's_lshl_b32 s{sW8}, s{sWV}, 13', f's_mov_b32 s{sOOB}, {OOB}', f's_mov_b32 s{sBig}, {f32(2.0 ** 100)}',
             f's_sub_u32 s{sQT}, 15, s{sP}', f's_lshl_b32 s{sT}, s{sQT}, 2', f's_lshl_b32 s{sT2}, s{sP}, 1', f's_lshr_b32 s{sT2}, {tab}, s{sT2}', f's_and_b32 s{sT2}, s{sT2}, 3', f's_add_u32 s{sT2}, s{sT2}, 32',
             f's_lshl_b32 s{sPO}, s{sH}, 3', f's_add_u32 s{sPO}, s{sPO}, s{sP}', f's_lshl_b32 s{sPO}, s{sPO}, 2', f's_add_u32 s{sPO}, s{sPO}, s{sWV}',
             f's_lshl_b32 s{sFl}, s{sPO}, 7']
        if self.role == 'A':
            L += [f's_mov_b32 s{sN}, s{sT2}', f's_mov_b32 s{sT0}, 0', f's_mov_b32 s{sDiag}, 0', f's_mov_b32 s{sMode}, 2', f's_mov_b32 s{sNext}, 0',
                  f's_mov_b32 s{sFj}, s{sOOB}', f's_mov_b32 s{sFc2}, 64', f's_lshl_b32 s{sFl}, s{sBH}, 3', f's_add_u32 s{sFl}, s{sFl}, s{sBR}', f's_lshl_b32 s{sFl}, s{sFl}, 2',
                  f's_add_u32 s{sFl}, s{sFl}, s{sWV}', f's_lshl_b32 s{sFl}, s{sFl}, 7', f's_add_u32 s{sFl}, s{sFl}, {WS_FLAG + FL_B1}']
        else:
            L += [f's_add_u32 s{sN}, s{sT}, 4', f's_sub_u32 s{sN}, s{sN}, s{sT2}', f's_mov_b32 s{sT0}, s{sT2}', f's_mov_b32 s{sDiag}, 1',
                  f's_mov_b32 s{sMode}, 1', f's_mov_b32 s{sNext}, 1', f's_lshl_b32 s{sFc2}, s{sP}, 2', f's_add_u32 s{sFc2}, s{sFc2}, 4',
                  f's_add_u32 s{sFj}, s{sHB}, s{sW8}', f's_add_u32 s{sFj}, s{sFj}, 16384', f's_lshr_b32 s{sT}, s{sWV}, 1', f's_lshl_b32 s{sT}, s{sT}, 15',
                  f's_sub_u32 s{sFj}, s{sFj}, s{sT}', f's_add_u32 s{sFl}, s{sFl}, {WS_FLAG + FL_Q}']
        L += [f's_lshr_b32 s{sT}, s{sWV}, 1', f's_sub_u32 s{sFc}, s{sN}, s{sT}', f's_lshl_b32 s{sF}, s{sT0}, 15', f's_add_u32 s{sF}, s{sF}, s{sHB}']
        if int(self.opt.get('omap', 0)):
            L += [f's_mov_b32 s{sCc}, s{sP}', f's_lshl_b32 s{sRT}, s{sROLE}, 4', f's_add_u32 s{sRT}, s{sRT}, s{sH}']
        else:
            L += [f's_lshl_b32 s{sT}, s{sROLE}, 3', f's_add_u32 s{sT}, s{sT}, s{sP}', f's_xor_b32 s{sT}, s{sT}, {self.opt.get("bx", 7)}', f's_lshl_b32 s{sT}, s{sT}, 1', f's_lshr_b32 s{sRT}, s2, 7',
              f's_add_u32 s{sT}, s{sT}, s{sRT}', f's_lshr_b32 s{sCc}, s{sT}, 2', f's_and_b32 s{sT}, s{sT}, 3', f's_and_b32 s{sRT}, s2, 7',
              f's_lshl_b32 s{sRT}, s{sRT}, 2', f's_add_u32 s{sRT}, s{sRT}, s{sT}']
        L += [f's_lshl_b32 s{sT}, s{sCc}, 2', f's_add_u32 s{sT}, s{sT}, s{sWV}',
              f's_lshl_b32 s{sWp}, s{sT}, 17', f's_add_u32 s{sWp}, s{sWp}, {WS_WF}', f's_lshl_b32 s{sWt}, s{sT}, 10', f's_add_u32 s{sWt}, s{sWt}, {WS_FLAG + FL_KV}']
        L += [f's_xor_b32 s{sRo}, s{sRT}, s{sCc}', f's_and_b32 s{sRo}, s{sRo}, {ROT(self)}', f's_cmp_eq_u32 s{sCc}, 7\ns_cselect_b32 s{sRo}, 0, s{sRo}',
              f's_lshl_b32 s{sRo}, s{sRo}, 16', f's_add_u32 s{sWp}, s{sWp}, s{sRo}']
        return L

    def k0_dma(self):
        return [f's_lshr_b32 s{sT}, s{sW8}, 1', f's_add_u32 s{sT2}, s{sF}, s{sT}', f's_add_u32 m0, s{sT}, 131072'] + \
               [f'buffer_load_dwordx4 v{vL16}, s[{SWS}:{SWS+3}], s{sT2} offen offset:{1024*i} sc1 lds' for i in range(4)] + \
               [f's_add_u32 s{sF}, s{sF}, s{sW8}', f's_add_u32 s{sF}, s{sF}, 16384']

    def unit_dma(self, slot):
        return [f's_add_u32 s{sDs}, s{sW8}, {32768 * slot}'] + [x for x, _ in self.dma([1] * 8)] + [f's_add_u32 s{sF}, s{sF}, 32768', f's_sub_u32 s{sFc}, s{sFc}, 1',
                f's_cmp_eq_u32 s{sFc}, 0\ns_cselect_b32 s{sF}, s{sFj}, s{sF}\ns_cselect_b32 s{sFc}, s{sFc2}, s{sFc}\ns_cselect_b32 s{sFj}, s{sOOB}, s{sFj}']

    def ring_start(self):
        return [f's_mov_b32 s{sDs}, s{sW8}', f's_mov_b32 s{sRs}, 32768']

    def ring_rd(self): return [f'v_add_u32 v{vRd}, {131072 - 16384}, v{vL16}']

    def qk(self, u, c0):
        L = []
        cl = int(self.opt.get('qcl', 8))
        if cl < 8:
            seen = set()
            for b in range(8 // cl):
                for kt in ((0, 1) if b % 2 == 0 or self.opt.get('qalt') else (1, 0)):
                    dss = list(range(cl * b, cl * b + cl))
                    if len(L) // cl % 2: dss.reverse()
                    for ds in dss:
                        L.append(mfma(('v', S(kt, u)), ('a', aK + 32 * kt + 4 * ds), ('a', aQ + 32 * u + 4 * ds),
                                      (c0 if c0 else ('v', vNM + 4 * u)) if kt not in seen else ('v', S(kt, u)))); seen.add(kt)
            return L
        for kt in range(2):
            for n, ds in enumerate(range(8) if kt == 0 or not int(self.opt.get('zig', 1)) else range(7, -1, -1)):
                L.append(mfma(('v', S(kt, u)), ('a', aK + 32 * kt + 4 * ds), ('a', aQ + 32 * u + 4 * ds),
                              (c0 if c0 else ('v', vNM + 4 * u)) if n == 0 else ('v', S(kt, u))))
        return L

    def pv(self, u, first):
        m = [mfma(('v', O(dt, u)), ('a', aV + 4 * dt), ('v', vP + 4 * u), '0' if first else ('v', O(dt, u))) for dt in range(16)]
        return m + [mfma(('v', vLs + 4 * u), ('v', vOne), ('v', vP + 4 * u), '0' if first else ('v', vLs + 4 * u))]

    def soft(self, u, g):
        b = vS + 8 * u
        return [(f'v_exp_f32 v{b + e}, v{b + e}', g) for e in range(8)] + \
               [(f'v_cvt_pk_bf16_f32 v{vP + 4*u + e}, v{b + 2*e}, v{b + 2*e + 1}', g) for e in range(4)]

    def vreads(self): return [f'ds_read_b128 a[{aV + 4*n}:{aV + 4*n + 3}], v{vRd} offset:{1024*n}' for n in range(16)]
    def kreads(self):
        return [f'ds_read_b128 a[{aK + 32*kt + 4*ds}:{aK + 32*kt + 4*ds + 3}], v{vRd} offset:{16384 + 8192*kt + 1024*ds}' for kt in range(2) for ds in range(8)]

    def dma(self, gaps):
        it = []
        for grp in range(2):
            g0 = gaps[4 * grp]
            if grp == 0: it.append((f's_mov_b32 m0, s{sDs}', g0 - 1)); so = sF
            else:
                it.append((f's_add_u32 s{sT2}, s{sF}, 4096', g0 - 1)); it.append((f's_add_u32 m0, s{sDs}, 4096', g0 - 1)); so = sT2
            for i in range(4):
                it.append((f'buffer_load_dwordx4 v{vL16}, s[{SWS}:{SWS+3}], s{so} offen offset:{1024*i} {self.opt.get("kvf", "sc1").replace("_", " ")} lds', gaps[4 * grp + i]))
        return it

    def adv(self, g):
        self.uid += 1; L = f'F_sw{self.uid}'
        self.late += [f'{L}:', f's_mov_b32 s{sF}, s{sFj}', f's_mov_b32 s{sFc}, s{sFc2}', f's_mov_b32 s{sFj}, s{sOOB}', f's_cmp_eq_u32 s{sF}, s{sOOB}',
                      f's_cbranch_scc0 {L}r', f's_add_u32 s{sF}, s{sWp}, {4 * 4096}', f's_mov_b32 s{sW0}, s{sRs}', f's_mov_b32 s{sUs}, 8192',
                      f's_mov_b32 s{sFc}, 4096', f's_branch {L}r']
        return [(t, g) for t in (f's_add_u32 s{sF}, s{sF}, s{sUs}', f's_sub_u32 s{sFc}, s{sFc}, 1', f's_cmp_eq_u32 s{sFc}, 0',
                f's_cbranch_scc1 {L}\n{L}r:')]

    def slot_s(self, g):
        return [(t, g) for t in (f's_add_u32 s{sDs}, s{sRs}, s{sW8}', f's_add_u32 s{sRs}, s{sRs}, 32768', f's_and_b32 s{sRs}, s{sRs}, 0x1ffff',
                f's_add_u32 s{sIt}, s{sIt}, 1')]

    def ahead(self, vm=16):
        k = self.k
        if self.opt.get('itprof'): k('s_memtime s[82:83]')
        if self.opt.get('vfirst'): k(f'v_add_u32 v{vRd}, s{sRs}, v{vL16}')
        k(f's_waitcnt vmcnt({vm}) lgkmcnt(0)')
        if not self.opt.get('vfirst'): k(f'v_add_u32 v{vRd}, s{sRs}, v{vL16}')
        if self.opt.get('itprof'): k(f's_mov_b32 m0, s{sIt}'); k('s_nop 0'); k(f'v_writelane_b32 v{vDump}, s82, m0')
        if not self.opt.get('nobar'): k('s_barrier')

    def mask(self):
        k = self.k
        for u in range(2):
            for r in range(4): k(f'v_cndmask_b32 v{S(u, u) + r}, v{S(u, u) + r}, v{vNinf}, s[{sMK + 2*r}:{sMK + 2*r + 1}]')
        for r in range(4): k(f'v_mov_b32 v{S(1, 0) + r}, v{vNinf}')

    def rowmax(self, dst):
        k = self.k
        for u in range(2): k(f'v_max3_f32 v{dst + u}, v{vS + 8*u}, v{vS + 8*u + 1}, v{vS + 8*u + 2}')
        for e in (3, 5):
            for u in range(2): k(f'v_max3_f32 v{dst + u}, v{dst + u}, v{vS + 8*u + e}, v{vS + 8*u + e + 1}')
        for u in range(2): k(f'v_max_f32 v{dst + u}, v{dst + u}, v{vS + 8*u + 7}')

    def setmax(self, m, bias=None):
        k = self.k
        for sw in ('v_permlane32_swap_b32', 'v_permlane16_swap_b32'):
            for u in range(2): k(f'v_mov_b32 v{m + 2 + u}, v{m + u}')
            k('s_nop 1')
            for u in range(2): k(f'{sw} v{m + u}, v{m + 2 + u}')
            for u in range(2): k(f'v_max_f32 v{m + u}, v{m + u}, v{m + 2 + u}')
        for u in range(2):
            for r in range(4): k(f'v_sub_f32 v{vNM + 4*u + r}, {f32(-(self.bias if bias is None else bias))}, v{m + u}')

    def tail_streams(self):
        kg = [32, 33, 44, 45, 46, 47, 48] + list(range(49, 58))
        return [(t, g - 32) for t, g in zip(self.kreads(), kg)]

    def it_mid(self, copy=0, exit_=None):
        k = self.k; o = self.opt
        va = int(o.get('va', 0))
        self.ahead()
        mf = self.qk(0, None) + self.qk(1, None) + self.pv(0, False)[:17 - va] + self.pv(1, False)[:17 - va]
        k(mf[0])
        k(f's_cmp_ge_u32 s{sIt}, s{sHook}')
        if int(o.get('m2', 1)):
            k(f's_cbranch_scc1 F_hookin{copy}')
            k(f'F_hookret{copy}:')
        else:
            k('s_cbranch_scc1 F_hook')
            k('F_hookret:')
        mf = mf[1:]
        L = lambda key, d: [int(x) for x in o[key].split('.')] if key in o else d
        vg = L('vg', [0, 1, 2, 3, 5, 6, 7, 8, 9, 10, 11, 13, 14, 15, 16, 16])
        if va:
            kg = L('kg', [30, 31, 32, 45, 46, 47, 48, 49, 50, 51, 53, 54, 55, 56, 57, 58]); dg = L('dg', [4, 12, 20, 28, 36, 44, 52, 59])
        else:
            kg = L('kg', [31, 32, 33, 45, 46, 47, 48, 49, 50, 51, 53, 54, 55, 56, 57, 58]); dg = L('dg', [4, 12, 20, 28, 36, 44, 52, 60])
        rd = list(zip(self.vreads(), vg)) + [('s_waitcnt lgkmcnt(0)', 29)] + list(zip(self.kreads(), kg))
        sm = self.soft(0, 17) + self.soft(1, 34 - va)
        ag = dg[-1]
        dm = self.dma(dg) + self.adv(ag) + self.slot_s(ag + 1) + [(f's_sub_u32 s{sCnt}, s{sCnt}, 1', ag + 2), (f's_cmp_gt_u32 s{sCnt}, s{sEx}', ag + 2)]
        ct = [(f'global_load_dword v{vH+1}, v{vCp}, s[30:31]', 29 if va else 30)] if int(o.get('ct', 0)) and copy == 0 else []
        if o.get('wt'):
            t0, nl, t1 = [int(x) for x in o['wt'].split('.')][:3]
            ct = [(f's_sub_u32 s{sT}, s{sIt}, {t0}', 24), (f's_cmp_lt_u32 s{sT}, {t1}\ns_cselect_b32 s{sT}, s{sTp}, s{sOOB}\ns_cselect_b32 s{sSpin}, {nl * 128}, 0', 26),
                  (f'buffer_load_dword v{vH+1}, v{vCp}, s[{SWS}:{SWS+3}], s{sT} offen', 30), (f's_add_u32 s{sTp}, s{sTp}, s{sSpin}', 31)]
        ad = [(f'v_add_f32 v{vLse + u}, v{vLse + u}, v{vS + 8*u + e}', kg[8 * u + e]) for u in range(2) for e in range(8)] if va else []
        VMCOST[0] = 2
        sched(k, mf, [dm, ct, sm, rd, ad] if va else [dm, ct, sm, rd], req={31: [(3, 17), (2, 12)], 48 - va: [(2, 24)]}, prio=[0, 1, 3, 2, 4] if va else [0, 3, 2, 1])
        VMCOST[0] = 1

    def it_mid2(self):
        k = self.k
        R0, R1, vR2, P2 = aK, aV, vCp, vT
        nxt = [f's_add_u32 s{sT}, s{sRs}, 32768', f's_and_b32 s{sT}, s{sT}, 0x1ffff', f'v_add_u32 v{vR2}, s{sT}, v{vL16}', f'v_add_u32 v{vRd}, s{sRs}, v{vL16}']
        self.emit(nxt + [f's_waitcnt vmcnt({self.opt.get("ev", 26)}) lgkmcnt(0)', 's_barrier'])
        k('.p2align 6')
        for _ in range(int(self.opt.get('al', 0))): k('s_nop 0')
        k('F_loop:')
        x1 = [m.replace(f'a[{aK + 4*n}:{aK + 4*n + 3}]', f'a[{R1 + 4*n}:{R1 + 4*n + 3}]') for m in self.qk(0, None) + self.qk(1, None) for n in range(16) if f', a[{aK + 4*n}:{aK + 4*n + 3}], a[' in m]
        def pv(h, u):
            L = []
            for d in range(8):
                for tl in ((0, 1) if d % 2 == 0 else (1, 0)):
                    o = ('v', O(8 * h + d, u)); L.append(mfma(o, ('a', (R0, R1)[h] + 8 * d + 4 * tl), ('v', (vP, P2)[tl] + 4 * u), o))
            return L
        ones = lambda u: [mfma(('v', vLs + 4 * u), ('v', vOne), ('v', p + 4 * u), ('v', vLs + 4 * u)) for p in (vP, P2)]
        h1 = pv(1, 1) + ones(1) + pv(1, 0)
        if self.opt.get('pvi'):
            h1 = ones(1)
            for d in range(8):
                for n, u in enumerate((0, 1) if d % 2 == 0 else (1, 0)):
                    o = ('v', O(8 + d, u)); h1 += [mfma(o, ('a', R1 + 8 * d + 4 * tl), ('v', (vP, P2)[tl] + 4 * u), o) for tl in ((0, 1) if n == 0 else (1, 0))]
        mf = self.qk(0, None) + self.qk(1, None) + x1 + pv(0, 0) + ones(0) + pv(0, 1) + h1
        k(mf[0])
        k(f's_cmp_ge_u32 s{sIt}, s{sHook}')
        k('s_cbranch_scc1 F_hookin1')
        k('F_hookret1:')
        mf = mf[1:]
        kr = lambda R_, v: [f'ds_read_b128 a[{R_ + 4*n}:{R_ + 4*n + 3}], v{v} offset:{16384 + 1024*n}' for n in range(16)]
        vr = lambda h: [f'ds_read_b128 a[{(R0, R1)[h] + 8*d + 4*tl}:{(R0, R1)[h] + 8*d + 4*tl + 3}], v{(vRd, vR2)[tl]} offset:{1024 * (8*h + d)}' for d in range(8) for tl in range(2)]
        L = lambda key, d: [int(x) for x in self.opt[key].split('.')] if key in self.opt else d
        d0 = L('d0', [2, 7, 14, 24, 34, 44, 54, 64]); d1 = L('d1', [94, 97, 100, 103, 106, 109, 112, 115]); gb = int(self.opt.get('gb', 92)); ge = int(self.opt.get('ge', 124))
        eg = list(range(11, 75, 2))
        free = [g for g in range(124) if g not in eg and g not in d0 + d1]
        rg = free[:48] + [g for g in free if g > gb][:16]
        reads = kr(R1, vRd) + vr(0) + vr(1) + kr(R0, vR2)
        assert rg[16] >= 23 and rg[24] >= 31 and rg[32] >= 55 and rg[40] >= 63 and rg[47] < gb and all(rg[48 + n] >= 82 + (n & ~1) for n in range(16))
        rd = list(zip(reads, rg))
        wt = []
        for g, i in ((30, 7), (38, 15), (62, 23), (70, 27), (74, 31)):
            wt.append((f's_waitcnt lgkmcnt({sum(1 for n, x in enumerate(rg) if n > i and x < g)})', g))
        wt += [('s_waitcnt lgkmcnt(0)', gb - 1), ('s_barrier', gb), ('s_waitcnt vmcnt(8) lgkmcnt(0)', ge - 1), ('s_barrier', ge)]
        if self.opt.get('p2'):
            wt[-2:-2] = [('s_memtime s[82:83]', ge - 4)]
            wt += [(f's_lshr_b32 s80, s{sIt}, 1\ns_add_u32 m0, s80, 31', ge + 1), ('v_writelane_b32 v0, s82, m0', ge + 2)]
        ex, cv = [], []
        for q in range(4):
            sf = [x for x, _ in self.soft(q & 1, 0)]
            ex += list(zip(sf[:8], eg[8 * q:8 * q + 8]))
            for e in range(4):
                x = sf[8 + e].replace(f'v_cvt_pk_bf16_f32 v{vP + 4*(q & 1) + e},', f'v_cvt_pk_bf16_f32 v{(vP, P2)[q >> 1] + 4*(q & 1) + e},')
                cv.append((x, 16 * q + 14 + 4 * e))
        one = lambda its, g: [(x, g + n) for n, (x, _) in enumerate(its)]
        xs = []
        if int(self.opt.get('spm', 4)) == 4:
            xs = [(f's_add_u32 s{sT2}, s{sWp}, s{sTp}', 85), (f's_add_u32 s{sT}, s{sW8}, s{sTp}', 86), (f's_add_u32 m0, s{sT}, {131072 - 12 * 4096}', 87),
                  (f'buffer_load_dwordx4 v{vL16}, s[{SWS}:{SWS+3}], s{sT2} offen sc1 lds', 88), (f's_add_u32 s{sTp}, s{sTp}, 1024', 89), (f's_min_u32 s{sTp}, s{sTp}, {14 * 4096 - 1024}', 90)]
        dm = self.dma(d0) + one(self.adv(0) + self.slot_s(0), 76) + xs + self.dma(d1) + one(self.adv(0), d1[-1] + 1) + self.slot_s(d1[-1] + 5) + \
            [(x, ge + 1) for x in nxt] + [(f's_sub_u32 s{sCnt}, s{sCnt}, 2', 127), (f's_cmp_gt_u32 s{sCnt}, s{sEx2}', 128)]
        assert rg[-1] < ge - 4
        VMCOST[0] = 2
        sched(k, mf, [wt, dm, ex, rd, cv], req={31: [(4, 4)], 47: [(4, 8)], 61: [(4, 12)], 79: [(4, 16)]})
        VMCOST[0] = 1

    def fold(self):
        k = self.k
        if not int(self.opt.get('va', 0)): return
        for sw in ('v_permlane32_swap_b32', 'v_permlane16_swap_b32'):
            for u in range(2): k(f'v_mov_b32 v{vT + u}, v{vLse + u}')
            k('s_nop 1')
            for u in range(2): k(f'{sw} v{vLse + u}, v{vT + u}')
            for u in range(2): k(f'v_add_f32 v{vLse + u}, v{vLse + u}, v{vT + u}')
        for u in range(2): k(f'v_add_f32 v{vLs + 4*u}, v{vLs + 4*u}, v{vLse + u}')

    def it_tail(self, n):
        k = self.k
        if n == 0: k('s_waitcnt vmcnt(8)')
        self.ahead()
        mf = self.qk(0, None) + self.qk(1, None) + self.pv(0, False) + self.pv(1, False)
        pl = []
        if n == 0:
            k(mf[0]); self.emit(self.poll_check(vPl, vZ, SWS, f's{sWt}', 1))
            pl += [f's_lshl_b32 s{sT}, s{sPO}, 10', f's_add_u32 s{sT}, s{sT}, {WS_ML}']
            pl += [f'buffer_load_dword v{vLse + u}, v{vL4}, s[{SWS}:{SWS+3}], s{sT} offen offset:{256*u} sc1' for u in range(2)]
            pl += [f's_lshl_b32 s{sSo}, s{sPO}, 14']
        else: k(mf[0])
        mf = mf[1:]
        for i in range(8 * n, 8 * n + 8):
            if i % 4 == 0: pl.append(f's_add_u32 s{sT}, s{sSo}, {WS_PART + 1024 * i}')
            pl.append(f'buffer_load_dwordx4 v[{vB + 4*i}:{vB + 4*i + 3}], v{vL16}, s[{SWS}:{SWS+3}], s{sT} offen offset:{1024 * (i % 4)} sc1')
        pg = [[2, 6, 10, 14, 30, 48, 54, 58, 62, 64], [2, 6, 10, 14, 18, 22, 30, 32]][n]; pq = []; g = 0
        for x in pl:
            pq.append((x, pg[g] if x.startswith('buffer') else max(0, pg[g] - 2)))
            if x.startswith('buffer'): g += 1
        vg = [0, 0, 1, 3, 3, 5, 7, 7, 8, 9, 11, 11, 13, 15, 15, 16]
        rd = list(zip(self.vreads(), vg)) + [('s_waitcnt lgkmcnt(0)', 29)]
        if n == 0: rd += list(zip(self.kreads(), [31, 32, 33, 45, 46, 47, 49, 49, 50, 51, 51, 53, 55, 55, 56, 57]))
        dg = [[4, 12, 20, 28, 36, 44, 52, 60], [4, 12, 33, 45, 49, 53, 57, 61]][n]
        dm = self.dma(dg) + [(f's_add_u32 s{sF}, s{sF}, s{sUs}', 61)] + self.slot_s(62)
        VMCOST[0] = 2
        sched(k, mf, [dm, pq, rd, self.soft(0, 17) + self.soft(1, 34)], req={29: [(3, 12)], 31: [(2, 17)], 46: [(3, 24)]})
        VMCOST[0] = 1
        last = max(i for i, l in enumerate(k.lines) if l.strip() == pl[-1])
        return last + 1

    def wl(self):
        it = []
        for n in range(16):
            if n % 4 == 0: it.append(f's_add_u32 s{sSo}, s{sWt}, {1024 * n}')
            it.append(f'buffer_load_dwordx4 a[{192 + 4*n}:{195 + 4*n}], v{vL16}, s[{SWS}:{SWS+3}], s{sSo} offen offset:{1024 * (n % 4)} sc1')
        return it

    def first_end(self):
        self.k('s_waitcnt vmcnt(24)')
        self.k(f'buffer_store_dword v{v1}, v{vZ}, s[{SWS}:{SWS+3}], s{sFl} offen sc1')
        if int(self.opt.get('h0', 1)): self.k(self.poll_load(vPl, vH, SWS, f's{sPF}'))

    def it_only(self):
        k = self.k
        k('F_only:')
        mf = self.qk(0, '0') + self.qk(1, '0')
        sched(k, mf, [[(t, 2 * n) for n, t in enumerate(self.vreads())], self.dma([1, 5, 9, 13, 17, 21, 25, 29])])
        self.emit(self.adv(0) + self.slot_s(0))
        k(f's_sub_u32 s{sCnt}, s{sCnt}, 1')
        self.mask(); self.rowmax(vT); self.setmax(vT)
        for u in range(2):
            for e in range(8): k(f'v_add_f32 v{vS + 8*u + e}, v{vS + 8*u + e}, v{vNM + 4*u}')
        self.emit(self.soft(0, 0) + self.soft(1, 0))
        k('s_waitcnt lgkmcnt(0)')
        sched(k, self.pv(0, True) + self.pv(1, True), [self.tail_streams(), self.spread(self.wl(), 1, 2)])
        self.first_end()
        k('s_branch F_done')

    def it_first(self):
        k = self.k
        self.ahead()
        k('F_first:')
        k(f's_cmp_eq_u32 s{sCnt}, s{sDiag}')
        k('s_cbranch_scc1 F_only')
        mf = self.qk(0, '0') + self.qk(1, '0') + self.pv(0, True) + self.pv(1, True)
        def chain(u, g):
            b = vS + 8 * u; m = vT + 2 * u
            L = [f'v_max3_f32 v{m}, v{b}, v{b+1}, v{b+2}', f'v_max3_f32 v{m}, v{m}, v{b+3}, v{b+4}', f'v_max3_f32 v{m}, v{m}, v{b+5}, v{b+6}', f'v_max_f32 v{m}, v{m}, v{b+7}']
            for sw in ('v_permlane32_swap_b32', 'v_permlane16_swap_b32'):
                L += [f'v_mov_b32 v{m+1}, v{m}', 's_nop 1', f'{sw} v{m}, v{m+1}', f'v_max_f32 v{m}, v{m}, v{m+1}']
            L.append(f'v_sub_f32 v{vNM + 4*u}, {f32(-self.bias)}, v{m}')
            L += [f'v_add_f32 v{b + e}, v{b + e}, v{vNM + 4*u}' for e in range(8)]
            return [(x, g) for x in L] + self.soft(u, g) + [('s_nop 1', g)]
        c0, c1 = chain(0, 18), chain(1, 34)
        nm = [(f'v_mov_b32 v{vNM + 4*u + r}, v{vNM + 4*u}', 50) for u in range(2) for r in range(1, 4)] + [(f'v_mov_b32 v{vLse + u}, 0', 50) for u in range(2)]
        w = self.wl()
        vg = [0, 0, 2, 2, 4, 4, 6, 6, 8, 8, 10, 10, 12, 12, 14, 14]
        rd = list(zip(self.vreads(), vg)) + [('s_waitcnt lgkmcnt(0)', 30)] + list(zip(self.kreads(), [32, 32, 33, 33] + [49 + n // 2 * 2 for n in range(12)]))
        dm = self.dma([1, 3, 5, 7, 9, 11, 13, 15]) + self.adv(15) + self.slot_s(16) + [(f's_sub_u32 s{sCnt}, s{sCnt}, 1', 17)]
        wq = self.spread(w[:5], 16, 4) + self.spread(w[5:10], 35, 4) + self.spread(w[10:], 50, 2)
        VMCOST[0] = 2
        sched(k, mf, [dm, rd, wq, c0 + c1 + nm], req={32: [(3, len(c0)), (1, 17)], 49: [(3, len(c0 + c1))]})
        VMCOST[0] = 1
        self.first_end()

    def it_last(self):
        k = self.k
        self.ahead()
        mf = self.qk(0, None)[:8] + self.qk(1, None) + self.pv(0, False) + self.pv(1, False)
        cm = lambda u: [f'v_cndmask_b32 v{S(u, u) + r}, v{S(u, u) + r}, v{vNinf}, s[{sMK + 2*r}:{sMK + 2*r + 1}]' for r in range(4)]
        s0 = [(f'v_mov_b32 v{vP + e}, 0', 2) for e in (2, 3)] + [(x, 11) for x in cm(0)] + [x for n, x in enumerate(self.soft(0, 11)) if n in (0, 1, 2, 3, 8, 9)]
        sf = self.soft(1, 27)
        s1 = sf[:4] + [(x, 27) for x in cm(1)] + sf[4:]
        rd = list(zip(self.vreads(), [0, 0, 1, 1, 2, 3, 5, 5, 6, 6, 7, 7, 8, 8, 9, 9])) + [('s_waitcnt lgkmcnt(0)', 22)] + \
            list(zip(self.kreads(), [24, 24, 25, 25, 26, 26, 40, 41, 42, 43, 45, 46, 47, 48, 49, 50]))
        dm = self.dma([4, 10, 20, 23, 39, 44, 51, 54]) + self.adv(54) + self.slot_s(55) + [(f's_sub_u32 s{sCnt}, s{sCnt}, 1', 56)]
        VMCOST[0] = 2
        sched(k, mf, [dm, rd, s0 + s1], req={22: [(2, len(s0))], 24: [(1, 17)], 39: [(2, len(s0 + s1))]})
        VMCOST[0] = 1

    def it_idle(self, lbl):
        k = self.k
        self.ahead()
        self.emit(self.dma([1] * 8) + self.adv(0) + self.slot_s(0))
        k(f's_sub_u32 s{sRem}, s{sRem}, 1')
        k(f's_cmp_lg_u32 s{sRem}, 0')
        k(f's_cbranch_scc1 {lbl}')
        self.emit(self.kreads())
        k(f'{lbl}:')

    def out_store(self, ustride, merge, fill=None):
        k = self.k
        for u in range(2):
            for ds in range(8):
                b = O(2 * ds, u)
                for e in range(0, 8, 2):
                    k(f'v_pk_mul_f32 v[{b+e}:{b+e+1}], v[{b+e}:{b+e+1}], v[{vT + 2*u}:{vT + 2*u + 1}]')
                if merge:
                    for e in range(4):
                        src = vB + 32 * u + 4 * ds + e
                        k(f'v_lshlrev_b32 v{vS + 2*e}, 16, v{src}')
                        k(f'v_and_b32 v{vS + 2*e + 1}, 0xffff0000, v{src}')
                    for e in range(0, 8, 2):
                        k(f'v_pk_fma_f32 v[{b+e}:{b+e+1}], v[{vS+e}:{vS+e+1}], v[{vT + 4 + 2*u}:{vT + 5 + 2*u}], v[{b+e}:{b+e+1}]')
                for e in range(4): k(f'v_cvt_pk_bf16_f32 v{b + e}, v{b + 2*e}, v{b + 2*e + 1}')
                if ds % 4 == 0: k(f's_add_u32 s{sT2}, s{sSo}, {ustride(u, ds)}')
                k(f'buffer_store_dwordx4 v[{b}:{b+3}], v{vL16}, s[{SWS}:{SWS+3}], s{sT2} offen offset:{1024 * (ds % 4)} {self.opt.get("ctxsc", "sc1")}')
                if fill: self.emit(fill[8 * u + ds])

    def ctx_base(self):
        k = self.k
        k(f's_lshl_b32 s{sSo}, s{sQT}, 20')
        k(f's_lshl_b32 s{sT}, s{sWV}, 18')
        k(f's_add_u32 s{sSo}, s{sSo}, s{sT}')
        k(f's_lshl_b32 s{sT}, s{sH}, 13')
        k(f's_add_u32 s{sSo}, s{sSo}, s{sT}')
        k(f's_add_u32 s{sSo}, s{sSo}, {WS_CTX}')

    def slow(self):
        k = self.k
        k('F_slow:')
        k('s_waitcnt vmcnt(0) lgkmcnt(0)')
        for ps in range(2):
            k(f's_lshl_b32 s{sSo}, s{sT0}, 15')
            k(f's_add_u32 s{sSo}, s{sSo}, s{sHB}')
            k(f's_mov_b32 s{sCnt}, s{sNW}')
            if ps == 0:
                for u in range(2): k(f'v_mov_b32 v{vT + 4 + u}, v{vNinf}')
            else:
                for r in range(128): k(f'v_mov_b32 v{vO + r}, 0')
                for r in range(8): k(f'v_mov_b32 v{vLs + r}, 0')
            k(f'F_slow{ps}:')
            self.gload('a', aK, sSo, n=16 * (1 + ps))
            k(f's_add_u32 s{sSo}, s{sSo}, 32768')
            k(f's_sub_u32 s{sCnt}, s{sCnt}, 1')
            k('s_waitcnt vmcnt(0)')
            for m in self.qk(0, None if ps else '0') + self.qk(1, None if ps else '0'): k(m)
            k('s_nop 7')
            k(f's_cmp_ge_u32 s{sCnt}, s{sDiag}')
            k(f's_cbranch_scc1 F_slown{ps}')
            self.mask()
            k(f'F_slown{ps}:')
            if ps == 0:
                self.rowmax(vT)
                for u in range(2): k(f'v_max_f32 v{vT + 4 + u}, v{vT + 4 + u}, v{vT + u}')
            else:
                self.emit(self.soft(0, 0) + self.soft(1, 0))
                k('s_nop 1')
                for m in self.pv(0, False) + self.pv(1, False): k(m)
            k(f's_cmp_lg_u32 s{sCnt}, 0')
            k(f's_cbranch_scc1 F_slow{ps}')
            if ps == 0: self.setmax(vT + 4, 0.0)
        self.emit(self.kreads())
        k('s_branch F_checked')

    def segcount(self):
        k = self.k
        k(f's_sub_u32 s{sRem}, 3, s{sWV}')
        k(f's_mul_i32 s{sRem}, s{sRem}, s{sDiag}')
        k(f's_sub_u32 s{sCnt}, s{sN}, s{sRem}')
        k(f's_mov_b32 s{sNW}, s{sCnt}')
        k(f's_cmp_eq_u32 s{sNext}, 0')
        k(f's_cselect_b32 s{sWt}, s{sWp}, s{sOOB}')

    def hooks(self):
        k = self.k
        if int(self.opt.get('m2', 1)):
            for t in ('F_hookret:', 's_cmp_eq_u32 s3, 0', 's_cbranch_scc1 F_hookret0', 's_branch F_hookret1', 'F_hookin1:', 's_mov_b32 s3, 1', 's_branch F_hook', 'F_hookin0:', 's_mov_b32 s3, 0'): k(t)
        k('F_hook:')
        for n in (1, 6, 7, 8, 9, 2, 3, 4, 5):
            k(f's_cmp_eq_u32 s{sHst}, {n}'); k(f's_cbranch_scc1 F_hook{n}')
        def done(d):
            k(f's_add_u32 s{sHook}, s{sIt}, {d}'); k(f's_add_u32 s{sHst}, s{sHst}, 1'); k('s_branch F_hookret')
        flag = lambda so: k(f'buffer_store_dword v{v1}, v{vZ}, s[{SWS}:{SWS+3}], s{so} offen sc1')
        kv = (vPl, vH, SWS, f's{sPF}')
        self.emit(self.lanes(vH, 16))
        k(self.poll_load(*kv))
        done(1)
        k('F_hook1:')
        k('s_waitcnt vmcnt(8)')
        self.emit(self.poll_check(*kv, 2))
        def spare(gs):
            for g in gs:
                k(f's_add_u32 m0, s{sW8}, {131072 + 4096 * g}')
                k(f's_add_u32 s{sSo}, s{sWp}, {(12 + g) * 4096}')
                for n in range(4): k(f'buffer_load_dwordx4 v{vL16}, s[{SWS}:{SWS+3}], s{sSo} offen offset:{1024*n} sc1 lds')
        spm = int(self.opt.get('spm', 4))
        if spm == 1:
            k(f's_mov_b32 s{sHook}, -1'); k(f's_cmp_eq_u32 s{sROLE}, 0'); k('s_cbranch_scc1 F_hookret')
        if spm in (1, 3): spare(range(2))
        k(f's_lshr_b32 s{sT}, s{sP}, 1')
        k(f's_cmp_eq_u32 s{sT}, {self.opt.get("redp", 0)}')
        k(f's_cselect_b32 s{sHst}, 2, 6')
        k(f's_cselect_b32 s{sHook}, 8, 19')
        k(f's_cmp_eq_u32 s{sROLE}, 1')
        k(f's_cselect_b32 s{sHook}, s{sHook}, -1')
        k('s_branch F_hookret')
        PB = 96
        def tile():
            k(f's_and_b32 s{sT}, s{sP}, 1'); k(f's_lshl_b32 s{sT}, s{sT}, 2'); k(f's_add_u32 s{sT}, s{sT}, s{sWV}')
        pl = (vPl, vH, SWS, f's{sWt}')
        k('F_hook2:')
        k(f's_lshl_b32 s{sWt}, s{sH}, 5')
        k(f's_add_u32 s{sWt}, s{sWt}, s{sWV}')
        k(f's_lshl_b32 s{sWt}, s{sWt}, 7')
        k(f's_add_u32 s{sWt}, s{sWt}, {WS_FLAG + FL_B1}')
        k(f'v_lshlrev_b32 v{vH}, 5, v{vL16}')
        k(f'v_and_b32 v{vH}, 0xfff, v{vH}')
        k(self.poll_load(*pl))
        done(1)
        k('F_hook3:')
        tile()
        k(f's_lshl_b32 s{sT}, s{sT}, 10')
        k(f's_lshl_b32 s{sSo}, s{sH}, 16')
        k(f's_add_u32 s{sSo}, s{sSo}, s{sT}')
        k(f's_add_u32 s{sSo}, s{sSo}, {WS_KVP}')
        k('s_waitcnt vmcnt(8)')
        self.emit(self.poll_check(*pl, 1))
        for r in range(8):
            k(f'buffer_load_dwordx4 v[{PB + 4*r}:{PB + 4*r + 3}], v{vL16}, s[{SWS}:{SWS+3}], s{sSo} offen sc1')
            k(f's_add_u32 s{sSo}, s{sSo}, 8192')
        done(2)
        k('F_hook4:')
        tile()
        k(f's_lshl_b32 s{sSo}, s{sH}, 3')
        k(f's_add_u32 s{sSo}, s{sSo}, s{sT}')
        k(f's_lshl_b32 s{sWt}, s{sSo}, 7')
        k(f's_add_u32 s{sWt}, s{sWt}, {WS_FLAG + FL_KVR}')
        k(f's_lshl_b32 s{sSo}, s{sSo}, 9')
        k(f's_add_u32 s{sSo}, s{sSo}, {WS_KVF}')
        for r in range(1, 8):
            for e in (0, 2): k(f'v_pk_add_f32 v[{PB+e}:{PB+e+1}], v[{PB+e}:{PB+e+1}], v[{PB+4*r+e}:{PB+4*r+e+1}]')
        k(f'v_lshrrev_b32 v{vH}, 1, v{vL16}')
        for e in range(2): k(f'v_cvt_pk_bf16_f32 v{PB + e}, v{PB + 2*e}, v{PB + 2*e + 1}')
        k(f'buffer_store_dwordx2 v[{PB}:{PB+1}], v{vH}, s[{SWS}:{SWS+3}], s{sSo} offen sc1')
        done(2)
        k('F_hook5:')
        flag(sWt)
        done(6)
        pl = (vPl, vH, SWS, f's{sWt}')
        k('F_hook6:')
        k(f's_lshl_b32 s{sWt}, s{sBH}, 10')
        k(f's_add_u32 s{sWt}, s{sWt}, {WS_FLAG + FL_KVR}')
        self.emit(self.lanes(vH, 8))
        k(self.poll_load(*pl))
        done(1)
        k('F_hook7:')
        k('s_waitcnt vmcnt(8)')
        self.emit(self.poll_check(*pl, 1))
        k(f's_lshl_b32 s{sSo}, s{sBH}, 12')
        k(f's_add_u32 s{sSo}, s{sSo}, {WS_KVF}')
        k(f'v_lshrrev_b32 v{vH}, 1, v{vL16}')
        for n in range(8): k(f'buffer_load_dwordx2 v[{PB + 2*n}:{PB + 2*n + 1}], v{vH}, s[{SWS}:{SWS+3}], s{sSo} offen offset:{512*n} sc1')
        done(2)
        k('F_hook8:')
        k(f's_lshl_b32 s{sSo}, s{sBR}, 2')
        k(f's_add_u32 s{sSo}, s{sSo}, s{sWV}')
        k(f's_lshl_b32 s{sSo}, s{sSo}, 4')
        k(f's_add_u32 s{sSo}, s{sSo}, s{sBH}')
        k(f's_lshl_b32 s{sWt}, s{sSo}, 7')
        k(f's_add_u32 s{sWt}, s{sWt}, {WS_FLAG + FL_O}')
        k(f's_lshl_b32 s{sSo}, s{sSo}, 12')
        k(f's_add_u32 s{sSo}, s{sSo}, {WS_OF}')
        k(f'v_and_b32 v{vH}, 0x3c, v{vL4}')
        k(f'v_add_u32 v{vH}, 192, v{vH}')
        NB = lambda i: (112, 120, 64, 72)[i]
        for i in range(4):
            for j in (1, 0):
                d = ('v', NB(i) + 4 * j)
                for sg in range(2): k(mfma(d, ('v', PB + 8 * j + 4 * sg), ('v', vB + 8 * i + 4 * sg), d if sg else '0'))
        k('s_nop 4')
        for i in range(4): k(f'ds_bpermute_b32 v{vT + 2*i}, v{vH}, v{NB(i) + 4}')
        k('s_waitcnt lgkmcnt(0)')
        for i in range(4): k(f'v_add_f32 v{vT + 2*i}, {f32(1e-6)}, v{vT + 2*i}')
        for i in range(4): k(f'v_rcp_f32 v{vT + 2*i}, v{vT + 2*i}')
        for i in range(4):
            b_ = NB(i)
            for e in range(0, 8, 2): k(f'v_pk_mul_f32 v[{b_+e}:{b_+e+1}], v[{b_+e}:{b_+e+1}], v[{vT + 2*i}:{vT + 2*i + 1}] op_sel_hi:[1,0]')
            for e in range(4): k(f'v_cvt_pk_bf16_f32 v{b_ + e}, v{b_ + 2*e}, v{b_ + 2*e + 1}')
            for e in (2, 3): k(f'v_cndmask_b32 v{b_ + e}, v{b_ + e}, 0, s[{sM3}:{sM3+1}]')
            k(f'buffer_store_dwordx4 v[{b_}:{b_+3}], v{vL16}, s[{SWS}:{SWS+3}], s{sSo} offen offset:{1024*i} sc1')
        k(f's_sub_u32 s{sHook}, s{sN}, {3 + int(self.opt.get("m2", 1))}')
        k(f's_mov_b32 s{sHst}, 9')
        k('s_branch F_hookret')
        pl = (vPl, vZ, SWS, f's{sWt}')
        k('F_hook9:')
        flag(sWt)
        k(f's_lshl_b32 s{sWt}, s{sPO}, 7')
        k(f's_add_u32 s{sWt}, s{sWt}, {WS_FLAG + FL_P}')
        k(self.poll_load(*pl))
        if not int(self.opt.get('ct', 0)):
            self.emit(self.code_pf(vH, vH + 1))
            k(f'v_xor_b32 v{vH}, 0x8000, v{vH}')
            k(f'global_load_dword v{vH+1}, v{vH}, s[30:31]')
        k(f's_mov_b32 s{sHook}, -1')
        k('s_branch F_hookret')

    def att_consts(self):
        k = self.k
        k(f'v_lshrrev_b32 v{vL4}, 2, v{vL16}')
        k(f'v_bfe_u32 v{vZ}, v{vL16}, 2, 7')
        k(f'v_mov_b32 v{vNinf}, 0xff800000')
        for r in range(4): k(f'v_mov_b32 v{vOne + r}, 0x3f803f80')
        k(f'v_bfe_u32 v{vLse}, v{vL16}, 4, 4')
        k(f'v_lshrrev_b32 v{vLse+1}, 8, v{vL16}')
        k(f'v_lshlrev_b32 v{vLse+1}, 2, v{vLse+1}')
        for r in range(4):
            k(f'v_cmp_gt_u32 s[{sMK + 2*r}:{sMK + 2*r + 1}], v{vLse+1}, v{vLse}')
            k(f'v_add_u32 v{vLse+1}, 1, v{vLse+1}')
        if int(self.opt.get('ct', 0)):
            k(f's_lshr_b32 s{sT}, s2, 3'); k(f's_lshl_b32 s{sT}, s{sT}, 2'); k(f's_add_u32 s{sT}, s{sT}, s{sWV}'); k(f's_lshl_b32 s{sT}, s{sT}, 8')
            k(f's_add_u32 s{sT}, s{sT}, F_loopend-F_pc')
            k(f'v_lshrrev_b32 v{vCp}, 9, v{vL16}'); k(f'v_lshlrev_b32 v{vCp}, 7, v{vCp}'); k(f'v_add_u32 v{vCp}, s{sT}, v{vCp}')
        if self.opt.get('wt'):
            t0, nl, t1, tile0 = [int(x) for x in self.opt['wt'].split('.')]
            k(f's_and_b32 s{sTp}, s{sRT}, 3'); k(f's_mul_i32 s{sTp}, s{sTp}, {nl * t1 * 128}'); k(f's_add_u32 s{sTp}, s{sTp}, s{sWp}'); k(f's_add_u32 s{sTp}, s{sTp}, {tile0 * 4096}')
            k(f'v_lshrrev_b32 v{vCp}, 4, v{vL16}'); k(f'v_min_u32 v{vCp}, {nl - 1}, v{vCp}'); k(f'v_lshlrev_b32 v{vCp}, 7, v{vCp}')
        k(f's_mov_b32 s{sTp}, {12 * 4096}')
        k(f's_mov_b32 s{sUs}, 32768')
        k(f's_mov_b32 s{sIt}, 0')
        k(f's_add_u32 s{sEx}, s{sROLE}, 1')
        k(f's_mul_i32 s{sEx2}, s{sWV}, s{sDiag}')
        k(f's_add_u32 s{sEx2}, s{sEx2}, s{sEx}')
        k(f's_add_u32 s{sEx2}, s{sEx2}, 1')
        h0 = int(self.opt.get('h0', 1))
        k(f's_mov_b32 s{sHook}, {1 + h0}')
        k(f's_mov_b32 s{sHst}, {h0}')
        if h0: self.emit(self.lanes(vH, 16))
        self.segcount()

    def attention(self):
        k = self.k
        k('F_att:')
        k('s_waitcnt lgkmcnt(0)')
        k(f'v_add_u32 v{vRd}, s{sRs}, v{vL16}')
        k('s_branch F_first')
        k('F_seg:')
        self.segcount()
        self.it_first()
        m2 = int(self.opt.get('m2', 1))
        k(f's_cmp_gt_u32 s{sCnt}, s{sEx2 if m2 else sEx}')
        k(f's_cbranch_scc0 {"F_loop1" if m2 else "F_loopend"}')
        if not m2:
            k('.p2align 6')
            for _ in range(int(self.opt.get('al', 0))): k('s_nop 0')
            k('F_loop:')
        if m2:
            self.it_mid2()
            k('s_cbranch_scc1 F_loop')
            k('F_loop1:')
            k(f's_cmp_gt_u32 s{sCnt}, s{sEx}')
            k('s_cbranch_scc0 F_loopend')
            k('F_loop2:')
            self.it_mid()
            k('s_cbranch_scc1 F_loop2')
        else:
            self.it_mid()
            k('s_cbranch_scc1 F_loop')
        k('F_loopx:')
        self.fold()
        k('F_loopend:')
        k(f's_cmp_eq_u32 s{sDiag}, 1')
        k('s_cbranch_scc1 F_last')
        p0 = self.it_tail(0); p1 = self.it_tail(1)
        self.pw = (nvm(k.lines[p0:]), nvm(k.lines[p1:]))
        k('F_done:')
        for u in range(2):
            k(f'v_max3_f32 v{vT + u}, abs(v{O(0, u)}), abs(v{O(0, u) + 1}), abs(v{O(0, u) + 2})')
            for e in (3, 5, 7): k(f'v_max3_f32 v{vT + u}, v{vT + u}, abs(v{O(0, u) + e}), abs(v{O(0, u) + e + 1})')
        k(f'v_min_f32 v{vT}, v{vT}, v{vT + 1}')
        k(f'v_max_f32 v{vT + 1}, v{vLs}, v{vLs + 4}')
        k(f'v_cmp_gt_f32 vcc, {f32(2.0 ** -125)}, v{vT}')
        k(f'v_cmp_ngt_f32 s[{sM28}:{sM28+1}], s{sBig}, v{vT + 1}')
        k('s_nop 0')
        k(f's_or_b64 vcc, vcc, s[{sM28}:{sM28+1}]')
        k('s_cbranch_scc1 F_slow')
        k('F_checked:')
        if self.ts:
            k(f's_cmp_eq_u32 s{sNext}, 0'); k('s_cbranch_scc1 F_ts2'); self.stamp(5); k('F_ts2:'); self.stamp(7)
        k(f's_cmp_eq_u32 s{sRem}, 0')
        k('s_cbranch_scc1 F_epi')
        self.it_idle('F_epi')
        for u in range(2): k(f'v_rcp_f32 v{vT + 2*u}, v{vLs + 4*u}')
        for u in range(2): k(f'v_log_f32 v{vT + 4 + 2*u}, v{vLs + 4*u}')
        k(f's_cmp_eq_u32 s{sMode}, 2')
        k('s_cbranch_scc1 F_merge')
        for u in range(2): k(f'v_mov_b32 v{vT + 2*u + 1}, v{vT + 2*u}')
        for u in range(2): k(f'v_sub_f32 v{vT + 4 + 2*u}, v{vT + 4 + 2*u}, v{vNM + 4*u}')
        self.ctx_base()
        k(f's_lshl_b32 s{sT}, s{sPO}, 10')
        k(f's_add_u32 s{sT}, s{sT}, {WS_ML}')
        k(f's_lshl_b32 s{sT2}, s{sPO}, 14')
        k(f's_add_u32 s{sT2}, s{sT2}, {WS_PART}')
        k(f's_cmp_eq_u32 s{sMode}, 1')
        k(f's_cselect_b32 s{sT}, s{sT}, s{sOOB}')
        k(f's_cselect_b32 s{sSo}, s{sT2}, s{sSo}')
        k(f's_mov_b32 s{sSt}, 131072')
        k(f's_cselect_b32 s{sSt}, 8192, s{sSt}')
        k(f's_add_u32 s{sSt2}, s{sSt}, 4096')
        for u in range(2): k(f'buffer_store_dword v{vT + 4 + 2*u}, v{vL4}, s[{SWS}:{SWS+3}], s{sT} offen offset:{256*u} sc1')
        self.out_store(lambda u, ds: (ds * 1024 if u == 0 else f's{sSt2 if ds else sSt}'), False)
        k('F_post:')
        k(f's_cmp_eq_u32 s{sRem}, 0')
        k('s_cbranch_scc1 F_post2')
        self.it_idle('F_post1')
        k('s_branch F_post')
        k('F_post2:')
        k(f's_cmp_eq_u32 s{sNext}, 0')
        k('s_cbranch_scc1 F_p3')
        for r in range(64):
            k(f'v_accvgpr_write_b32 a{aQ + r}, v{vB + r}')
            if int(self.opt.get('bv', 1)) and r % 4 == 3:
                if r % 16 == 3: k(f's_add_u32 s{sSo}, s{sWp}, {(28 + r // 16) * 4096}')
                k(f'buffer_load_dwordx4 v[{vB + r - 3}:{vB + r}], v{vL16}, s[{SWS}:{SWS+3}], s{sSo} offen offset:{1024 * (r // 4 % 4)} sc1')
        self.stamp(6)
        k(f's_mov_b32 s{sNext}, 0')
        k(f's_mov_b32 s{sMode}, 0')
        k(f's_mov_b32 s{sT0}, 0')
        k(f's_mov_b32 s{sQT}, s{sP}')
        k(f's_lshl_b32 s{sN}, s{sP}, 2')
        k(f's_add_u32 s{sN}, s{sN}, 4')
        k(f's_add_u32 s{sFl}, s{sFl}, {FL_P - FL_Q}')
        k(f's_add_u32 s{sT}, s{sIt}, 2')
        k(f's_max_u32 s{sHook}, s{sHook}, s{sT}')
        k('s_branch F_seg')
        k('F_last:')
        self.it_last()
        k('s_branch F_done')
        self.it_only()
        self.hooks()
        self.slow()
        self.flush_late()
        k('F_merge:')
        k(f's_waitcnt vmcnt({self.pw[0]})')
        for u in range(2): k(f'v_sub_f32 v{vT + 4 + 2*u}, v{vT + 4 + 2*u}, v{vNM + 4*u}')
        for u in range(2): k(f'v_sub_f32 v{vT + 4 + 2*u}, v{vT + 4 + 2*u}, v{vLse + u}')
        for u in range(2): k(f'v_exp_f32 v{vT + 1 + 2*u}, -v{vT + 4 + 2*u}')
        for u in range(2): k(f'v_exp_f32 v{vT + 4 + 2*u}, v{vT + 4 + 2*u}')
        for u in range(2): k(f'v_add_f32 v{vT + 1 + 2*u}, 1.0, v{vT + 1 + 2*u}')
        for u in range(2): k(f'v_add_f32 v{vT + 4 + 2*u}, 1.0, v{vT + 4 + 2*u}')
        for u in range(2): k(f'v_rcp_f32 v{vT + 1 + 2*u}, v{vT + 1 + 2*u}')
        for u in range(2): k(f'v_rcp_f32 v{vT + 4 + 2*u}, v{vT + 4 + 2*u}')
        for u in range(2): k(f'v_mul_f32 v{vT + 2*u}, v{vT + 2*u}, v{vT + 1 + 2*u}')
        for u in range(2): k(f'v_mov_b32 v{vT + 5 + 2*u}, v{vT + 4 + 2*u}')
        for u in range(2): k(f'v_mov_b32 v{vT + 1 + 2*u}, v{vT + 2*u}')
        self.ctx_base()
        mf = int(self.opt.get('mfill', 0)); fill = []
        for n in range(16):
            f = [f's_add_u32 s{sT}, s{sWp}, {(28 + n // 4) * 4096}'] * (n % 4 == 0) + \
                [f'buffer_load_dwordx4 v[{vB + 4*n}:{vB + 4*n + 3}], v{vL16}, s[{SWS}:{SWS+3}], s{sT} offen offset:{1024 * (n % 4)} sc1']
            fill.append(f * mf + [f's_waitcnt vmcnt({self.pw[1] + 8 + 8 * mf})'] * (n == 7))
        self.out_store(lambda u, ds: u * 131072 + ds * 1024, True, fill)
```

```python
from fz_regs import *
from fz2 import vZ, v1, vL4

SO = SX
sXq, sOo, sCf = 58, 61, 62
sM = (63, 65, 74, 75, 69)
vL, vXo, vWr, vOut, vT = 1, 8, 32, 42, 24
AR = lambda s: 16 * ((s + 12) % 16)

class P3:
    def wd3(self, s):
        return [f's_add_u32 m0, s{sM[((s + 6) % 10) >> 1]}, {4096 * (s & 1)}', f's_add_u32 s{sT2}, s{sWp if s < 16 else sWq}, {4096 * s}'] + \
               [f'buffer_load_dwordx4 v{vL16}, s[{SWS}:{SWS+3}], s{sT2} offen offset:{1024*n} sc1 lds' for n in range(4)]

    def wr3(self, s):
        return [f'ds_read_b128 a[{AR(s) + 4*j}:{AR(s) + 4*j + 3}], v{vWr + (((s + 6) % 10) >> 1)} offset:{4096 * (s & 1) + 1024*j}' for j in range(4)]

    def wg3(self, s):
        return [f's_add_u32 s{sT2}, s{sWp if s < 16 else sWq}, {4096 * s}'] + \
               [f'buffer_load_dwordx4 a[{AR(s) + 4*j}:{AR(s) + 4*j + 3}], v{vL16}, s[{SWS}:{SWS+3}], s{sT2} offen offset:{1024*j} sc1' for j in range(4)]

    def ctxflag(self):
        return f'buffer_store_dword v{v1}, v{vZ}, s[{SWS}:{SWS+3}], s{sCf} offen sc1'

    def p3_setup(self):
        k = self.k
        k(f's_load_dwordx2 s[{SW}:{SW+1}], s[0:1], 80')
        k(f's_lshl_b32 s{sCf}, s{sQT}, 1')
        k(f's_lshr_b32 s{sT}, s{sWV}, 1')
        k(f's_add_u32 s{sCf}, s{sCf}, s{sT}')
        k(f's_lshl_b32 s{sCf}, s{sCf}, 4')
        k(f's_add_u32 s{sCf}, s{sCf}, s{sH}')
        k(f's_lshl_b32 s{sCf}, s{sCf}, 1')
        k(f's_and_b32 s{sT}, s{sWV}, 1')
        k(f's_add_u32 s{sCf}, s{sCf}, s{sT}')
        k(f's_lshl_b32 s{sCf}, s{sCf}, 7')
        k(f's_add_u32 s{sCf}, s{sCf}, {WS_FLAG + FL_CTX}')
        for n in range(4):
            k(f's_add_u32 s{sM[n]}, s{sW0}, {32768 * n}')
            k(f's_and_b32 s{sM[n]}, s{sM[n]}, 0x1ffff')
            k(f's_add_u32 s{sM[n]}, s{sM[n]}, s{sW8}')
        k(f's_add_u32 s{sM[4]}, s{sW8}, 131072')
        k(f's_lshl_b32 s{sWq}, s{sRo}, 1')
        k(f's_sub_u32 s{sWq}, s{sWp}, s{sWq}')
        k(f'v_lshrrev_b32 v{vL}, 4, v{vL16}')
        for n in range(5): k(f'v_add_u32 v{vWr + n}, s{sM[n]}, v{vL16}')

    def out_a(self):
        k = self.k
        pos = {}
        since = lambda key: nvm(k.lines[pos[key]:])
        def wd(s):
            for x in self.wd3(s): k(x)
            pos['w', s] = len(k.lines)
        nl = 16 + int(self.opt.get('nlds', 10))
        k(f's_lshl_b32 s{sXq}, s{sRT}, 19')
        k(f's_lshl_b32 s{sT}, s{sWV}, 15')
        k(f's_add_u32 s{sXq}, s{sXq}, s{sT}')
        k(f's_add_u32 s{sXq}, s{sXq}, {WS_CTX}')
        k(f's_lshr_b32 s{sOo}, s{sRo}, 2')
        k(f's_add_u32 s{sXq}, s{sXq}, s{sOo}')
        k(f's_lshl_b32 s{sOo}, s{sOo}, 1')
        k(f's_sub_u32 s{sOo}, 1024, s{sOo}')
        for i in range(4): k(f'v_add_u32 v{vXo + i}, {131072 * i}, v{vL16}')
        k(f's_lshl_b32 s{sSo}, s{sRT}, 12')
        k(f's_lshl_b32 s{sT}, s{sWV}, 10')
        k(f's_add_u32 s{sSo}, s{sSo}, s{sT}')
        k(f's_add_u32 s{sSo}, s{sSo}, {WS_FLAG + FL_CTX}')
        self.emit(self.lanes(vT + 1, 8))
        pl = (vT, vT + 1, SWS, f's{sSo}')
        RR = LA = 3; nv = 5; AC, XR = 128, 192
        WR = lambda s: ('a', AR(s)) if s < 27 else ('v', 240 if s == 27 else 64 + 16 * (s - 28))
        def wv(s):
            k(f's_add_u32 s{sT2}, s{sWq}, {4096 * s}')
            for j in range(4): k(f'buffer_load_dwordx4 {R("v", WR(s)[1] + 4*j, 4)}, v{vL16}, s[{SWS}:{SWS+3}], s{sT2} offen offset:{1024*j} sc1')
        order = [16, 17, 18, 19, 22, 23, 24, 25]; nf, nb = [int(x) for x in self.opt.get('p3o', '2.4').split('.')]
        for n, s in enumerate(order + [20, 21]):
            if n == nf:
                k(f's_waitcnt vmcnt({9 + 4 * nf})')
                k(self.ctxflag())
                self.stamp(9)
                self.tick(3)
            if n == nb:
                self.tick(4)
                k('s_barrier')
                self.tick(5)
                if not int(self.opt.get('mfill', 0)):
                    k(f's_cmp_eq_u32 s{sROLE}, 0')
                    k('s_cbranch_scc1 F_p3w')
                    for t in range(28, 32): wv(t)
                    k('F_p3w:')
                self.tick(6)
            if n == 9:
                self.tick(7)
                k(self.poll_load(*pl)); pos['poll'] = len(k.lines)
            wd(s)
        wv(27)
        self.tick(8)
        k(f's_waitcnt vmcnt({since("poll")})')
        self.stamp(14)
        self.tick(9)
        self.emit(self.poll_check(*pl, 1))
        self.stamp(10)
        self.tick(10)
        xl = lambda s, i: f'buffer_load_dwordx4 v[{XR + 16*(s % RR) + 4*i}:{XR + 3 + 16*(s % RR) + 4*i}], v{vXo + i}, s[{SWS}:{SWS+3}], s{sXq} offen sc1'
        xadv = lambda s: f's_add_u32 s{sXq}, s{sXq}, ' + ('0' if self.opt.get('xfix') else '1024' if s != 15 else f's{sOo}')
        for s in range(LA):
            for i in range(4): k(xl(s, i))
            k(xadv(s)); pos['x', s] = len(k.lines)
        k(f'v_add_u32 v{vT}, s{sW8}, v{vL16}')
        k(f'v_and_b32 v{vT+1}, 15, v{vL}')
        k(f'v_lshrrev_b32 v{vT+2}, 4, v{vL}')
        k(f'v_lshlrev_b32 v{vT+3}, 9, v{vT+2}')
        k(f'v_lshl_add_u32 v{vT+3}, v{vT+1}, 4, v{vT+3}')
        k(f's_and_b32 s{sT}, s{sWV}, 1')
        k(f's_lshl_b32 s{sT}, s{sT}, 12')
        k(f's_lshr_b32 s{sT2}, s{sWV}, 1')
        k(f's_lshl_b32 s{sT2}, s{sT2}, 15')
        k(f's_add_u32 s{sT}, s{sT}, s{sT2}')
        k(f'v_add_u32 v{vT+3}, s{sT}, v{vT+3}')
        VMCOST[0] = 2
        for s in range(32):
            wn = s + 15 if 1 <= s < 17 - nv else None
            n = since(('x', s))
            if nl <= s < 32 - nv: n = min(n, since(('w', s)))
            k(f's_waitcnt vmcnt({n}) lgkmcnt(0)')
            if s % 4 == 0: self.tick(11 + s // 4)
            mf = []
            for i in range(4):
                for j in (range(4) if i % 2 == 0 else range(3, -1, -1)):
                    d = ('v', AC + 16 * i + 4 * j)
                    mf.append(mfma(d, (WR(s)[0], WR(s)[1] + 4 * j), ('v', XR + 16 * (s % RR) + 4 * i), d if s else '0'))
            rd = []
            if wn is not None: rd = [(t, 4 * g + 1) for g, t in enumerate(self.wr3(wn))] if wn < nl else self.spread(self.wg3(wn), 2, 4)
            ld = [(xl(s + LA, i), 4 * i + (3 if LA == RR else 0)) for i in range(4)] + [(xadv(s + LA), 15)] if s + LA <= 31 else []
            if s == 31: rd = [(f'ds_write_b128 v{vT}, v[{AC + 4*n}:{AC + 3 + 4*n}] offset:{1024*(n & 7) + 32768*(n >> 3)}', 11 + (m >> 1)) for m, n in enumerate([0, 1, 2, 3, 7, 6, 5, 4, 8, 9, 10, 11, 15, 14, 13, 12])]; rd.insert(12, ('s_nop 0', 99))
            sched(k, mf, [ld, rd])
            if wn is not None and wn >= nl: pos['w', wn] = len(k.lines)
            if ld: pos['x', s + LA] = max(i for i, l in enumerate(k.lines) if l.strip() == xl(s + LA, 3)) + 1
        VMCOST[0] = 1
        self.stamp(11)
        k(f'v_mul_u32_u24 v{vOut}, 1792, v{vT+1}')
        k(f'v_lshl_add_u32 v{vOut}, v{vT+2}, 4, v{vOut}')
        k(f's_lshl_b32 s{sT}, s{sRT}, 2')
        k(f's_add_u32 s{sT}, s{sT}, s{sWV}')
        k(f's_mul_i32 s{sOo}, s{sT}, {16 * 1792}')
        k(f's_lshl_b32 s{sT}, s{sCc}, 7')
        k(f's_add_u32 s{sOo}, s{sOo}, s{sT}')
        k('s_waitcnt lgkmcnt(0)')
        k('s_barrier')
        for w in range(4):
            for hf in range(2):
                for c in range(2):
                    d = 128 + 16 * w + 8 * hf + 4 * c
                    k(f'ds_read_b128 v[{d}:{d+3}], v{vT + 3} offset:{w*8192 + hf*2048 + c*256}')
        for w in range(1, 4):
            k(f's_waitcnt lgkmcnt({12 - 4 * w})')
            for e in range(16): k(f'v_add_f32 v{128 + e}, v{128 + e}, v{128 + 16*w + e}')
        for e in range(8): k(f'v_cvt_pk_bf16_f32 v{128 + e}, v{128 + 2*e}, v{129 + 2*e}')
        for hf in range(2): k(f'buffer_store_dwordx4 v[{128 + 4*hf}:{131 + 4*hf}], v{vOut}, s[{SO}:{SO+3}], s{sOo} offen offset:{64*hf} {self.opt.get("of", "")}')

    def out_b(self):
        k = self.k
        k('F_p3b:')
        pl = (vT, vT + 1, SWS, f's{sSo}')
        k(f'v_and_b32 v{vT+3}, 15, v{vL}')
        k(f'v_lshrrev_b32 v{vT+2}, 4, v{vL}')
        k(f'v_mul_u32_u24 v{vOut}, 1792, v{vT+3}')
        k(f'v_and_b32 v{vT+6}, 1, v{vT+2}')
        k(f'v_lshl_add_u32 v{vOut}, v{vT+6}, 5, v{vOut}')
        k(f'v_lshrrev_b32 v{vT+6}, 1, v{vT+2}')
        k(f'v_lshl_add_u32 v{vOut}, v{vT+6}, 4, v{vOut}')
        k(f's_lshl_b32 s{sXq}, s{sRT}, 16')
        k(f's_lshl_b32 s{sT}, s{sWV}, 14')
        k(f's_add_u32 s{sXq}, s{sXq}, s{sT}')
        k(f's_add_u32 s{sXq}, s{sXq}, {WS_OF}')
        k('s_waitcnt vmcnt(8)')
        k(self.ctxflag())
        self.stamp(9)
        k('s_barrier')
        self.emit(self.poll_check(*pl, 1))
        for hh in range(4):
            k(f's_add_u32 m0, s{sW8}, {32768*(hh >> 1) + 4096*(hh & 1)}')
            k(f's_add_u32 s{sT2}, s{sXq}, {4096 * hh}')
            for n in range(4): k(f'buffer_load_dwordx4 v{vL16}, s[{SWS}:{SWS+3}], s{sT2} offen offset:{1024*n} sc1 lds')
        k('s_waitcnt vmcnt(0)')
        k('s_barrier')
        self.stamp(10)
        oread = lambda s: [f'ds_read_b128 v[{64 + 16*(s & 1) + 4*i}:{67 + 16*(s & 1) + 4*i}], v{vL16} offset:{8192*(s >> 2) + 32768*((s >> 1) & 1) + 4096*(s & 1) + 1024*i}' for i in range(4)]
        self.emit(oread(0))
        k(f's_mul_i32 s{sOo}, s{sRT}, {64 * 1792}')
        k(f's_lshl_b32 s{sT}, s{sWV}, 8')
        k(f's_add_u32 s{sOo}, s{sOo}, s{sT}')
        k(f's_add_u32 s{sOo}, s{sOo}, 896')
        k(f's_cmp_eq_u32 s{sWV}, 3')
        k(f's_cselect_b32 s{sT}, s{sOOB}, s{sOo}')
        pos = {}
        def outp(i):
            it = []
            for jp in range(4):
                b = 128 + 32 * i + 8 * jp
                it += [f'v_cvt_pk_bf16_f32 v{b + e}, v{b + 2*e}, v{b + 2*e + 1}' for e in range(4)]
            it.append('s_nop 0')
            for jp in range(4):
                b = 128 + 32 * i + 8 * jp
                it += [f'v_permlane16_swap_b32 v{b + e}, v{b + 2 + e}' for e in range(2)]
            for jp in range(4):
                b = 128 + 32 * i + 8 * jp
                it.append(f'buffer_store_dwordx4 v[{b}:{b+3}], v{vOut}, s[{SO}:{SO+3}], s{sOo if jp < 2 else sT} offen offset:{64*jp} {self.opt.get("of", "")}')
            return it + [f's_add_u32 s{sOo}, s{sOo}, {16 * 1792}', f's_add_u32 s{sT}, s{sT}, {16 * 1792}']
        when = {s: [] for s in range(16)}
        for t in range(16, 32): when[1 + (t - 16) * 12 // 16].append(t)
        VMCOST[0] = 2
        for s in range(16):
            k(f's_waitcnt vmcnt({nvm(k.lines[pos[2 * s + 1]:])}) lgkmcnt(0)' if s >= 8 else 's_waitcnt lgkmcnt(0)')
            mf = []
            for i in range(4):
                for j in (range(8) if i % 2 == 0 else range(7, -1, -1)):
                    d = ('v', 128 + 32 * i + 4 * j)
                    mf.append(mfma(d, ('a', AR(2 * s + (j >> 2)) + 4 * (j & 3)), ('v', 64 + 16 * (s & 1) + 4 * i), d if s else '0'))
            rd = [(t, 2 * n) for n, t in enumerate(oread(s + 1))] if s < 15 else []
            ld = self.spread([x for t in when[s] for x in self.wg3(t)], 1, 8 // len(when[s])) if when[s] else []
            if s == 15: ld = [(t, 8 * i + 15) for i in range(4) for t in outp(i)]
            sched(k, mf, [rd, ld])
            for t in when[s]:
                assert (t - 16) // 2 < s < t // 2 - 1
                pos[t] = len(k.lines)
        VMCOST[0] = 1
        self.stamp(11)

    def phase3(self):
        k = self.k
        k('F_p3:')
        self.stamp(8)
        self.tick(0)
        k('s_waitcnt lgkmcnt(0)')
        k(f's_lshl_b32 s{sSo}, s{sRT}, 11')
        k(f's_add_u32 s{sSo}, s{sSo}, {WS_FLAG + FL_O}')
        k(f's_cmp_eq_u32 s{sCc}, 7')
        k(f's_cselect_b32 s{sSo}, s{sSo}, s{sOOB}')
        self.emit(self.lanes(vT + 1, 16))
        k(self.poll_load(vT, vT + 1, SWS, f's{sSo}'))
        self.emit(self.wg3(14) + self.wg3(15))
        self.p3_setup()
        k(f's_lshl_b32 s{sT}, s{sROLE}, 1')
        k(f's_add_u32 s{sT}, s{sT}, s{sWV}')
        k(f's_cmp_ge_u32 s{sT}, 2')
        k('s_cbranch_scc1 F_p3e')
        k('s_waitcnt vmcnt(9)')
        k('F_p3e:')
        k('s_waitcnt vmcnt(25)')
        self.tick(1)
        for s in range(4, 10): self.emit(self.wr3(s))
        spm = int(self.opt.get('spm', 4))
        if spm == 1:
            k(f's_cmp_eq_u32 s{sROLE}, 0'); k('s_cbranch_scc1 F_p3s')
            self.emit(self.wr3(12) + self.wr3(13)); k('s_branch F_p3t'); k('F_p3s:')
        self.emit(self.wr3(12) + self.wr3(13) if spm >= 3 else self.wg3(12) + self.wg3(13))
        k('F_p3t:')
        k(f's_cmp_lt_u32 s{sWV}, 2')
        k('s_cbranch_scc1 F_p3v')
        self.emit(self.wr3(10) + self.wr3(11))
        k('s_branch F_p3k')
        k('F_p3v:')
        self.emit(self.wg3(10) + self.wg3(11))
        k('F_p3k:')
        k('s_waitcnt lgkmcnt(0)')
        self.tick(2)
        srd(k, SO, SW, 2048 * 1792)
        k(f's_cmp_eq_u32 s{sCc}, 7')
        k('s_cbranch_scc1 F_p3b')
        self.out_a()
        k('s_branch F_fin')
        self.flush_late()
        self.out_b()
        k('F_fin:')
        self.stamp(12)
        if self.ts:
            stamp_out(k, True, 13, SWS, sWV, sT, vT, WS_TS)
            if self.opt.get('itprof'):
                k(f's_add_u32 s{sT}, s{sT}, 262144'); k(f'buffer_store_dword v14, v{vT}, s[{SWS}:{SWS+3}], s{sT} offen')
            if self.opt.get('dbg'):
                k(f's_lshl_b32 s{sT}, s2, 2'); k(f's_add_u32 s{sT}, s{sT}, s{sWV}')
                k(f's_cmp_lg_u32 s{sT}, {int(self.opt["dbg"]) * 4 + 3}'); k('s_cbranch_scc1 F_end')
                srd(k, SP, SDBG, 64)
                k('v_subrev_u32 v0, s84, v0'); k(f'v_add_u32 v{vT}, 4, v{vT}')
                k(f'buffer_store_dword v0, v{vT}, s[{SP}:{SP+3}], 0 offen')
        k('F_end:')
        k('s_endpgm')
        self.flush_late()
```

```python
from asmlib import *
from layout import *
import struct

def f32(x): return '0x%08x' % struct.unpack('<I', struct.pack('<f', x))[0]
LOG2E = 1.4426950408889634
OOB = 0x40000000

sH, sP, sROLE, sWV = 26, 27, 28, 29
SX, SW, SWS, SX2, SW2, SP = 32, 36, 40, 44, 48, 52
sXo, sWo, sX2o, sW2o = 56, 57, 58, 59
sA, sB, sC, sWd, sCnt, sSt, sT, sT2, sScale, sXd = 60, 61, 62, 63, 64, 65, 66, 67, 68, 69
sM3, sM28, sSt2, sPF = 70, 72, 74, 75
sF, sFc, sFj, sFc2, sOOB, sRs, sDs, sDiag, sMode, sHook = 4, 5, 6, 7, 8, 9, 10, 11, 12, 13
sRem, sNext, sQT, sHB, sW8, sPO = 16, 17, 18, 19, 20, 21
sFl, sNW, sT0, sSo = 76, 77, 78, 79
sMK = 88
sBig, sN, sHst, sSpin = 96, 97, 98, 99
sStE, sStL = 3, 64
sRo, sWq = 22, 23
sTp, sEx2 = 52, 53
sBH, sBR = 14, 15
sIt, sUs, sW0, sEx = 48, 49, 50, 51
sRT, sCc, sWt, sWp = 46, 47, 44, 45
SDBG = 100

FL_KV, FL_Q, FL_P, FL_B1, FL_CTX, FL_KVR, FL_O = [128 * n for n in (0, 1024, 1536, 2048, 2560, 3584, 4096)]

vL16 = 15

ROT = lambda f: int(f.opt.get('rot', 0))

def nvm(lines):
    return sum(1 for l in lines if l.split()[0].startswith(('buffer_', 'global_')))

class Base:
    def __init__(self, ts, opt):
        self.k = K(); self.ts = ts; self.opt = opt or {}; self.late = []; self.uid = 0

    def stamp(self, idx):
        stamp(self.k, self.ts, idx)
        h = self.opt.get('hold')
        if h:
            at, us = [int(x) for x in h.split('.')]
            clk = 's_memtime' if self.opt.get('holdc') else 's_memrealtime'
            if idx == 0: self.k(f'{clk} s[84:85]')
            if idx == at:
                self.uid += 1; L = f'F_hold{self.uid}'
                for t in (f'{L}:', f'{clk} s[80:81]', 's_waitcnt lgkmcnt(0)', 's_sub_u32 s80, s80, s84', f's_cmp_lt_u32 s80, {us * 100}', f's_cbranch_scc1 {L}'): self.k(t)

    def tick(self, n):
        if self.opt.get('tick'): self.emit(['s_memtime s[82:83]', 's_waitcnt lgkmcnt(0)', f'v_writelane_b32 v0, s82, {32 + n}'])

    def poll_load(self, vdst, vaddr, srd_, so):
        if vaddr is None: return f'buffer_load_dword v{vdst}, off, s[{srd_}:{srd_+3}], {so} sc1'
        return f'buffer_load_dword v{vdst}, v{vaddr}, s[{srd_}:{srd_+3}], {so} offen sc1'

    def poll_check(self, vdst, vaddr, srd_, so, val):
        self.uid += 1; L = f'F_spin{self.uid}'
        cmp_ = [f'v_cmp_gt_u32 vcc, {val}, v{vdst}', 's_nop 0', 's_cmp_lg_u64 vcc, 0']
        self.late += [f'{L}:', f's_mov_b32 s{sSpin}, 0x200000', f'{L}a:', f's_sleep {self.opt.get("slp", 4)}', self.poll_load(vdst, vaddr, srd_, so),
                      's_waitcnt vmcnt(0)', f's_sub_u32 s{sSpin}, s{sSpin}, 1', f's_cbranch_scc1 {L}r'] + cmp_ + \
                     [f's_cbranch_scc1 {L}a', f's_branch {L}r']
        return cmp_ + [f's_cbranch_scc1 {L}', f'{L}r:']

    def lanes(self, v, n):
        return [f'v_lshlrev_b32 v{v}, 3, v{vL16}'] + ([f'v_and_b32 v{v}, {128 * n - 1}, v{v}'] if n < 64 else [])

    def code_pf(self, va, vd):
        return [f's_lshr_b32 s{sT}, s2, 3', f's_lshl_b32 s{sT}, s{sT}, 2', f's_add_u32 s{sT}, s{sT}, s{sWV}', f's_lshl_b32 s{sT}, s{sT}, 10',
                f'v_and_b32 v{va}, 0x380, v{vL16}', f'v_add_u32 v{va}, s{sT}, v{va}', f'global_load_dword v{vd}, v{va}, s[30:31]']

    def gload(self, cls, base, so, n=16):
        k = self.k
        for i in range(n):
            if i % 4 == 0: k(f's_add_u32 s{sT2}, s{so}, {1024 * i}')
            k(f'buffer_load_dwordx4 {R(cls, base + 4*i, 4)}, v{vL16}, s[{SWS}:{SWS+3}], s{sT2} offen offset:{1024 * (i % 4)} sc1')

    def visit(self, ev, ret):
        if not int(self.opt.get('vis', 1)): return
        k = self.k
        k('s_mov_b64 exec, 0')
        for w in range(3):
            k(f's_cmp_eq_u32 s{sWV}, {w}'); k(f's_cbranch_scc1 F_v{ev}{w}')
        k(f's_branch F_v{ev}3')
        k(f'F_vr{ret}:')
        k('s_mov_b64 exec, -1')

    def emit(self, ts):
        for t in ts:
            t = t[0] if isinstance(t, tuple) else t
            self.k(t)
            if ' m0,' in t: self.k('s_nop 0')

    def flush_late(self):
        for t in self.late: self.k(t)
        self.late = []
```

```python
from fz_regs import *

BIAS = 90.0
vRd, vL4, vZ, vNinf = 1, 2, 3, 4
v1 = vNinf
vPl, vH = 5, 6
vDump = 14
vCp = 14
vOne, vLse = 8, 12
vS, vP, vNM, vLs, vT = 16, 32, 40, 48, 56
vB, vO = 64, 128
aQ, aK, aV = 0, 64, 128
S = lambda kt, u: vS + 8 * u + 4 * kt
O = lambda dt, u: vO + 64 * u + 4 * dt

class P2:
    @property
    def bias(self): return float(self.opt.get('bias', BIAS))

    def att_setup(self):
        sp = [int(c) for c in self.opt.get('sp', '00000000')]; tab = sum(v << (2 * p) for p, v in enumerate(sp))
        L = [f's_lshl_b32 s{sHB}, s{sH}, 21', f's_lshl_b32 s{sW8}, s{sWV}, 13', f's_mov_b32 s{sOOB}, {OOB}', f's_mov_b32 s{sBig}, {f32(2.0 ** 100)}',
             f's_sub_u32 s{sQT}, 15, s{sP}', f's_lshl_b32 s{sT}, s{sQT}, 2', f's_lshl_b32 s{sT2}, s{sP}, 1', f's_lshr_b32 s{sT2}, {tab}, s{sT2}', f's_and_b32 s{sT2}, s{sT2}, 3', f's_add_u32 s{sT2}, s{sT2}, 32',
             f's_lshl_b32 s{sPO}, s{sH}, 3', f's_add_u32 s{sPO}, s{sPO}, s{sP}', f's_lshl_b32 s{sPO}, s{sPO}, 2', f's_add_u32 s{sPO}, s{sPO}, s{sWV}',
             f's_lshl_b32 s{sFl}, s{sPO}, 7']
        if self.role == 'A':
            L += [f's_mov_b32 s{sN}, s{sT2}', f's_mov_b32 s{sT0}, 0', f's_mov_b32 s{sDiag}, 0', f's_mov_b32 s{sMode}, 2', f's_mov_b32 s{sNext}, 0',
                  f's_mov_b32 s{sFj}, s{sOOB}', f's_mov_b32 s{sFc2}, 64', f's_lshl_b32 s{sFl}, s{sBH}, 3', f's_add_u32 s{sFl}, s{sFl}, s{sBR}', f's_lshl_b32 s{sFl}, s{sFl}, 2',
                  f's_add_u32 s{sFl}, s{sFl}, s{sWV}', f's_lshl_b32 s{sFl}, s{sFl}, 7', f's_add_u32 s{sFl}, s{sFl}, {WS_FLAG + FL_B1}']
        else:
            L += [f's_add_u32 s{sN}, s{sT}, 4', f's_sub_u32 s{sN}, s{sN}, s{sT2}', f's_mov_b32 s{sT0}, s{sT2}', f's_mov_b32 s{sDiag}, 1',
                  f's_mov_b32 s{sMode}, 1', f's_mov_b32 s{sNext}, 1', f's_lshl_b32 s{sFc2}, s{sP}, 2', f's_add_u32 s{sFc2}, s{sFc2}, 4',
                  f's_add_u32 s{sFj}, s{sHB}, s{sW8}', f's_add_u32 s{sFj}, s{sFj}, 16384', f's_lshr_b32 s{sT}, s{sWV}, 1', f's_lshl_b32 s{sT}, s{sT}, 15',
                  f's_sub_u32 s{sFj}, s{sFj}, s{sT}', f's_add_u32 s{sFl}, s{sFl}, {WS_FLAG + FL_Q}']
        L += [f's_lshr_b32 s{sT}, s{sWV}, 1', f's_sub_u32 s{sFc}, s{sN}, s{sT}', f's_lshl_b32 s{sF}, s{sT0}, 15', f's_add_u32 s{sF}, s{sF}, s{sHB}']
        if int(self.opt.get('omap', 0)):
            L += [f's_mov_b32 s{sCc}, s{sP}', f's_lshl_b32 s{sRT}, s{sROLE}, 4', f's_add_u32 s{sRT}, s{sRT}, s{sH}']
        else:
            L += [f's_lshl_b32 s{sT}, s{sROLE}, 3', f's_add_u32 s{sT}, s{sT}, s{sP}', f's_xor_b32 s{sT}, s{sT}, {self.opt.get("bx", 7)}', f's_lshl_b32 s{sT}, s{sT}, 1', f's_lshr_b32 s{sRT}, s2, 7',
              f's_add_u32 s{sT}, s{sT}, s{sRT}', f's_lshr_b32 s{sCc}, s{sT}, 2', f's_and_b32 s{sT}, s{sT}, 3', f's_and_b32 s{sRT}, s2, 7',
              f's_lshl_b32 s{sRT}, s{sRT}, 2', f's_add_u32 s{sRT}, s{sRT}, s{sT}']
        L += [f's_lshl_b32 s{sT}, s{sCc}, 2', f's_add_u32 s{sT}, s{sT}, s{sWV}',
              f's_lshl_b32 s{sWp}, s{sT}, 17', f's_add_u32 s{sWp}, s{sWp}, {WS_WF}', f's_lshl_b32 s{sWt}, s{sT}, 10', f's_add_u32 s{sWt}, s{sWt}, {WS_FLAG + FL_KV}']
        L += [f's_xor_b32 s{sRo}, s{sRT}, s{sCc}', f's_and_b32 s{sRo}, s{sRo}, {ROT(self)}', f's_cmp_eq_u32 s{sCc}, 7\ns_cselect_b32 s{sRo}, 0, s{sRo}',
              f's_lshl_b32 s{sRo}, s{sRo}, 16', f's_add_u32 s{sWp}, s{sWp}, s{sRo}']
        return L

    def k0_dma(self):
        return [f's_lshr_b32 s{sT}, s{sW8}, 1', f's_add_u32 s{sT2}, s{sF}, s{sT}', f's_add_u32 m0, s{sT}, 131072'] + \
               [f'buffer_load_dwordx4 v{vL16}, s[{SWS}:{SWS+3}], s{sT2} offen offset:{1024*i} sc1 lds' for i in range(4)] + \
               [f's_add_u32 s{sF}, s{sF}, s{sW8}', f's_add_u32 s{sF}, s{sF}, 16384']

    def unit_dma(self, slot):
        return [f's_add_u32 s{sDs}, s{sW8}, {32768 * slot}'] + [x for x, _ in self.dma([1] * 8)] + [f's_add_u32 s{sF}, s{sF}, 32768', f's_sub_u32 s{sFc}, s{sFc}, 1',
                f's_cmp_eq_u32 s{sFc}, 0\ns_cselect_b32 s{sF}, s{sFj}, s{sF}\ns_cselect_b32 s{sFc}, s{sFc2}, s{sFc}\ns_cselect_b32 s{sFj}, s{sOOB}, s{sFj}']

    def ring_start(self):
        return [f's_mov_b32 s{sDs}, s{sW8}', f's_mov_b32 s{sRs}, 32768']

    def ring_rd(self): return [f'v_add_u32 v{vRd}, {131072 - 16384}, v{vL16}']

    def qk(self, u, c0):
        L = []
        for kt in range(2):
            for n, ds in enumerate(range(8) if kt == 0 or not int(self.opt.get('zig', 1)) else range(7, -1, -1)):
                L.append(mfma(('v', S(kt, u)), ('a', aK + 32 * kt + 4 * ds), ('a', aQ + 32 * u + 4 * ds),
                              (c0 if c0 else ('v', vNM + 4 * u)) if n == 0 else ('v', S(kt, u))))
        return L

    def pv(self, u, first):
        m = [mfma(('v', O(dt, u)), ('a', aV + 4 * dt), ('v', vP + 4 * u), '0' if first else ('v', O(dt, u))) for dt in range(16)]
        return m + [mfma(('v', vLs + 4 * u), ('v', vOne), ('v', vP + 4 * u), '0' if first else ('v', vLs + 4 * u))]

    def soft(self, u, g):
        b = vS + 8 * u
        return [(f'v_exp_f32 v{b + e}, v{b + e}', g) for e in range(8)] + \
               [(f'v_cvt_pk_bf16_f32 v{vP + 4*u + e}, v{b + 2*e}, v{b + 2*e + 1}', g) for e in range(4)]

    def vreads(self): return [f'ds_read_b128 a[{aV + 4*n}:{aV + 4*n + 3}], v{vRd} offset:{1024*n}' for n in range(16)]
    def kreads(self):
        return [f'ds_read_b128 a[{aK + 32*kt + 4*ds}:{aK + 32*kt + 4*ds + 3}], v{vRd} offset:{16384 + 8192*kt + 1024*ds}' for kt in range(2) for ds in range(8)]

    def dma(self, gaps):
        it = []
        for grp in range(2):
            g0 = gaps[4 * grp]
            if grp == 0: it.append((f's_mov_b32 m0, s{sDs}', g0 - 1)); so = sF
            else:
                it.append((f's_add_u32 s{sT2}, s{sF}, 4096', g0 - 1)); it.append((f's_add_u32 m0, s{sDs}, 4096', g0 - 1)); so = sT2
            for i in range(4):
                it.append((f'buffer_load_dwordx4 v{vL16}, s[{SWS}:{SWS+3}], s{so} offen offset:{1024*i} {self.opt.get("kvf", "sc1").replace("_", " ")} lds', gaps[4 * grp + i]))
        return it

    def adv(self, g):
        self.uid += 1; L = f'F_sw{self.uid}'
        self.late += [f'{L}:', f's_mov_b32 s{sF}, s{sFj}', f's_mov_b32 s{sFc}, s{sFc2}', f's_mov_b32 s{sFj}, s{sOOB}', f's_cmp_eq_u32 s{sF}, s{sOOB}',
                      f's_cbranch_scc0 {L}r', f's_add_u32 s{sF}, s{sWp}, {4 * 4096}', f's_mov_b32 s{sW0}, s{sRs}', f's_mov_b32 s{sUs}, 8192',
                      f's_mov_b32 s{sFc}, 4096', f's_branch {L}r']
        return [(t, g) for t in (f's_add_u32 s{sF}, s{sF}, s{sUs}', f's_sub_u32 s{sFc}, s{sFc}, 1', f's_cmp_eq_u32 s{sFc}, 0',
                f's_cbranch_scc1 {L}\n{L}r:')]

    def slot_s(self, g):
        return [(t, g) for t in (f's_add_u32 s{sDs}, s{sRs}, s{sW8}', f's_add_u32 s{sRs}, s{sRs}, 32768', f's_and_b32 s{sRs}, s{sRs}, 0x1ffff',
                f's_add_u32 s{sIt}, s{sIt}, 1')]

    def ahead(self):
        k = self.k
        if self.opt.get('itprof'): k('s_memtime s[82:83]')
        if self.opt.get('vfirst'): k(f'v_add_u32 v{vRd}, s{sRs}, v{vL16}')
        k('s_waitcnt vmcnt(16) lgkmcnt(0)')
        if not self.opt.get('vfirst'): k(f'v_add_u32 v{vRd}, s{sRs}, v{vL16}')
        if self.opt.get('itprof'): k(f's_mov_b32 m0, s{sIt}'); k('s_nop 0'); k(f'v_writelane_b32 v{vDump}, s82, m0')
        if not self.opt.get('nobar'): k('s_barrier')

    def mask(self):
        k = self.k
        for u in range(2):
            for r in range(4): k(f'v_cndmask_b32 v{S(u, u) + r}, v{S(u, u) + r}, v{vNinf}, s[{sMK + 2*r}:{sMK + 2*r + 1}]')
        for r in range(4): k(f'v_mov_b32 v{S(1, 0) + r}, v{vNinf}')

    def rowmax(self, dst):
        k = self.k
        for u in range(2): k(f'v_max3_f32 v{dst + u}, v{vS + 8*u}, v{vS + 8*u + 1}, v{vS + 8*u + 2}')
        for e in (3, 5):
            for u in range(2): k(f'v_max3_f32 v{dst + u}, v{dst + u}, v{vS + 8*u + e}, v{vS + 8*u + e + 1}')
        for u in range(2): k(f'v_max_f32 v{dst + u}, v{dst + u}, v{vS + 8*u + 7}')

    def setmax(self, m, bias=None):
        k = self.k
        for sw in ('v_permlane32_swap_b32', 'v_permlane16_swap_b32'):
            for u in range(2): k(f'v_mov_b32 v{m + 2 + u}, v{m + u}')
            k('s_nop 1')
            for u in range(2): k(f'{sw} v{m + u}, v{m + 2 + u}')
            for u in range(2): k(f'v_max_f32 v{m + u}, v{m + u}, v{m + 2 + u}')
        for u in range(2):
            for r in range(4): k(f'v_sub_f32 v{vNM + 4*u + r}, {f32(-(self.bias if bias is None else bias))}, v{m + u}')

    def tail_streams(self):
        kg = [32, 33, 44, 45, 46, 47, 48] + list(range(49, 58))
        return [(t, g - 32) for t, g in zip(self.kreads(), kg)]

    def it_mid(self, copy=0, exit_=None):
        k = self.k; o = self.opt
        va = int(o.get('va', 0))
        self.ahead()
        mf = self.qk(0, None) + self.qk(1, None) + self.pv(0, False)[:17 - va] + self.pv(1, False)[:17 - va]
        k(mf[0])
        k(f's_cmp_ge_u32 s{sIt}, s{sHook}')
        if int(o.get('unr', 0)):
            k(f's_cbranch_scc1 F_hookin{copy}')
            k(f'F_hookret{copy}:')
        else:
            k('s_cbranch_scc1 F_hook')
            k('F_hookret:')
        mf = mf[1:]
        L = lambda key, d: [int(x) for x in o[key].split('.')] if key in o else d
        vg = L('vg', [0, 1, 2, 3, 5, 6, 7, 8, 9, 10, 11, 13, 14, 15, 16, 16])
        if va:
            kg = L('kg', [30, 31, 32, 45, 46, 47, 48, 49, 50, 51, 53, 54, 55, 56, 57, 58]); dg = L('dg', [4, 12, 20, 28, 36, 44, 52, 59])
        else:
            kg = L('kg', [31, 32, 33, 45, 46, 47, 48, 49, 50, 51, 53, 54, 55, 56, 57, 58]); dg = L('dg', [4, 12, 20, 28, 36, 44, 52, 60])
        rd = list(zip(self.vreads(), vg)) + [('s_waitcnt lgkmcnt(0)', 29)] + list(zip(self.kreads(), kg))
        sm = self.soft(0, 17) + self.soft(1, 34 - va)
        ag = dg[-1]
        dm = self.dma(dg) + self.adv(ag) + self.slot_s(ag + 1) + [(f's_sub_u32 s{sCnt}, s{sCnt}, 1', ag + 2), (f's_cmp_gt_u32 s{sCnt}, s{sEx}', ag + 2)]
        ct = [(f'global_load_dword v{vH+1}, v{vCp}, s[30:31]', 29 if va else 30)] if int(o.get('ct', 1)) and copy == 0 else []
        ad = [(f'v_add_f32 v{vLse + u}, v{vLse + u}, v{vS + 8*u + e}', kg[8 * u + e]) for u in range(2) for e in range(8)] if va else []
        VMCOST[0] = 2
        sched(k, mf, [dm, ct, sm, rd, ad] if va else [dm, ct, sm, rd], req={31: [(3, 17), (2, 12)], 48 - va: [(2, 24)]}, prio=[0, 1, 3, 2, 4] if va else [0, 3, 2, 1])
        VMCOST[0] = 1

    def fold(self):
        k = self.k
        if not int(self.opt.get('va', 0)): return
        for sw in ('v_permlane32_swap_b32', 'v_permlane16_swap_b32'):
            for u in range(2): k(f'v_mov_b32 v{vT + u}, v{vLse + u}')
            k('s_nop 1')
            for u in range(2): k(f'{sw} v{vLse + u}, v{vT + u}')
            for u in range(2): k(f'v_add_f32 v{vLse + u}, v{vLse + u}, v{vT + u}')
        for u in range(2): k(f'v_add_f32 v{vLs + 4*u}, v{vLs + 4*u}, v{vLse + u}')

    def it_tail(self, n):
        k = self.k
        if n == 0: k('s_waitcnt vmcnt(8)')
        self.ahead()
        mf = self.qk(0, None) + self.qk(1, None) + self.pv(0, False) + self.pv(1, False)
        pl = []
        if n == 0:
            k(mf[0]); self.emit(self.poll_check(vPl, vZ, SWS, f's{sWt}', 1))
            pl += [f's_lshl_b32 s{sT}, s{sPO}, 10', f's_add_u32 s{sT}, s{sT}, {WS_ML}']
            pl += [f'buffer_load_dword v{vLse + u}, v{vL4}, s[{SWS}:{SWS+3}], s{sT} offen offset:{256*u} sc1' for u in range(2)]
            pl += [f's_lshl_b32 s{sSo}, s{sPO}, 14']
        else: k(mf[0])
        mf = mf[1:]
        for i in range(8 * n, 8 * n + 8):
            if i % 4 == 0: pl.append(f's_add_u32 s{sT}, s{sSo}, {WS_PART + 1024 * i}')
            pl.append(f'buffer_load_dwordx4 v[{vB + 4*i}:{vB + 4*i + 3}], v{vL16}, s[{SWS}:{SWS+3}], s{sT} offen offset:{1024 * (i % 4)} sc1')
        pg = [[2, 6, 10, 14, 30, 48, 54, 58, 62, 64], [2, 6, 10, 14, 18, 22, 30, 32]][n]; pq = []; g = 0
        for x in pl:
            pq.append((x, pg[g] if x.startswith('buffer') else max(0, pg[g] - 2)))
            if x.startswith('buffer'): g += 1
        vg = [0, 0, 1, 3, 3, 5, 7, 7, 8, 9, 11, 11, 13, 15, 15, 16]
        rd = list(zip(self.vreads(), vg)) + [('s_waitcnt lgkmcnt(0)', 29)]
        if n == 0: rd += list(zip(self.kreads(), [31, 32, 33, 45, 46, 47, 49, 49, 50, 51, 51, 53, 55, 55, 56, 57]))
        dg = [[4, 12, 20, 28, 36, 44, 52, 60], [4, 12, 33, 45, 49, 53, 57, 61]][n]
        dm = self.dma(dg) + [(f's_add_u32 s{sF}, s{sF}, s{sUs}', 61)] + self.slot_s(62)
        VMCOST[0] = 2
        sched(k, mf, [dm, pq, rd, self.soft(0, 17) + self.soft(1, 34)], req={29: [(3, 12)], 31: [(2, 17)], 46: [(3, 24)]})
        VMCOST[0] = 1
        last = max(i for i, l in enumerate(k.lines) if l.strip() == pl[-1])
        return last + 1

    def wl(self):
        it = []
        for n in range(16):
            if n % 4 == 0: it.append(f's_add_u32 s{sSo}, s{sWt}, {1024 * n}')
            it.append(f'buffer_load_dwordx4 a[{192 + 4*n}:{195 + 4*n}], v{vL16}, s[{SWS}:{SWS+3}], s{sSo} offen offset:{1024 * (n % 4)} sc1')
        return it

    def first_end(self):
        self.k('s_waitcnt vmcnt(24)')
        self.k(f'buffer_store_dword v{v1}, v{vZ}, s[{SWS}:{SWS+3}], s{sFl} offen sc1')

    def it_only(self):
        k = self.k
        k('F_only:')
        mf = self.qk(0, '0') + self.qk(1, '0')
        sched(k, mf, [[(t, 2 * n) for n, t in enumerate(self.vreads())], self.dma([1, 5, 9, 13, 17, 21, 25, 29])])
        self.emit(self.adv(0) + self.slot_s(0))
        k(f's_sub_u32 s{sCnt}, s{sCnt}, 1')
        self.mask(); self.rowmax(vT); self.setmax(vT)
        for u in range(2):
            for e in range(8): k(f'v_add_f32 v{vS + 8*u + e}, v{vS + 8*u + e}, v{vNM + 4*u}')
        self.emit(self.soft(0, 0) + self.soft(1, 0))
        k('s_waitcnt lgkmcnt(0)')
        sched(k, self.pv(0, True) + self.pv(1, True), [self.tail_streams(), self.spread(self.wl(), 1, 2)])
        self.first_end()
        k('s_branch F_done')

    def it_first(self):
        k = self.k
        self.ahead()
        k('F_first:')
        k(f's_cmp_eq_u32 s{sCnt}, s{sDiag}')
        k('s_cbranch_scc1 F_only')
        mf = self.qk(0, '0') + self.qk(1, '0') + self.pv(0, True) + self.pv(1, True)
        def chain(u, g):
            b = vS + 8 * u; m = vT + 2 * u
            L = [f'v_max3_f32 v{m}, v{b}, v{b+1}, v{b+2}', f'v_max3_f32 v{m}, v{m}, v{b+3}, v{b+4}', f'v_max3_f32 v{m}, v{m}, v{b+5}, v{b+6}', f'v_max_f32 v{m}, v{m}, v{b+7}']
            for sw in ('v_permlane32_swap_b32', 'v_permlane16_swap_b32'):
                L += [f'v_mov_b32 v{m+1}, v{m}', 's_nop 1', f'{sw} v{m}, v{m+1}', f'v_max_f32 v{m}, v{m}, v{m+1}']
            L.append(f'v_sub_f32 v{vNM + 4*u}, {f32(-self.bias)}, v{m}')
            L += [f'v_add_f32 v{b + e}, v{b + e}, v{vNM + 4*u}' for e in range(8)]
            return [(x, g) for x in L] + self.soft(u, g) + [('s_nop 1', g)]
        c0, c1 = chain(0, 18), chain(1, 34)
        nm = [(f'v_mov_b32 v{vNM + 4*u + r}, v{vNM + 4*u}', 50) for u in range(2) for r in range(1, 4)] + [(f'v_mov_b32 v{vLse + u}, 0', 50) for u in range(2)]
        w = self.wl()
        vg = [0, 0, 2, 2, 4, 4, 6, 6, 8, 8, 10, 10, 12, 12, 14, 14]
        rd = list(zip(self.vreads(), vg)) + [('s_waitcnt lgkmcnt(0)', 30)] + list(zip(self.kreads(), [32, 32, 33, 33] + [49 + n // 2 * 2 for n in range(12)]))
        dm = self.dma([1, 3, 5, 7, 9, 11, 13, 15]) + self.adv(15) + self.slot_s(16) + [(f's_sub_u32 s{sCnt}, s{sCnt}, 1', 17)]
        wq = self.spread(w[:5], 16, 4) + self.spread(w[5:10], 35, 4) + self.spread(w[10:], 50, 2)
        VMCOST[0] = 2
        sched(k, mf, [dm, rd, wq, c0 + c1 + nm], req={32: [(3, len(c0)), (1, 17)], 49: [(3, len(c0 + c1))]})
        VMCOST[0] = 1
        self.first_end()

    def it_last(self):
        k = self.k
        self.ahead()
        mf = self.qk(0, None)[:8] + self.qk(1, None) + self.pv(0, False) + self.pv(1, False)
        cm = lambda u: [f'v_cndmask_b32 v{S(u, u) + r}, v{S(u, u) + r}, v{vNinf}, s[{sMK + 2*r}:{sMK + 2*r + 1}]' for r in range(4)]
        s0 = [(f'v_mov_b32 v{vP + e}, 0', 2) for e in (2, 3)] + [(x, 11) for x in cm(0)] + [x for n, x in enumerate(self.soft(0, 11)) if n in (0, 1, 2, 3, 8, 9)]
        sf = self.soft(1, 27)
        s1 = sf[:4] + [(x, 27) for x in cm(1)] + sf[4:]
        rd = list(zip(self.vreads(), [0, 0, 1, 1, 2, 3, 5, 5, 6, 6, 7, 7, 8, 8, 9, 9])) + [('s_waitcnt lgkmcnt(0)', 22)] + \
            list(zip(self.kreads(), [24, 24, 25, 25, 26, 26, 40, 41, 42, 43, 45, 46, 47, 48, 49, 50]))
        dm = self.dma([4, 10, 20, 23, 39, 44, 51, 54]) + self.adv(54) + self.slot_s(55) + [(f's_sub_u32 s{sCnt}, s{sCnt}, 1', 56)]
        VMCOST[0] = 2
        sched(k, mf, [dm, rd, s0 + s1], req={22: [(2, len(s0))], 24: [(1, 17)], 39: [(2, len(s0 + s1))]})
        VMCOST[0] = 1

    def it_idle(self, lbl):
        k = self.k
        self.ahead()
        self.emit(self.dma([1] * 8) + self.adv(0) + self.slot_s(0))
        k(f's_sub_u32 s{sRem}, s{sRem}, 1')
        k(f's_cmp_lg_u32 s{sRem}, 0')
        k(f's_cbranch_scc1 {lbl}')
        self.emit(self.kreads())
        k(f'{lbl}:')

    def out_store(self, ustride, merge, fill=None):
        k = self.k
        for u in range(2):
            for ds in range(8):
                b = O(2 * ds, u)
                for e in range(0, 8, 2):
                    k(f'v_pk_mul_f32 v[{b+e}:{b+e+1}], v[{b+e}:{b+e+1}], v[{vT + 2*u}:{vT + 2*u + 1}]')
                if merge:
                    for e in range(4):
                        src = vB + 32 * u + 4 * ds + e
                        k(f'v_lshlrev_b32 v{vS + 2*e}, 16, v{src}')
                        k(f'v_and_b32 v{vS + 2*e + 1}, 0xffff0000, v{src}')
                    for e in range(0, 8, 2):
                        k(f'v_pk_fma_f32 v[{b+e}:{b+e+1}], v[{vS+e}:{vS+e+1}], v[{vT + 4 + 2*u}:{vT + 5 + 2*u}], v[{b+e}:{b+e+1}]')
                for e in range(4): k(f'v_cvt_pk_bf16_f32 v{b + e}, v{b + 2*e}, v{b + 2*e + 1}')
                if ds % 4 == 0: k(f's_add_u32 s{sT2}, s{sSo}, {ustride(u, ds)}')
                k(f'buffer_store_dwordx4 v[{b}:{b+3}], v{vL16}, s[{SWS}:{SWS+3}], s{sT2} offen offset:{1024 * (ds % 4)} {self.opt.get("ctxsc", "sc1")}')
                if fill: self.emit(fill[8 * u + ds])

    def ctx_base(self):
        k = self.k
        k(f's_lshl_b32 s{sSo}, s{sQT}, 20')
        k(f's_lshl_b32 s{sT}, s{sWV}, 18')
        k(f's_add_u32 s{sSo}, s{sSo}, s{sT}')
        k(f's_lshl_b32 s{sT}, s{sH}, 13')
        k(f's_add_u32 s{sSo}, s{sSo}, s{sT}')
        k(f's_add_u32 s{sSo}, s{sSo}, {WS_CTX}')

    def slow(self):
        k = self.k
        k('F_slow:')
        k('s_waitcnt vmcnt(0) lgkmcnt(0)')
        for ps in range(2):
            k(f's_lshl_b32 s{sSo}, s{sT0}, 15')
            k(f's_add_u32 s{sSo}, s{sSo}, s{sHB}')
            k(f's_mov_b32 s{sCnt}, s{sNW}')
            if ps == 0:
                for u in range(2): k(f'v_mov_b32 v{vT + 4 + u}, v{vNinf}')
            else:
                for r in range(128): k(f'v_mov_b32 v{vO + r}, 0')
                for r in range(8): k(f'v_mov_b32 v{vLs + r}, 0')
            k(f'F_slow{ps}:')
            self.gload('a', aK, sSo, n=16 * (1 + ps))
            k(f's_add_u32 s{sSo}, s{sSo}, 32768')
            k(f's_sub_u32 s{sCnt}, s{sCnt}, 1')
            k('s_waitcnt vmcnt(0)')
            for m in self.qk(0, None if ps else '0') + self.qk(1, None if ps else '0'): k(m)
            k('s_nop 7')
            k(f's_cmp_ge_u32 s{sCnt}, s{sDiag}')
            k(f's_cbranch_scc1 F_slown{ps}')
            self.mask()
            k(f'F_slown{ps}:')
            if ps == 0:
                self.rowmax(vT)
                for u in range(2): k(f'v_max_f32 v{vT + 4 + u}, v{vT + 4 + u}, v{vT + u}')
            else:
                self.emit(self.soft(0, 0) + self.soft(1, 0))
                k('s_nop 1')
                for m in self.pv(0, False) + self.pv(1, False): k(m)
            k(f's_cmp_lg_u32 s{sCnt}, 0')
            k(f's_cbranch_scc1 F_slow{ps}')
            if ps == 0: self.setmax(vT + 4, 0.0)
        self.emit(self.kreads())
        k('s_branch F_checked')

    def segcount(self):
        k = self.k
        k(f's_sub_u32 s{sRem}, 3, s{sWV}')
        k(f's_mul_i32 s{sRem}, s{sRem}, s{sDiag}')
        k(f's_sub_u32 s{sCnt}, s{sN}, s{sRem}')
        k(f's_mov_b32 s{sNW}, s{sCnt}')
        k(f's_cmp_eq_u32 s{sNext}, 0')
        k(f's_cselect_b32 s{sWt}, s{sWp}, s{sOOB}')

    def hooks(self):
        k = self.k
        if int(self.opt.get('unr', 0)):
            for t in ('F_hookret:', 's_cmp_eq_u32 s3, 0', 's_cbranch_scc1 F_hookret0', 's_branch F_hookret1', 'F_hookin1:', 's_mov_b32 s3, 1', 's_branch F_hook', 'F_hookin0:', 's_mov_b32 s3, 0'): k(t)
        k('F_hook:')
        for n in (1, 6, 7, 8, 9, 2, 3, 4, 5):
            k(f's_cmp_eq_u32 s{sHst}, {n}'); k(f's_cbranch_scc1 F_hook{n}')
        def done(d):
            k(f's_add_u32 s{sHook}, s{sIt}, {d}'); k(f's_add_u32 s{sHst}, s{sHst}, 1'); k('s_branch F_hookret')
        flag = lambda so: k(f'buffer_store_dword v{v1}, v{vZ}, s[{SWS}:{SWS+3}], s{so} offen sc1')
        kv = (vPl, vH, SWS, f's{sPF}')
        self.emit(self.lanes(vH, 16))
        k(self.poll_load(*kv))
        done(1)
        k('F_hook1:')
        k('s_waitcnt vmcnt(8)')
        self.emit(self.poll_check(*kv, 2))
        if int(self.opt.get('spare', 1)):
            for g in range(2):
                k(f's_add_u32 m0, s{sW8}, {131072 + 4096 * g}')
                k(f's_add_u32 s{sSo}, s{sWp}, {(12 + g) * 4096}')
                for n in range(4): k(f'buffer_load_dwordx4 v{vL16}, s[{SWS}:{SWS+3}], s{sSo} offen offset:{1024*n} sc1 lds')
        k(f's_lshr_b32 s{sT}, s{sP}, 1')
        k(f's_cmp_eq_u32 s{sT}, {self.opt.get("redp", 0)}')
        k(f's_cselect_b32 s{sHst}, 2, 6')
        k(f's_cselect_b32 s{sHook}, 8, 19')
        k(f's_cmp_eq_u32 s{sROLE}, 1')
        k(f's_cselect_b32 s{sHook}, s{sHook}, -1')
        k('s_branch F_hookret')
        PB = 96
        def tile():
            k(f's_and_b32 s{sT}, s{sP}, 1'); k(f's_lshl_b32 s{sT}, s{sT}, 2'); k(f's_add_u32 s{sT}, s{sT}, s{sWV}')
        pl = (vPl, vH, SWS, f's{sWt}')
        k('F_hook2:')
        k(f's_lshl_b32 s{sWt}, s{sH}, 5')
        k(f's_add_u32 s{sWt}, s{sWt}, s{sWV}')
        k(f's_lshl_b32 s{sWt}, s{sWt}, 7')
        k(f's_add_u32 s{sWt}, s{sWt}, {WS_FLAG + FL_B1}')
        k(f'v_lshlrev_b32 v{vH}, 5, v{vL16}')
        k(f'v_and_b32 v{vH}, 0xfff, v{vH}')
        k(self.poll_load(*pl))
        done(1)
        k('F_hook3:')
        tile()
        k(f's_lshl_b32 s{sT}, s{sT}, 10')
        k(f's_lshl_b32 s{sSo}, s{sH}, 16')
        k(f's_add_u32 s{sSo}, s{sSo}, s{sT}')
        k(f's_add_u32 s{sSo}, s{sSo}, {WS_KVP}')
        k('s_waitcnt vmcnt(8)')
        self.emit(self.poll_check(*pl, 1))
        for r in range(8):
            k(f'buffer_load_dwordx4 v[{PB + 4*r}:{PB + 4*r + 3}], v{vL16}, s[{SWS}:{SWS+3}], s{sSo} offen sc1')
            k(f's_add_u32 s{sSo}, s{sSo}, 8192')
        done(2)
        k('F_hook4:')
        tile()
        k(f's_lshl_b32 s{sSo}, s{sH}, 3')
        k(f's_add_u32 s{sSo}, s{sSo}, s{sT}')
        k(f's_lshl_b32 s{sWt}, s{sSo}, 7')
        k(f's_add_u32 s{sWt}, s{sWt}, {WS_FLAG + FL_KVR}')
        k(f's_lshl_b32 s{sSo}, s{sSo}, 9')
        k(f's_add_u32 s{sSo}, s{sSo}, {WS_KVF}')
        for r in range(1, 8):
            for e in (0, 2): k(f'v_pk_add_f32 v[{PB+e}:{PB+e+1}], v[{PB+e}:{PB+e+1}], v[{PB+4*r+e}:{PB+4*r+e+1}]')
        k(f'v_lshrrev_b32 v{vH}, 1, v{vL16}')
        for e in range(2): k(f'v_cvt_pk_bf16_f32 v{PB + e}, v{PB + 2*e}, v{PB + 2*e + 1}')
        k(f'buffer_store_dwordx2 v[{PB}:{PB+1}], v{vH}, s[{SWS}:{SWS+3}], s{sSo} offen sc1')
        done(2)
        k('F_hook5:')
        flag(sWt)
        done(6)
        pl = (vPl, vH, SWS, f's{sWt}')
        k('F_hook6:')
        k(f's_lshl_b32 s{sWt}, s{sBH}, 10')
        k(f's_add_u32 s{sWt}, s{sWt}, {WS_FLAG + FL_KVR}')
        self.emit(self.lanes(vH, 8))
        k(self.poll_load(*pl))
        done(1)
        k('F_hook7:')
        k('s_waitcnt vmcnt(8)')
        self.emit(self.poll_check(*pl, 1))
        k(f's_lshl_b32 s{sSo}, s{sBH}, 12')
        k(f's_add_u32 s{sSo}, s{sSo}, {WS_KVF}')
        k(f'v_lshrrev_b32 v{vH}, 1, v{vL16}')
        for n in range(8): k(f'buffer_load_dwordx2 v[{PB + 2*n}:{PB + 2*n + 1}], v{vH}, s[{SWS}:{SWS+3}], s{sSo} offen offset:{512*n} sc1')
        done(2)
        k('F_hook8:')
        k(f's_lshl_b32 s{sSo}, s{sBR}, 2')
        k(f's_add_u32 s{sSo}, s{sSo}, s{sWV}')
        k(f's_lshl_b32 s{sSo}, s{sSo}, 4')
        k(f's_add_u32 s{sSo}, s{sSo}, s{sBH}')
        k(f's_lshl_b32 s{sWt}, s{sSo}, 7')
        k(f's_add_u32 s{sWt}, s{sWt}, {WS_FLAG + FL_O}')
        k(f's_lshl_b32 s{sSo}, s{sSo}, 12')
        k(f's_add_u32 s{sSo}, s{sSo}, {WS_OF}')
        k(f'v_and_b32 v{vH}, 0x3c, v{vL4}')
        k(f'v_add_u32 v{vH}, 192, v{vH}')
        NB = lambda i: (112, 120, 64, 72)[i]
        for i in range(4):
            for j in (1, 0):
                d = ('v', NB(i) + 4 * j)
                for sg in range(2): k(mfma(d, ('v', PB + 8 * j + 4 * sg), ('v', vB + 8 * i + 4 * sg), d if sg else '0'))
        k('s_nop 4')
        for i in range(4): k(f'ds_bpermute_b32 v{vT + 2*i}, v{vH}, v{NB(i) + 4}')
        k('s_waitcnt lgkmcnt(0)')
        for i in range(4): k(f'v_add_f32 v{vT + 2*i}, {f32(1e-6)}, v{vT + 2*i}')
        for i in range(4): k(f'v_rcp_f32 v{vT + 2*i}, v{vT + 2*i}')
        for i in range(4):
            b_ = NB(i)
            for e in range(0, 8, 2): k(f'v_pk_mul_f32 v[{b_+e}:{b_+e+1}], v[{b_+e}:{b_+e+1}], v[{vT + 2*i}:{vT + 2*i + 1}] op_sel_hi:[1,0]')
            for e in range(4): k(f'v_cvt_pk_bf16_f32 v{b_ + e}, v{b_ + 2*e}, v{b_ + 2*e + 1}')
            for e in (2, 3): k(f'v_cndmask_b32 v{b_ + e}, v{b_ + e}, 0, s[{sM3}:{sM3+1}]')
            k(f'buffer_store_dwordx4 v[{b_}:{b_+3}], v{vL16}, s[{SWS}:{SWS+3}], s{sSo} offen offset:{1024*i} sc1')
        k(f's_sub_u32 s{sHook}, s{sN}, 3')
        k(f's_mov_b32 s{sHst}, 9')
        k('s_branch F_hookret')
        pl = (vPl, vZ, SWS, f's{sWt}')
        k('F_hook9:')
        flag(sWt)
        k(f's_lshl_b32 s{sWt}, s{sPO}, 7')
        k(f's_add_u32 s{sWt}, s{sWt}, {WS_FLAG + FL_P}')
        k(self.poll_load(*pl))
        if not int(self.opt.get('ct', 1)):
            self.emit(self.code_pf(vH, vH + 1))
            k(f'v_xor_b32 v{vH}, 0x8000, v{vH}')
            k(f'global_load_dword v{vH+1}, v{vH}, s[30:31]')
        k(f's_mov_b32 s{sHook}, -1')
        k('s_branch F_hookret')

    def att_consts(self):
        k = self.k
        k(f'v_lshrrev_b32 v{vL4}, 2, v{vL16}')
        k(f'v_bfe_u32 v{vZ}, v{vL16}, 2, 7')
        k(f'v_mov_b32 v{vNinf}, 0xff800000')
        for r in range(4): k(f'v_mov_b32 v{vOne + r}, 0x3f803f80')
        k(f'v_bfe_u32 v{vLse}, v{vL16}, 4, 4')
        k(f'v_lshrrev_b32 v{vLse+1}, 8, v{vL16}')
        k(f'v_lshlrev_b32 v{vLse+1}, 2, v{vLse+1}')
        for r in range(4):
            k(f'v_cmp_gt_u32 s[{sMK + 2*r}:{sMK + 2*r + 1}], v{vLse+1}, v{vLse}')
            k(f'v_add_u32 v{vLse+1}, 1, v{vLse+1}')
        if int(self.opt.get('ct', 1)):
            k(f's_lshr_b32 s{sT}, s2, 3'); k(f's_lshl_b32 s{sT}, s{sT}, 2'); k(f's_add_u32 s{sT}, s{sT}, s{sWV}'); k(f's_lshl_b32 s{sT}, s{sT}, 8')
            k(f's_add_u32 s{sT}, s{sT}, F_loopend-F_pc')
            k(f'v_lshrrev_b32 v{vCp}, 9, v{vL16}'); k(f'v_lshlrev_b32 v{vCp}, 7, v{vCp}'); k(f'v_add_u32 v{vCp}, s{sT}, v{vCp}')
        k(f's_mov_b32 s{sUs}, 32768')
        k(f's_mov_b32 s{sIt}, 0')
        k(f's_add_u32 s{sEx}, s{sROLE}, 1')
        k(f's_mov_b32 s{sHook}, 1')
        k(f's_mov_b32 s{sHst}, 0')
        self.segcount()

    def attention(self):
        k = self.k
        k('F_att:')
        k('s_waitcnt lgkmcnt(0)')
        k(f'v_add_u32 v{vRd}, s{sRs}, v{vL16}')
        k('s_branch F_first')
        k('F_seg:')
        self.segcount()
        self.it_first()
        k(f's_cmp_gt_u32 s{sCnt}, s{sDiag}')
        k('s_cbranch_scc0 F_loopend')
        k('.p2align 6')
        for _ in range(int(self.opt.get('al', 4))): k('s_nop 0')
        k('F_loop:')
        self.it_mid()
        if int(self.opt.get('unr', 0)):
            k('s_cbranch_scc0 F_loopx')
            self.it_mid(1)
        k('s_cbranch_scc1 F_loop')
        k('F_loopx:')
        self.fold()
        k('F_loopend:')
        k(f's_cmp_eq_u32 s{sDiag}, 1')
        k('s_cbranch_scc1 F_last')
        p0 = self.it_tail(0); p1 = self.it_tail(1)
        self.pw = (nvm(k.lines[p0:]), nvm(k.lines[p1:]))
        k('F_done:')
        for u in range(2):
            k(f'v_max3_f32 v{vT + u}, abs(v{O(0, u)}), abs(v{O(0, u) + 1}), abs(v{O(0, u) + 2})')
            for e in (3, 5, 7): k(f'v_max3_f32 v{vT + u}, v{vT + u}, abs(v{O(0, u) + e}), abs(v{O(0, u) + e + 1})')
        k(f'v_min_f32 v{vT}, v{vT}, v{vT + 1}')
        k(f'v_max_f32 v{vT + 1}, v{vLs}, v{vLs + 4}')
        k(f'v_cmp_gt_f32 vcc, {f32(2.0 ** -110)}, v{vT}')
        k(f'v_cmp_ngt_f32 s[{sM28}:{sM28+1}], s{sBig}, v{vT + 1}')
        k('s_nop 0')
        k(f's_or_b64 vcc, vcc, s[{sM28}:{sM28+1}]')
        k('s_cbranch_scc1 F_slow')
        k('F_checked:')
        if self.ts:
            k(f's_cmp_eq_u32 s{sNext}, 0'); k('s_cbranch_scc1 F_ts2'); self.stamp(5); k('F_ts2:'); self.stamp(7)
        k(f's_cmp_eq_u32 s{sRem}, 0')
        k('s_cbranch_scc1 F_epi')
        self.it_idle('F_epi')
        for u in range(2): k(f'v_rcp_f32 v{vT + 2*u}, v{vLs + 4*u}')
        for u in range(2): k(f'v_log_f32 v{vT + 4 + 2*u}, v{vLs + 4*u}')
        k(f's_cmp_eq_u32 s{sMode}, 2')
        k('s_cbranch_scc1 F_merge')
        for u in range(2): k(f'v_mov_b32 v{vT + 2*u + 1}, v{vT + 2*u}')
        for u in range(2): k(f'v_sub_f32 v{vT + 4 + 2*u}, v{vT + 4 + 2*u}, v{vNM + 4*u}')
        self.ctx_base()
        k(f's_lshl_b32 s{sT}, s{sPO}, 10')
        k(f's_add_u32 s{sT}, s{sT}, {WS_ML}')
        k(f's_lshl_b32 s{sT2}, s{sPO}, 14')
        k(f's_add_u32 s{sT2}, s{sT2}, {WS_PART}')
        k(f's_cmp_eq_u32 s{sMode}, 1')
        k(f's_cselect_b32 s{sT}, s{sT}, s{sOOB}')
        k(f's_cselect_b32 s{sSo}, s{sT2}, s{sSo}')
        k(f's_mov_b32 s{sSt}, 131072')
        k(f's_cselect_b32 s{sSt}, 8192, s{sSt}')
        k(f's_add_u32 s{sSt2}, s{sSt}, 4096')
        for u in range(2): k(f'buffer_store_dword v{vT + 4 + 2*u}, v{vL4}, s[{SWS}:{SWS+3}], s{sT} offen offset:{256*u} sc1')
        self.out_store(lambda u, ds: (ds * 1024 if u == 0 else f's{sSt2 if ds else sSt}'), False)
        k('F_post:')
        k(f's_cmp_eq_u32 s{sRem}, 0')
        k('s_cbranch_scc1 F_post2')
        self.it_idle('F_post1')
        k('s_branch F_post')
        k('F_post2:')
        k(f's_cmp_eq_u32 s{sNext}, 0')
        k('s_cbranch_scc1 F_p3')
        for r in range(64):
            k(f'v_accvgpr_write_b32 a{aQ + r}, v{vB + r}')
            if int(self.opt.get('bv', 1)) and r % 4 == 3:
                if r % 16 == 3: k(f's_add_u32 s{sSo}, s{sWp}, {(28 + r // 16) * 4096}')
                k(f'buffer_load_dwordx4 v[{vB + r - 3}:{vB + r}], v{vL16}, s[{SWS}:{SWS+3}], s{sSo} offen offset:{1024 * (r // 4 % 4)} sc1')
        self.stamp(6)
        k(f's_mov_b32 s{sNext}, 0')
        k(f's_mov_b32 s{sMode}, 0')
        k(f's_mov_b32 s{sT0}, 0')
        k(f's_mov_b32 s{sQT}, s{sP}')
        k(f's_lshl_b32 s{sN}, s{sP}, 2')
        k(f's_add_u32 s{sN}, s{sN}, 4')
        k(f's_add_u32 s{sFl}, s{sFl}, {FL_P - FL_Q}')
        k('s_branch F_seg')
        k('F_last:')
        self.it_last()
        k('s_branch F_done')
        self.it_only()
        self.hooks()
        self.slow()
        self.flush_late()
        k('F_merge:')
        k(f's_waitcnt vmcnt({self.pw[0]})')
        for u in range(2): k(f'v_sub_f32 v{vT + 4 + 2*u}, v{vT + 4 + 2*u}, v{vNM + 4*u}')
        for u in range(2): k(f'v_sub_f32 v{vT + 4 + 2*u}, v{vT + 4 + 2*u}, v{vLse + u}')
        for u in range(2): k(f'v_exp_f32 v{vT + 1 + 2*u}, -v{vT + 4 + 2*u}')
        for u in range(2): k(f'v_exp_f32 v{vT + 4 + 2*u}, v{vT + 4 + 2*u}')
        for u in range(2): k(f'v_add_f32 v{vT + 1 + 2*u}, 1.0, v{vT + 1 + 2*u}')
        for u in range(2): k(f'v_add_f32 v{vT + 4 + 2*u}, 1.0, v{vT + 4 + 2*u}')
        for u in range(2): k(f'v_rcp_f32 v{vT + 1 + 2*u}, v{vT + 1 + 2*u}')
        for u in range(2): k(f'v_rcp_f32 v{vT + 4 + 2*u}, v{vT + 4 + 2*u}')
        for u in range(2): k(f'v_mul_f32 v{vT + 2*u}, v{vT + 2*u}, v{vT + 1 + 2*u}')
        for u in range(2): k(f'v_mov_b32 v{vT + 5 + 2*u}, v{vT + 4 + 2*u}')
        for u in range(2): k(f'v_mov_b32 v{vT + 1 + 2*u}, v{vT + 2*u}')
        self.ctx_base()
        self.out_store(lambda u, ds: u * 131072 + ds * 1024, True, [[f's_waitcnt vmcnt({self.pw[1] + 8})'] if n == 7 else [] for n in range(16)])
```

```python
from asmlib import *
from layout import *
import struct

def f32(x): return '0x%08x' % struct.unpack('<I', struct.pack('<f', x))[0]
LOG2E = 1.4426950408889634
OOB = 0x40000000

sH, sP, sROLE, sWV = 26, 27, 28, 29
SX, SW, SWS, SX2, SW2, SP = 32, 36, 40, 44, 48, 52
sXo, sWo, sX2o, sW2o = 56, 57, 58, 59
sA, sB, sC, sWd, sCnt, sSt, sT, sT2, sScale, sXd = 60, 61, 62, 63, 64, 65, 66, 67, 68, 69
sM3, sM28, sSt2, sPF = 70, 72, 74, 75
sF, sFc, sFj, sFc2, sOOB, sRs, sDs, sDiag, sMode, sHook = 4, 5, 6, 7, 8, 9, 10, 11, 12, 13
sRem, sNext, sQT, sHB, sW8, sPO = 16, 17, 18, 19, 20, 21
sFl, sNW, sT0, sSo = 76, 77, 78, 79
sMK = 88
sBig, sN, sHst, sSpin = 96, 97, 98, 99
sStE, sStL = 3, 64
sRo, sWq = 22, 23
sBH, sBR = 14, 15
sIt, sUs, sW0, sEx = 48, 49, 50, 51
sRT, sCc, sWt, sWp = 46, 47, 44, 45
SDBG = 100

FL_KV, FL_Q, FL_P, FL_B1, FL_CTX, FL_KVR, FL_O = [128 * n for n in (0, 1024, 1536, 2048, 2560, 3584, 4096)]

vL16 = 15

ROT = lambda f: int(f.opt.get('rot', 0))

def nvm(lines):
    return sum(1 for l in lines if l.split()[0].startswith(('buffer_', 'global_')))

class Base:
    def __init__(self, ts, opt):
        self.k = K(); self.ts = ts; self.opt = opt or {}; self.late = []; self.uid = 0

    def stamp(self, idx):
        stamp(self.k, self.ts, idx)
        h = self.opt.get('hold')
        if h:
            at, us = [int(x) for x in h.split('.')]
            if idx == 0: self.k('s_memrealtime s[84:85]')
            if idx == at:
                self.uid += 1; L = f'F_hold{self.uid}'
                for t in (f'{L}:', 's_memrealtime s[80:81]', 's_waitcnt lgkmcnt(0)', 's_sub_u32 s80, s80, s84', f's_cmp_lt_u32 s80, {us * 100}', f's_cbranch_scc1 {L}'): self.k(t)

    def poll_load(self, vdst, vaddr, srd_, so):
        if vaddr is None: return f'buffer_load_dword v{vdst}, off, s[{srd_}:{srd_+3}], {so} sc1'
        return f'buffer_load_dword v{vdst}, v{vaddr}, s[{srd_}:{srd_+3}], {so} offen sc1'

    def poll_check(self, vdst, vaddr, srd_, so, val):
        self.uid += 1; L = f'F_spin{self.uid}'
        cmp_ = [f'v_cmp_gt_u32 vcc, {val}, v{vdst}', 's_nop 0', 's_cmp_lg_u64 vcc, 0']
        self.late += [f'{L}:', f's_mov_b32 s{sSpin}, 0x200000', f'{L}a:', f's_sleep {self.opt.get("slp", 4)}', self.poll_load(vdst, vaddr, srd_, so),
                      's_waitcnt vmcnt(0)', f's_sub_u32 s{sSpin}, s{sSpin}, 1', f's_cbranch_scc1 {L}r'] + cmp_ + \
                     [f's_cbranch_scc1 {L}a', f's_branch {L}r']
        return cmp_ + [f's_cbranch_scc1 {L}', f'{L}r:']

    def lanes(self, v, n):
        return [f'v_lshlrev_b32 v{v}, 3, v{vL16}'] + ([f'v_and_b32 v{v}, {128 * n - 1}, v{v}'] if n < 64 else [])

    def code_pf(self, va, vd):
        return [f's_lshr_b32 s{sT}, s2, 3', f's_lshl_b32 s{sT}, s{sT}, 2', f's_add_u32 s{sT}, s{sT}, s{sWV}', f's_lshl_b32 s{sT}, s{sT}, 10',
                f'v_and_b32 v{va}, 0x380, v{vL16}', f'v_add_u32 v{va}, s{sT}, v{va}', f'global_load_dword v{vd}, v{va}, s[30:31]']

    def gload(self, cls, base, so, n=16):
        k = self.k
        for i in range(n):
            if i % 4 == 0: k(f's_add_u32 s{sT2}, s{so}, {1024 * i}')
            k(f'buffer_load_dwordx4 {R(cls, base + 4*i, 4)}, v{vL16}, s[{SWS}:{SWS+3}], s{sT2} offen offset:{1024 * (i % 4)} sc1')

    def visit(self, ev, ret):
        if ev not in self.opt.get('vis', ''): return
        k = self.k
        k('s_mov_b64 exec, 0')
        for w in range(3):
            k(f's_cmp_eq_u32 s{sWV}, {w}'); k(f's_cbranch_scc1 F_v{ev}{w}')
        k(f's_branch F_v{ev}3')
        k(f'F_vr{ret}:')
        k('s_mov_b64 exec, -1')

    def emit(self, ts):
        for t in ts:
            t = t[0] if isinstance(t, tuple) else t
            self.k(t)
            if ' m0,' in t: self.k('s_nop 0')

    def flush_late(self):
        for t in self.late: self.k(t)
        self.late = []
```
